```python
import torch

def _softmax(x, axis=-1):
    return torch.softmax(x, dim=axis)
def _gelu(x):
    return torch.nn.functional.gelu(x, approximate="tanh")
def _silu(x):
    return torch.nn.functional.silu(x)
def _sigmoid(x):
    return torch.sigmoid(x)
def _layernorm(x, axis=-1, eps=1e-5):
    m = x.mean(dim=axis, keepdim=True)
    v = x.var(dim=axis, keepdim=True, unbiased=False)
    return (x - m) / torch.sqrt(v + eps)
def _scatter_add(tgt, idx, src, axis=0):
    return tgt.clone().index_add_(axis, idx, src)
def _segment_sum(src, seg, n):
    out = torch.zeros((n,) + src.shape[1:], dtype=src.dtype)
    return out.index_add_(0, seg, src)
def _pad(x, pw):
    flat = tuple(v for pair in reversed(pw) for v in pair)
    return torch.nn.functional.pad(x, flat)

kernel_name = 'gather_scatter__isomorphism_gin_2__graph'

def setup_inputs():

    _w = (lambda a: (lambda t: t.to(torch.bfloat16) if t.is_floating_point() else t)(torch.as_tensor(a)))
    N, deg, D = 10000, 16, 256
    E = N * deg
    H = 2 * D
    src = (lambda lo, hi, *s: torch.randint(lo, hi, s))(0, N, E).to(torch.int64)
    dst = (lambda lo, hi, *s: torch.randint(lo, hi, s))(0, N, E).to(torch.int64)
    return {
        "x": _w((lambda *s: torch.randn(*s, dtype=torch.bfloat16) * 0.05)(N, D)),
        "src": _w(src),
        "dst": _w(dst),
        "eps": _w((lambda *s: torch.randn(*s, dtype=torch.bfloat16) * 0.05)(1) * 0.1),
        "w1": _w((lambda *s: torch.randn(*s, dtype=torch.bfloat16) * 0.05)(D, H) * D ** -0.5),
        "b1": _w((lambda *s: torch.randn(*s, dtype=torch.bfloat16) * 0.4)(H) * 0.01),
        "w2": _w((lambda *s: torch.randn(*s, dtype=torch.bfloat16) * 0.05)(H, D) * H ** -0.5),
        "b2": _w((lambda *s: torch.randn(*s, dtype=torch.bfloat16) * 0.05)(D) * 0.01),
    }

def reference(x, src, dst, eps, w1, b1, w2, b2):
    N = x.shape[0]
    agg = _segment_sum(x[src], dst, N)
    h = (1.0 + eps) * x + agg
    h = torch.einsum('nd,dh->nh', h, w1) + b1
    h = torch.where(h > 0, h, 0.0 * h)
    h = torch.einsum('nh,hd->nd', h, w2) + b2
    return h
```

```python
import sys

NAME = "gather_scatter__isomorphism_gin_2__graph"
NB = 250
R = 40
P = 80
EPP = 2000
CAP = 24
SEG = CAP * 4
TBL_BLOCK = P * SEG
NGR = NB * CAP // 4

CNT_OFF = 0
FLAG_OFF = 256
BK_OFF = 512
H_OFF = BK_OFF + 40 * 256
H_STR = 528
H1_OFF = H_OFF + 40 * H_STR
H1_STR = 1040
H1_END = H1_OFF + 40 * H1_STR
BT_OFF = H1_OFF
BC_OFF = BT_OFF + NB * SEG
LDS_BYTES = H1_END + 8 * H1_STR
assert BC_OFF + 1024 <= H1_END

OOB = 0x7F000000
STAMPS = "--stamps" in sys.argv


class Asm:
    def __init__(self):
        self.lines = []
        self.n = 0

    def __call__(self, s):
        for l in s.strip().split("\n"):
            self.lines.append("    " + l.strip())

    def label(self, l):
        self.lines.append(l + ":")

    def newlabel(self, p="L"):
        self.n += 1
        return f"{p}_{self.n}"


a = Asm()

sX, sSRC, sDST, sEPS, sW1, sB1, sW2, sB2 = 8, 10, 12, 14, 16, 18, 20, 22
sOUT, sDBG, sWS = 24, 26, 28
rX, rSRC, rDST, rW1, rW2, rOUT, rTBL = 32, 36, 40, 44, 48, 52, 56
sWAVE = 60
sSELLO, sSELHI = 61, 62
sT0, sT1, sT2, sT3 = 63, 64, 65, 66
sM0, sM1, sM2, sM3 = 68, 70, 72, 74
sRTAB, sCTAB = 76, 78
sRADDR, sRREM, sCREM, sCFIRST, sNG, sI, sNODE = 80, 81, 82, 83, 84, 85, 86
sRET = 88
sTILE = 90
sEXM = 92
sSTAMP = 94
sBASE = 96


def srd(r):
    return f"s[{r}:{r+3}]"


def sp(r):
    return f"s[{r}:{r+1}]"


def vr(r, n):
    return f"v[{r}:{r+n-1}]"


vTID, vLANE, vG, vN = 0, 1, 2, 3
vT0, vT1, vT2, vT3 = 4, 5, 6, 7
vASUM, vAFIRST, vGACC, vENT = 8, 12, 16, 20
vGOFF, vBKOFF, vHW, vG1B, vH1W, vG2B, vWOFF, vT4 = 24, 25, 26, 27, 28, 29, 30, 31
vB1, vB2 = 32, 40
vACC1, vBB = 44, 60
vRING = 76
vWSP = 124
vW = 128
NVGPR = 256

stamp_idx = [0]


def stamp():
    if not STAMPS:
        return
    i = stamp_idx[0]
    stamp_idx[0] += 1
    a(f"""s_memrealtime {sp(sSTAMP)}
    s_waitcnt lgkmcnt(0)
    v_mov_b32 v126, s{sSTAMP}
    v_mov_b32 v127, s{sWAVE}
    v_lshlrev_b32 v127, 6, v127
    s_lshl_b32 s{sSTAMP+1}, s2, 9
    v_add_u32 v127, s{sSTAMP+1}, v127
    v_add_u32 v127, 0x800000, v127
    global_store_dword v127, v126, {sp(sWS)} offset:{i*4}""")


def f0reg(q):
    return vW + (q >> 2) * 8 + (q & 3)


def f1reg(q):
    return vW + (q >> 2) * 8 + 4 + (q & 3)


def xreg(q):
    return f0reg(q + 1) if q < 63 else vWSP


a(f"""s_cmp_ge_u32 s2, {NB}
s_cbranch_scc1 L_end
s_load_dwordx16 s[8:23], s[0:1], 0
s_load_dwordx4 s[24:27], s[0:1], 64
s_load_dwordx2 s[28:29], s[0:1], 80
v_and_b32 v{vLANE}, 63, v0
v_lshrrev_b32 v{vT0}, 6, v0
v_lshrrev_b32 v{vG}, 4, v{vLANE}
v_readfirstlane_b32 s{sWAVE}, v{vT0}
v_and_b32 v{vN}, 15, v0
s_mov_b32 s{sSELLO}, 0x05040100
s_mov_b32 s{sSELHI}, 0x07060302
s_mul_i32 s{sBASE}, s2, {R}
""")
a(f"""v_mov_b32 v{vENT}, {OOB}
v_mov_b32 v{vENT+1}, {OOB}
v_mov_b32 v{vENT+2}, {OOB}
v_mov_b32 v{vENT+3}, {OOB}
v_lshlrev_b32 v{vT0}, 4, v0
ds_write_b128 v{vT0}, {vr(vENT,4)} offset:{BK_OFF}
v_cmp_gt_u32 vcc, 128, v0
s_and_saveexec_b64 {sp(sM0)}, vcc
ds_write_b128 v{vT0}, {vr(vENT,4)} offset:{BK_OFF+8192}
s_mov_b64 exec, {sp(sM0)}
""")
a(f"""v_mov_b32 v{vBB}, 0xfc000
v_mov_b32 v{vBB+1}, 0xfc000
v_mov_b32 v{vBB+2}, 0xfc000
v_mov_b32 v{vBB+3}, 0xfc000
ds_write_b128 v{vT0}, {vr(vBB,4)} offset:{BT_OFF}
ds_write_b128 v{vT0}, {vr(vBB,4)} offset:{BT_OFF+8192}
v_cmp_gt_u32 vcc, {NGR-1024}, v0
s_and_saveexec_b64 {sp(sM0)}, vcc
ds_write_b128 v{vT0}, {vr(vBB,4)} offset:{BT_OFF+16384}
s_mov_b64 exec, {sp(sM0)}
v_mov_b32 v{vT1}, 0
v_lshlrev_b32 v{vT2}, 2, v0
v_cmp_gt_u32 vcc, 256, v0
s_and_saveexec_b64 {sp(sM0)}, vcc
ds_write_b32 v{vT2}, v{vT1} offset:{BC_OFF}
s_mov_b64 exec, {sp(sM0)}
s_waitcnt lgkmcnt(0)
s_barrier
""")
a(f"""v_cmp_gt_u32 vcc, {R}, v0
s_and_saveexec_b64 {sp(sM0)}, vcc
v_add_u32 v{vT1}, s{sBASE}, v0
v_lshlrev_b32 v{vT1}, 9, v{vT1}
v_lshlrev_b32 v{vT3}, 8, v0
ds_write_b32 v{vT3}, v{vT1} offset:{BK_OFF}
v_mov_b32 v{vT1}, 1
ds_write_b32 v{vT2}, v{vT1} offset:{CNT_OFF}
v_mov_b32 v{vT1}, 0
ds_write_b32 v{vT1}, v{vT1} offset:{FLAG_OFF}
s_mov_b64 exec, {sp(sM0)}
""")


def mksrd(r, p, size):
    a(f"""s_mov_b32 s{r}, s{p}
    s_and_b32 s{r+1}, s{p+1}, 0xffff
    s_mov_b32 s{r+2}, {size}
    s_mov_b32 s{r+3}, 0x00020000""")


mksrd(rX, sX, 5120000)
mksrd(rSRC, sSRC, 640000)
mksrd(rDST, sDST, 640000)
mksrd(rW1, sW1, 262144)
mksrd(rW2, sW2, 262144)
mksrd(rOUT, sOUT, 5120000)
mksrd(rTBL, sWS, NB * TBL_BLOCK)
stamp()

vD, vS = vRING, vRING + 4
vBI, vSL = vRING + 8, vRING + 12
a(f"""s_cmp_ge_u32 s2, {P}
s_cbranch_scc1 L_noprod
s_mul_i32 s{sT0}, s2, {EPP*4}
v_cmp_gt_u32 vcc, {EPP//4}, v0
s_and_saveexec_b64 {sp(sM0)}, vcc
buffer_load_dwordx4 {vr(vD,4)}, v{vT0}, {srd(rDST)}, s{sT0} offen
buffer_load_dwordx4 {vr(vS,4)}, v{vT0}, {srd(rSRC)}, s{sT0} offen
v_mov_b32 v{vT4}, 1
s_mov_b32 s{sT1}, {R}
s_mov_b32 s{sT2}, {SEG}
s_waitcnt vmcnt(1)
""")
for i in range(4):
    a(f"""v_mul_u32_u24 v{vBI+i}, 0xcccd, v{vD+i}
    v_lshrrev_b32 v{vBI+i}, 21, v{vBI+i}
    v_lshlrev_b32 v{vT1}, 2, v{vBI+i}
    ds_add_rtn_u32 v{vSL+i}, v{vT1}, v{vT4} offset:{BC_OFF}""")
a("s_waitcnt vmcnt(0)")
for i in range(4):
    a(f"""v_mul_u32_u24 v{vT1}, {R}, v{vBI+i}
    v_sub_u32 v{vT1}, v{vD+i}, v{vT1}
    v_lshl_or_b32 v{vS+i}, v{vT1}, 14, v{vS+i}
    v_mul_u32_u24 v{vBI+i}, {SEG}, v{vBI+i}""")
a("s_waitcnt lgkmcnt(0)\ns_mov_b64 %s, exec" % sp(sM1))
for i in range(4):
    a(f"""v_lshl_add_u32 v{vT1}, v{vSL+i}, 2, v{vBI+i}
    v_cmp_gt_u32 vcc, {CAP}, v{vSL+i}
    s_and_b64 exec, {sp(sM1)}, vcc
    ds_write_b32 v{vT1}, v{vS+i} offset:{BT_OFF}
    s_mov_b64 exec, {sp(sM1)}""")
a(f"""s_mov_b64 exec, {sp(sM0)}
s_waitcnt lgkmcnt(0)
s_barrier
s_mul_i32 s{sT0}, s2, {SEG}
s_mov_b32 s{sT1}, {TBL_BLOCK - SEG}
""")
for k in range(3):
    vE = vRING + 16 + 4 * k
    vC = vRING + 32 + k
    vA = vRING + 36 + k
    a(f"""v_add_u32 v{vT1}, {512*k}, v0
    v_mul_u32_u24 v{vT2}, 10923, v{vT1}
    v_lshrrev_b32 v{vT2}, 16, v{vT2}
    v_lshlrev_b32 v{vT3}, 2, v{vT2}
    ds_read_b128 {vr(vE,4)}, v{vT0} offset:{BT_OFF+8192*k}
    ds_read_b32 v{vC}, v{vT3} offset:{BC_OFF}
    v_lshlrev_b32 v{vT1}, 4, v{vT1}
    v_mad_u32_u24 v{vA}, v{vT2}, s{sT1}, v{vT1}""")
a(f"s_waitcnt lgkmcnt(0)\nv_mov_b32 v{vT3}, 0xf8000")
for k in range(3):
    vE = vRING + 16 + 4 * k
    vC = vRING + 32 + k
    vA = vRING + 36 + k
    a(f"""v_cmp_lt_u32 vcc, {CAP}, v{vC}
    s_nop 1
    v_cndmask_b32 v{vE}, v{vE}, v{vT3}, vcc""")
    if k == 2:
        a(f"""v_cmp_gt_u32 vcc, {NGR-1024}, v0
        s_and_saveexec_b64 {sp(sM0)}, vcc""")
    a(f"buffer_store_dwordx4 {vr(vE,4)}, v{vA}, {srd(rTBL)}, s{sT0} offen sc1")
a(f"""s_mov_b64 exec, {sp(sM0)}
s_waitcnt vmcnt(0)
s_barrier
v_cmp_eq_u32 vcc, 0, v0
s_and_saveexec_b64 {sp(sM0)}, vcc
s_cbranch_execz L_nosig
v_mov_b32 v{vT1}, 0
v_mov_b32 v{vT2}, 1
global_atomic_add v{vT1}, v{vT2}, {sp(sDBG)} sc1
""")
a.label("L_nosig")
a(f"s_mov_b64 exec, {sp(sM0)}")
a.label("L_noprod")
stamp()

a(f"""v_lshrrev_b32 v{vT0}, 1, v{vG}
v_and_b32 v{vT1}, 1, v{vG}
v_lshl_add_u32 v{vT2}, v{vT1}, 4, v{vT0}
""")
a(f"""v_and_b32 v{vGOFF}, 31, v{vLANE}
v_lshlrev_b32 v{vGOFF}, 4, v{vGOFF}
v_lshrrev_b32 v{vBKOFF}, 5, v{vLANE}
v_lshlrev_b32 v{vBKOFF}, 4, v{vBKOFF}
v_lshl_add_u32 v{vHW}, v{vT0}, 4, v{vN}
v_lshlrev_b32 v{vHW}, 4, v{vHW}
v_lshl_add_u32 v{vHW}, v{vT1}, 3, v{vHW}
v_mul_u32_u24 v{vG1B}, {H_STR}, v{vN}
v_lshl_add_u32 v{vG1B}, v{vT2}, 4, v{vG1B}
v_mul_u32_u24 v{vT3}, {H1_STR}, v{vN}
v_add_u32 v{vT3}, {H1_OFF}, v{vT3}
v_lshl_add_u32 v{vG2B}, v{vT2}, 4, v{vT3}
s_lshl_b32 s{sT0}, s{sWAVE}, 7
v_lshl_add_u32 v{vH1W}, v{vG}, 4, v{vT3}
v_add_u32 v{vH1W}, s{sT0}, v{vH1W}
""")
a(f"""v_lshlrev_b32 v{vWOFF}, 13, v{vT2}
v_lshl_add_u32 v{vWOFF}, v{vN}, 2, v{vWOFF}
v_add_u32 v{vWOFF}, s{sT0}, v{vWOFF}
""")
a(f"""v_lshlrev_b32 v{vT3}, 4, v{vG}
v_add_u32 v{vT4}, s{sT0}, v{vT3}
global_load_dwordx4 {vr(vB1,4)}, v{vT4}, {sp(sB1)}
global_load_dwordx4 {vr(vB1+4,4)}, v{vT4}, {sp(sB1)} offset:64
s_lshl_b32 s{sT1}, s{sWAVE}, 6
v_add_u32 v{vT4}, s{sT1}, v{vT3}
global_load_dwordx4 {vr(vB2,4)}, v{vT4}, {sp(sB2)}
v_mov_b32 v{vT3}, 0
global_load_ushort v{vGACC}, v{vT3}, {sp(sEPS)}
""")


def load_w(which, q0, q1):
    for q in range(q0, q1):
        jj = q & 3
        if which == 1:
            ks, cg = q >> 3, (q >> 2) & 1
            if (q & 7) == 0:
                a(f"s_mov_b32 s{sT2}, {ks*16384}\ns_mov_b32 s{sT3}, {ks*16384+4096}")
            for par in range(2):
                j = 2 * jj + par
                dst = xreg(q) if par == 0 else f1reg(q)
                so = sT2 if j < 4 else sT3
                a(f"buffer_load_dword v{dst}, v{vWOFF}, {srd(rW1)}, s{so} offen offset:{(j&3)*1024+cg*64}")
        else:
            ks = q >> 2
            if (q & 3) == 0:
                a(f"s_mov_b32 s{sT2}, {(ks&7)*8192+(ks>>3)*131072}")
            for par in range(2):
                j = 2 * jj + par
                dst = xreg(q) if par == 0 else f1reg(q)
                a(f"buffer_load_dword v{dst}, v{vWOFF}, {srd(rW2)}, s{sT2} offen offset:{j*512}")


def perm_w(q0, q1):
    for q in range(q0, q1):
        a(f"""v_perm_b32 v{f0reg(q)}, v{f1reg(q)}, v{xreg(q)}, s{sSELLO}
        v_perm_b32 v{f1reg(q)}, v{f1reg(q)}, v{xreg(q)}, s{sSELHI}""")


def load_perm_all(which):
    CH = 8
    load_w(which, 0, 24)
    for c in range(0, 64, CH):
        issued = min(64, c + 24)
        a(f"s_waitcnt vmcnt({(issued - (c + CH)) * 2})")
        perm_w(c, c + CH)
        if issued < 64:
            load_w(which, issued, issued + CH)


load_perm_all(1)

a(f"""v_lshlrev_b32 v{vGACC}, 16, v{vGACC}
v_add_f32 v{vGACC}, 1.0, v{vGACC}
v_cvt_pk_bf16_f32 v{vGACC}, v{vGACC}, v{vGACC}
v_and_b32 v{vGACC}, 0xffff, v{vGACC}
v_mov_b32 v{vGACC+1}, 0x3f80
v_cmp_gt_u32 vcc, 32, v{vLANE}
s_nop 1
v_cndmask_b32 v{vGACC}, v{vGACC+1}, v{vGACC}, vcc
v_and_b32 v{vT0}, 1, v{vN}
v_lshlrev_b32 v{vT0}, 4, v{vT0}
v_lshlrev_b32 v{vGACC}, v{vT0}, v{vGACC}
v_lshlrev_b32 v{vGACC+1}, v{vT0}, v{vGACC+1}
v_and_b32 v{vT1}, 1, v{vG}
v_lshlrev_b32 v{vT1}, 2, v{vT1}
v_lshrrev_b32 v{vT0}, 1, v{vN}
v_sub_u32 v{vT0}, v{vT0}, v{vT1}
""")
for r in range(4):
    a(f"""v_cmp_eq_u32 vcc, {r}, v{vT0}
    s_nop 1
    v_cndmask_b32 v{vASUM+r}, 0, v{vGACC+1}, vcc
    v_cndmask_b32 v{vAFIRST+r}, 0, v{vGACC}, vcc""")
stamp()

a(f"""s_cmp_lg_u32 s{sWAVE}, 0
s_cbranch_scc1 L_polled
s_mov_b32 s{sT0}, 0
v_mov_b32 v{vT1}, 0
""")
a.label("L_poll")
a(f"""global_load_dword v{vT2}, v{vT1}, {sp(sDBG)} sc1
s_waitcnt vmcnt(0)
v_readfirstlane_b32 s{sT1}, v{vT2}
s_add_u32 s{sT0}, s{sT0}, 1
s_cmp_ge_u32 s{sT1}, {P}
s_cbranch_scc1 L_polled
s_sleep 1
s_cmp_lt_u32 s{sT0}, 200000
s_cbranch_scc1 L_poll
v_mov_b32 v{vT2}, 1
ds_write_b32 v{vT1}, v{vT2} offset:{FLAG_OFF}
s_waitcnt lgkmcnt(0)
""")
a.label("L_polled")
a("s_barrier")
stamp()

vE = vRING
vLD = vRING + 4
vSL = vRING + 8
vAD = vRING + 12
masks = [sM0, sM1, sM2, sM3]
a(f"""v_mov_b32 v{vE}, 0xfc000
v_mov_b32 v{vE+1}, 0xfc000
v_mov_b32 v{vE+2}, 0xfc000
v_mov_b32 v{vE+3}, 0xfc000
s_mul_i32 s{sT0}, s2, {TBL_BLOCK}
v_lshlrev_b32 v{vT0}, 4, v0
v_cmp_gt_u32 vcc, {TBL_BLOCK//16}, v0
s_and_b64 exec, exec, vcc
buffer_load_dwordx4 {vr(vE,4)}, v{vT0}, {srd(rTBL)}, s{sT0} offen sc1
s_mov_b64 exec, -1
v_mov_b32 v{vT4}, 1
s_waitcnt vmcnt(0)
""")
for i in range(4):
    a(f"""v_bfe_u32 v{vLD+i}, v{vE+i}, 14, 6
    v_cmp_gt_u32 {sp(masks[i])}, {R}, v{vLD+i}
    v_lshlrev_b32 v{vAD+i}, 2, v{vLD+i}""")
for i in range(4):
    a(f"""s_mov_b64 exec, {sp(masks[i])}
    ds_add_rtn_u32 v{vSL+i}, v{vAD+i}, v{vT4} offset:{CNT_OFF}""")
a(f"""s_mov_b64 exec, -1
v_cmp_eq_u32 vcc, 62, v{vLD}
s_mov_b64 {sp(sEXM)}, vcc
""")
for i in range(4):
    a(f"""v_and_b32 v{vE+i}, 0x3fff, v{vE+i}
    v_lshlrev_b32 v{vE+i}, 9, v{vE+i}
    v_lshlrev_b32 v{vAD+i}, 8, v{vLD+i}""")
a("s_waitcnt lgkmcnt(0)")
for i in range(4):
    a(f"""v_and_b32 v{vT0}, 0x38, v{vSL+i}
    v_lshl_add_u32 v{vAD+i}, v{vT0}, 2, v{vAD+i}
    v_and_b32 v{vT0}, 1, v{vSL+i}
    v_lshl_add_u32 v{vAD+i}, v{vT0}, 4, v{vAD+i}
    v_and_b32 v{vT0}, 6, v{vSL+i}
    v_lshl_add_u32 v{vAD+i}, v{vT0}, 1, v{vAD+i}
    v_cmp_gt_u32 vcc, 64, v{vSL+i}
    s_andn2_b64 {sp(sT0+1)}, {sp(masks[i])}, vcc
    s_or_b64 {sp(sEXM)}, {sp(sEXM)}, {sp(sT0+1)}
    s_and_b64 exec, {sp(masks[i])}, vcc
    ds_write_b32 v{vAD+i}, v{vE+i} offset:{BK_OFF}
    s_mov_b64 exec, -1""")
a(f"""s_cmp_eq_u64 {sp(sEXM)}, 0
s_cbranch_scc1 L_noovf
v_mov_b32 v{vT1}, 0
ds_write_b32 v{vT1}, v{vT4} offset:{FLAG_OFF}
""")
a.label("L_noovf")
a(f"""s_waitcnt lgkmcnt(0)
s_barrier
""")
stamp()
a(f"""v_lshlrev_b32 v{vT0}, 2, v{vLANE}
ds_read_b32 v{vT1}, v{vT0} offset:{CNT_OFF}
v_mov_b32 v{vT2}, 0
ds_read_b32 v{vT3}, v{vT2} offset:{FLAG_OFF}
s_lshl_b32 s{sT0}, s{sWAVE}, 1
s_waitcnt lgkmcnt(0)
v_min_u32 v{vT1}, 64, v{vT1}
v_add_u32 v{vT1}, 7, v{vT1}
v_lshrrev_b32 v{vT1}, 3, v{vT1}
v_lshl_or_b32 v{vT1}, v{vLANE}, 4, v{vT1}
v_readfirstlane_b32 s{sT3}, v{vT3}
s_add_u32 s{sT1}, s{sWAVE}, 32
s_mov_b32 s{sRTAB+1}, 0
v_readlane_b32 s{sRTAB}, v{vT1}, s{sT1}
s_add_u32 s{sT1}, s{sT0}, 17
s_and_b32 s{sNG}, s{sRTAB}, 15
s_lshl_b64 {sp(sRTAB)}, {sp(sRTAB)}, 12
v_readlane_b32 s{sT2}, v{vT1}, s{sT1}
s_add_u32 s{sT1}, s{sT0}, 16
s_or_b32 s{sRTAB}, s{sRTAB}, s{sT2}
s_and_b32 s{sT2}, s{sT2}, 15
s_add_u32 s{sNG}, s{sNG}, s{sT2}
s_lshl_b64 {sp(sRTAB)}, {sp(sRTAB)}, 12
v_readlane_b32 s{sT2}, v{vT1}, s{sT1}
s_add_u32 s{sT1}, s{sT0}, 1
s_or_b32 s{sRTAB}, s{sRTAB}, s{sT2}
s_and_b32 s{sT2}, s{sT2}, 15
s_add_u32 s{sNG}, s{sNG}, s{sT2}
s_lshl_b64 {sp(sRTAB)}, {sp(sRTAB)}, 12
v_readlane_b32 s{sT2}, v{vT1}, s{sT1}
s_nop 0
s_or_b32 s{sRTAB}, s{sRTAB}, s{sT2}
s_and_b32 s{sT2}, s{sT2}, 15
s_add_u32 s{sNG}, s{sNG}, s{sT2}
s_lshl_b64 {sp(sRTAB)}, {sp(sRTAB)}, 12
v_readlane_b32 s{sT2}, v{vT1}, s{sT0}
s_nop 0
s_or_b32 s{sRTAB}, s{sRTAB}, s{sT2}
s_and_b32 s{sT2}, s{sT2}, 15
s_add_u32 s{sNG}, s{sNG}, s{sT2}
s_mov_b64 {sp(sCTAB)}, {sp(sRTAB)}
s_and_b32 s{sRREM}, s{sRTAB}, 15
s_mov_b32 s{sCREM}, s{sRREM}
s_and_b32 s{sRADDR}, s{sRTAB}, 0x3f0
s_lshl_b32 s{sRADDR}, s{sRADDR}, 4
s_mov_b32 s{sCFIRST}, 1
s_mov_b32 s{sI}, 0
s_mov_b32 s{sNODE}, 0
s_cmp_lg_u32 s{sT3}, 0
s_cbranch_scc1 L_slow
""")


def read_entries(dst):
    l = a.newlabel("L_adv")
    a(f"""v_add_u32 v{vT0}, s{sRADDR}, v{vBKOFF}
    ds_read_b128 {vr(dst,4)}, v{vT0} offset:{BK_OFF}
    s_add_u32 s{sRADDR}, s{sRADDR}, 32
    s_sub_u32 s{sRREM}, s{sRREM}, 1
    s_cmp_lg_u32 s{sRREM}, 0
    s_cbranch_scc1 {l}
    s_lshr_b64 {sp(sRTAB)}, {sp(sRTAB)}, 12
    s_and_b32 s{sRREM}, s{sRTAB}, 15
    s_and_b32 s{sRADDR}, s{sRTAB}, 0x3f0
    s_lshl_b32 s{sRADDR}, s{sRADDR}, 4""")
    a.label(l)


def issue_group(ent, slot):
    for j in range(4):
        a(f"v_add_u32 v{ent+j}, v{ent+j}, v{vGOFF}")
    for j in range(4):
        a(f"buffer_load_dwordx4 {vr(vRING+slot*16+j*4,4)}, v{ent+j}, {srd(rX)}, 0 offen")


read_entries(vBB)
read_entries(vBB + 4)
read_entries(vBB + 8)
read_entries(vENT)
a("s_waitcnt lgkmcnt(0)")
issue_group(vBB, 0)
issue_group(vBB + 4, 1)
issue_group(vBB + 8, 2)

a.label("L_gloop")
for slot in range(3):
    lw1, lw0, lgo = a.newlabel("L_w1"), a.newlabel("L_w0"), a.newlabel("L_go")
    lf, lc, lni, lnf = a.newlabel("L_f"), a.newlabel("L_c"), a.newlabel("L_ni"), a.newlabel("L_nf")
    b = vRING + slot * 16
    a(f"""s_sub_u32 s{sT0}, s{sNG}, s{sI}
    s_cmp_lt_u32 s{sT0}, 3
    s_cbranch_scc1 {lw1}
    s_waitcnt vmcnt(8)
    s_branch {lgo}""")
    a.label(lw1)
    a(f"""s_cmp_lt_u32 s{sT0}, 2
    s_cbranch_scc1 {lw0}
    s_waitcnt vmcnt(4)
    s_branch {lgo}""")
    a.label(lw0)
    a("s_waitcnt vmcnt(0)")
    a.label(lgo)
    a(f"""s_cmp_lg_u32 s{sCFIRST}, 0
    s_cbranch_scc1 {lf}
    v_mfma_f32_16x16x32_bf16 {vr(vGACC,4)}, {vr(vASUM,4)}, {vr(b,4)}, {vr(vGACC,4)}
    s_branch {lc}""")
    a.label(lf)
    a(f"v_mfma_f32_16x16x32_bf16 {vr(vGACC,4)}, {vr(vAFIRST,4)}, {vr(b,4)}, 0")
    a.label(lc)
    for j in range(1, 4):
        a(f"v_mfma_f32_16x16x32_bf16 {vr(vGACC,4)}, {vr(vASUM,4)}, {vr(b+4*j,4)}, {vr(vGACC,4)}")
    a(f"""s_mov_b32 s{sCFIRST}, 0
    s_cmp_lt_u32 s{sT0}, 4
    s_cbranch_scc1 {lni}
    s_waitcnt lgkmcnt(0)""")
    issue_group(vENT, slot)
    read_entries(vENT)
    a.label(lni)
    a(f"""s_add_u32 s{sI}, s{sI}, 1
    s_sub_u32 s{sCREM}, s{sCREM}, 1
    s_cmp_lg_u32 s{sCREM}, 0
    s_cbranch_scc1 {lnf}
    s_call_b64 {sp(sRET)}, L_final
    s_cmp_eq_u32 s{sNODE}, 5
    s_cbranch_scc1 L_gdone""")
    a.label(lnf)
a("s_branch L_gloop")

a.label("L_final")
a(f"""s_and_b32 s{sT0}, s{sCTAB}, 0x3f0
s_mul_i32 s{sT0}, s{sT0}, {H_STR//16}
s_lshr_b64 {sp(sCTAB)}, {sp(sCTAB)}, 12
s_and_b32 s{sCREM}, s{sCTAB}, 15
s_mov_b32 s{sCFIRST}, 1
s_add_u32 s{sNODE}, s{sNODE}, 1
v_add_u32 v{vT0}, s{sT0}, v{vHW}
s_nop 7
v_cvt_pk_bf16_f32 v{vT2}, v{vGACC}, v{vGACC+1}
v_cvt_pk_bf16_f32 v{vT3}, v{vGACC+2}, v{vGACC+3}
ds_write_b64 v{vT0}, {vr(vT2,2)} offset:{H_OFF}
s_cmp_eq_u32 s{sNODE}, 1
s_cbranch_scc1 L_fret
s_cmp_eq_u32 s{sNODE}, 3
s_cbranch_scc1 L_fret
s_lshr_b32 s{sTILE}, s{sNODE}, 1
s_sub_u32 s{sTILE}, s{sTILE}, 1
s_cmp_eq_u32 s{sNODE}, 5
s_cselect_b32 s{sTILE}, 2, s{sTILE}
s_cselect_b32 s{sEXM}, 0x00ff00ff, -1
s_mov_b32 s{sEXM+1}, s{sEXM}
s_mul_i32 s{sT0}, s{sTILE}, {16*H_STR}
s_mul_i32 s{sT1}, s{sTILE}, {16*H1_STR}
v_add_u32 v{vT0}, s{sT0}, v{vG1B}
v_add_u32 v{vT1}, s{sT1}, v{vH1W}
""")


def acc1(cg, T):
    return vACC1 + (cg * 2 + T) * 4


for cg in range(2):
    for r in range(4):
        a(f"""v_lshlrev_b32 v{acc1(cg,0)+r}, 16, v{vB1+cg*4+r}
        v_and_b32 v{acc1(cg,1)+r}, 0xffff0000, v{vB1+cg*4+r}""")
a("s_waitcnt lgkmcnt(0)\ns_barrier")
for ks in range(4):
    a(f"ds_read_b128 {vr(vBB+ks*4,4)}, v{vT0} offset:{H_OFF+ks*32}")
for ks in range(8):
    bb = vBB + (ks & 3) * 4
    n_out = min(3, 7 - ks)
    a(f"s_waitcnt lgkmcnt({n_out})")
    for cg in range(2):
        for T in range(2):
            fr = vW + (ks * 2 + cg) * 8 + T * 4
            a(f"v_mfma_f32_16x16x32_bf16 {vr(acc1(cg,T),4)}, {vr(fr,4)}, {vr(bb,4)}, {vr(acc1(cg,T),4)}")
    if ks + 4 < 8:
        a(f"ds_read_b128 {vr(bb,4)}, v{vT0} offset:{H_OFF+(ks+4)*32}")
a(f"s_nop 7\ns_mov_b64 exec, {sp(sEXM)}")
for cg in range(2):
    for r in range(4):
        a(f"""v_cvt_pk_bf16_f32 v{vBB+cg*4+r}, v{acc1(cg,0)+r}, v{acc1(cg,1)+r}
        v_pk_max_i16 v{vBB+cg*4+r}, v{vBB+cg*4+r}, 0""")
    a(f"ds_write_b128 v{vT1}, {vr(vBB+cg*4,4)} offset:{cg*64}")
a("s_mov_b64 exec, -1")
a.label("L_fret")
a(f"s_setpc_b64 {sp(sRET)}")

a.label("L_slow")
vSA = vRING
vSD, vSS, vSB = vRING + 20, vRING + 21, vRING + 24
vHOFF = vRING + 22
a(f"""v_mov_b32 v{vT0}, {OOB}
v_cmp_gt_u32 vcc, 32, v{vLANE}
s_nop 1
v_cndmask_b32 v{vHOFF}, v{vT0}, v{vGOFF}, vcc
s_mov_b64 {sp(sRTAB)}, {sp(sCTAB)}
""")
for n in range(5):
    a(f"""s_bfe_u32 s{sT0}, s{sRTAB}, 0x60004
    s_add_u32 s{sT0}, s{sT0}, s{sBASE}
    s_lshl_b32 s{sT0}, s{sT0}, 9
    buffer_load_dwordx4 {vr(vSB,4)}, v{vHOFF}, {srd(rX)}, s{sT0} offen
    s_lshr_b64 {sp(sRTAB)}, {sp(sRTAB)}, 12
    s_waitcnt vmcnt(0)
    v_mfma_f32_16x16x32_bf16 {vr(vSA+4*n,4)}, {vr(vAFIRST,4)}, {vr(vSB,4)}, 0
    s_nop 7""")
a(f"""s_mov_b32 s{sI}, 0
v_lshlrev_b32 v{vT1}, 2, v{vLANE}
""")
a.label("L_sloop")
a(f"""buffer_load_dword v{vSD}, v{vT1}, {srd(rDST)}, s{sI} offen
buffer_load_dword v{vSS}, v{vT1}, {srd(rSRC)}, s{sI} offen
s_mov_b64 {sp(sRTAB)}, {sp(sCTAB)}
s_waitcnt vmcnt(0)
v_lshlrev_b32 v{vSS}, 9, v{vSS}
""")
for n in range(5):
    l0, l1 = a.newlabel("L_s"), a.newlabel("L_s")
    a(f"""s_bfe_u32 s{sT0}, s{sRTAB}, 0x60004
    s_add_u32 s{sT0}, s{sT0}, s{sBASE}
    s_lshr_b64 {sp(sRTAB)}, {sp(sRTAB)}, 12
    v_cmp_eq_u32 {sp(sM0)}, s{sT0}, v{vSD}""")
    a.label(l0)
    a(f"""s_nop 3
    s_cmp_eq_u64 {sp(sM0)}, 0
    s_cbranch_scc1 {l1}
    s_ff1_i32_b64 s{sT1}, {sp(sM0)}
    s_bitset0_b64 {sp(sM0)}, s{sT1}
    v_readlane_b32 s{sT2}, v{vSS}, s{sT1}
    s_nop 4
    buffer_load_dwordx4 {vr(vSB,4)}, v{vHOFF}, {srd(rX)}, s{sT2} offen
    s_waitcnt vmcnt(0)
    v_mfma_f32_16x16x32_bf16 {vr(vSA+4*n,4)}, {vr(vASUM,4)}, {vr(vSB,4)}, {vr(vSA+4*n,4)}
    s_nop 7
    s_branch {l0}""")
    a.label(l1)
a(f"""s_add_u32 s{sI}, s{sI}, 256
s_cmp_lt_u32 s{sI}, 640000
s_cbranch_scc1 L_sloop
s_nop 7
""")
for n in range(5):
    for r in range(4):
        a(f"v_mov_b32 v{vGACC+r}, v{vSA+4*n+r}")
    a(f"s_call_b64 {sp(sRET)}, L_final")

a.label("L_gdone")
stamp()
a(f"""v_lshrrev_b32 v{vT0}, 1, v{vG}
v_and_b32 v{vT1}, 1, v{vG}
v_lshl_add_u32 v{vT2}, v{vT1}, 4, v{vT0}
v_lshlrev_b32 v{vWOFF}, 12, v{vT2}
v_lshl_add_u32 v{vWOFF}, v{vN}, 2, v{vWOFF}
s_lshl_b32 s{sT1}, s{sWAVE}, 6
v_add_u32 v{vWOFF}, s{sT1}, v{vWOFF}
""")
load_perm_all(2)
vACC2 = vRING
vB2B = vRING + 24


def acc2(t, T):
    return vACC2 + (t * 2 + T) * 4


for t in range(3):
    for r in range(4):
        a(f"""v_lshlrev_b32 v{acc2(t,0)+r}, 16, v{vB2+r}
        v_and_b32 v{acc2(t,1)+r}, 0xffff0000, v{vB2+r}""")
a("s_waitcnt lgkmcnt(0)\ns_barrier")
stamp()


def rd2(ks):
    for t in range(3):
        a(f"ds_read_b128 {vr(vB2B+(ks&1)*12+t*4,4)}, v{vG2B} offset:{t*16*H1_STR+(ks&7)*32+(ks>>3)*512}")


rd2(0)
rd2(1)
for ks in range(16):
    a(f"s_waitcnt lgkmcnt({3 if ks < 15 else 0})")
    for t in range(3):
        for T in range(2):
            fr = vW + ks * 8 + T * 4
            a(f"v_mfma_f32_16x16x32_bf16 {vr(acc2(t,T),4)}, {vr(fr,4)}, {vr(vB2B+(ks&1)*12+t*4,4)}, {vr(acc2(t,T),4)}")
    if ks + 2 < 16:
        rd2(ks + 2)
a(f"""v_add_u32 v{vT0}, s{sBASE}, v{vN}
v_lshlrev_b32 v{vT0}, 9, v{vT0}
v_lshl_add_u32 v{vT0}, v{vG}, 4, v{vT0}
v_add_u32 v{vT0}, s{sT1}, v{vT0}
s_mov_b32 s{sT2}, 8192
s_mov_b32 s{sT3}, 16384
s_nop 4
""")
for t in range(3):
    for r in range(4):
        a(f"v_cvt_pk_bf16_f32 v{vBB+t*4+r}, v{acc2(t,0)+r}, v{acc2(t,1)+r}")
    if t == 2:
        a("s_mov_b32 exec_lo, 0x00ff00ff\ns_mov_b32 exec_hi, 0x00ff00ff")
    so = ["0", f"s{sT2}", f"s{sT3}"][t]
    a(f"buffer_store_dwordx4 {vr(vBB+t*4,4)}, v{vT0}, {srd(rOUT)}, {so} offen")
a("s_mov_b64 exec, -1")
stamp()
a.label("L_end")
a("s_endpgm")

hdr = open("cdna_kernels/%s.s.ref" % NAME).read().split("; Override launch")[0]
out = hdr + f"""; @launch grid=({NB},1,1) block=(512,1,1) lds={LDS_BYTES}
.amdgcn_target "amdgcn-amd-amdhsa--gfx950"
.text
.globl {NAME}_kernel
.p2align 8
.type {NAME}_kernel,@function
{NAME}_kernel:
""" + "\n".join(a.lines) + f"""
.section .rodata,"a"
.p2align 6
.amdhsa_kernel {NAME}_kernel
  .amdhsa_next_free_vgpr {NVGPR}
  .amdhsa_next_free_sgpr 102
  .amdhsa_accum_offset {NVGPR}
  .amdhsa_group_segment_fixed_size 0
  .amdhsa_kernarg_size 88
  .amdhsa_user_sgpr_count 2
  .amdhsa_user_sgpr_kernarg_segment_ptr 1
  .amdhsa_system_sgpr_workgroup_id_x 1
.end_amdhsa_kernel
"""
dst = [x for x in sys.argv[1:] if not x.startswith("--")]
open(dst[0] if dst else f"cdna_kernels/{NAME}.s", "w").write(out)
```

```python
import sys

NAME = "gather_scatter__isomorphism_gin_2__graph"
NB = 250
R = 40
P = 80
EPP = 2000
CAP = 24
SEG = CAP * 4
TBL_BLOCK = P * SEG
NGR = NB * CAP // 4

CNT_OFF = 0
FLAG_OFF = 256
BK_OFF = 512
H_OFF = BK_OFF + 40 * 256
H_STR = 528
H1_OFF = H_OFF + 40 * H_STR
H1_STR = 1040
H1_END = H1_OFF + 40 * H1_STR
BT_OFF = H1_OFF
BC_OFF = BT_OFF + NB * SEG
LDS_BYTES = H1_END + 8 * H1_STR
assert BC_OFF + 1024 <= H1_END

OOB = 0x7F000000
STAMPS = "--stamps" in sys.argv


class Asm:
    def __init__(self):
        self.lines = []
        self.n = 0

    def __call__(self, s):
        for l in s.strip().split("\n"):
            self.lines.append("    " + l.strip())

    def label(self, l):
        self.lines.append(l + ":")

    def newlabel(self, p="L"):
        self.n += 1
        return f"{p}_{self.n}"


a = Asm()

sX, sSRC, sDST, sEPS, sW1, sB1, sW2, sB2 = 8, 10, 12, 14, 16, 18, 20, 22
sOUT, sDBG, sWS = 24, 26, 28
rX, rSRC, rDST, rW1, rW2, rOUT, rTBL = 32, 36, 40, 44, 48, 52, 56
sWAVE = 60
sSELLO, sSELHI = 61, 62
sT0, sT1, sT2, sT3 = 63, 64, 65, 66
sM0, sM1, sM2, sM3 = 68, 70, 72, 74
sRTAB, sCTAB = 76, 78
sRADDR, sRREM, sCREM, sCFIRST, sNG, sI, sNODE = 80, 81, 82, 83, 84, 85, 86
sRET = 88
sTILE = 90
sEXM = 92
sSTAMP = 94
sBASE = 96


def srd(r):
    return f"s[{r}:{r+3}]"


def sp(r):
    return f"s[{r}:{r+1}]"


def vr(r, n):
    return f"v[{r}:{r+n-1}]"


vTID, vLANE, vG, vN = 0, 1, 2, 3
vT0, vT1, vT2, vT3 = 4, 5, 6, 7
vASUM, vAFIRST, vGACC, vENT = 8, 12, 16, 20
vGOFF, vBKOFF, vHW, vG1B, vH1W, vG2B, vWOFF, vT4 = 24, 25, 26, 27, 28, 29, 30, 31
vB1, vB2 = 32, 40
vACC1, vBB = 44, 60
vRING = 76
vWSP = 124
vW = 128
NVGPR = 256

stamp_idx = [0]


def stamp():
    if not STAMPS:
        return
    i = stamp_idx[0]
    stamp_idx[0] += 1
    a(f"""s_memrealtime {sp(sSTAMP)}
    s_waitcnt lgkmcnt(0)
    v_mov_b32 v126, s{sSTAMP}
    v_mov_b32 v127, s{sWAVE}
    v_lshlrev_b32 v127, 6, v127
    s_lshl_b32 s{sSTAMP+1}, s2, 9
    v_add_u32 v127, s{sSTAMP+1}, v127
    v_add_u32 v127, 0x800000, v127
    global_store_dword v127, v126, {sp(sWS)} offset:{i*4}""")


def f0reg(q):
    return vW + (q >> 2) * 8 + (q & 3)


def f1reg(q):
    return vW + (q >> 2) * 8 + 4 + (q & 3)


def xreg(q):
    return f0reg(q + 1) if q < 63 else vWSP


a(f"""s_cmp_ge_u32 s2, {NB}
s_cbranch_scc1 L_end
s_load_dwordx16 s[8:23], s[0:1], 0
s_load_dwordx4 s[24:27], s[0:1], 64
s_load_dwordx2 s[28:29], s[0:1], 80
v_and_b32 v{vLANE}, 63, v0
v_lshrrev_b32 v{vT0}, 6, v0
v_lshrrev_b32 v{vG}, 4, v{vLANE}
v_readfirstlane_b32 s{sWAVE}, v{vT0}
v_and_b32 v{vN}, 15, v0
s_mov_b32 s{sSELLO}, 0x05040100
s_mov_b32 s{sSELHI}, 0x07060302
s_mul_i32 s{sBASE}, s2, {R}
""")
a(f"""v_mov_b32 v{vENT}, {OOB}
v_mov_b32 v{vENT+1}, {OOB}
v_mov_b32 v{vENT+2}, {OOB}
v_mov_b32 v{vENT+3}, {OOB}
v_lshlrev_b32 v{vT0}, 4, v0
ds_write_b128 v{vT0}, {vr(vENT,4)} offset:{BK_OFF}
v_cmp_gt_u32 vcc, 128, v0
s_and_saveexec_b64 {sp(sM0)}, vcc
ds_write_b128 v{vT0}, {vr(vENT,4)} offset:{BK_OFF+8192}
s_mov_b64 exec, {sp(sM0)}
""")
a(f"""v_mov_b32 v{vBB}, 0xfc000
v_mov_b32 v{vBB+1}, 0xfc000
v_mov_b32 v{vBB+2}, 0xfc000
v_mov_b32 v{vBB+3}, 0xfc000
ds_write_b128 v{vT0}, {vr(vBB,4)} offset:{BT_OFF}
ds_write_b128 v{vT0}, {vr(vBB,4)} offset:{BT_OFF+8192}
v_cmp_gt_u32 vcc, {NGR-1024}, v0
s_and_saveexec_b64 {sp(sM0)}, vcc
ds_write_b128 v{vT0}, {vr(vBB,4)} offset:{BT_OFF+16384}
s_mov_b64 exec, {sp(sM0)}
v_mov_b32 v{vT1}, 0
v_lshlrev_b32 v{vT2}, 2, v0
v_cmp_gt_u32 vcc, 256, v0
s_and_saveexec_b64 {sp(sM0)}, vcc
ds_write_b32 v{vT2}, v{vT1} offset:{BC_OFF}
s_mov_b64 exec, {sp(sM0)}
s_waitcnt lgkmcnt(0)
s_barrier
""")
a(f"""v_cmp_gt_u32 vcc, {R}, v0
s_and_saveexec_b64 {sp(sM0)}, vcc
v_add_u32 v{vT1}, s{sBASE}, v0
v_lshlrev_b32 v{vT1}, 9, v{vT1}
v_lshlrev_b32 v{vT3}, 8, v0
ds_write_b32 v{vT3}, v{vT1} offset:{BK_OFF}
v_mov_b32 v{vT1}, 1
ds_write_b32 v{vT2}, v{vT1} offset:{CNT_OFF}
v_mov_b32 v{vT1}, 0
ds_write_b32 v{vT1}, v{vT1} offset:{FLAG_OFF}
s_mov_b64 exec, {sp(sM0)}
""")


def mksrd(r, p, size):
    a(f"""s_mov_b32 s{r}, s{p}
    s_and_b32 s{r+1}, s{p+1}, 0xffff
    s_mov_b32 s{r+2}, {size}
    s_mov_b32 s{r+3}, 0x00020000""")


mksrd(rX, sX, 5120000)
mksrd(rSRC, sSRC, 640000)
mksrd(rDST, sDST, 640000)
mksrd(rW1, sW1, 262144)
mksrd(rW2, sW2, 262144)
mksrd(rOUT, sOUT, 5120000)
mksrd(rTBL, sWS, NB * TBL_BLOCK)
stamp()
if "--dbgspan" in sys.argv:
    a(f"""s_memrealtime {sp(sSTAMP)}
    s_waitcnt lgkmcnt(0)
    s_not_b32 s{sSTAMP}, s{sSTAMP}
    v_mov_b32 v126, s{sSTAMP}
    v_mov_b32 v127, 0
    s_mov_b64 exec, 1
    global_atomic_umax v127, v126, {sp(sDBG)} offset:12 sc1
    s_mov_b64 exec, -1""")

vD, vS = vRING, vRING + 4
vBI, vSL = vRING + 8, vRING + 12
a(f"""s_cmp_ge_u32 s2, {P}
s_cbranch_scc1 L_noprod
s_mul_i32 s{sT0}, s2, {EPP*4}
v_cmp_gt_u32 vcc, {EPP//4}, v0
s_and_saveexec_b64 {sp(sM0)}, vcc
buffer_load_dwordx4 {vr(vD,4)}, v{vT0}, {srd(rDST)}, s{sT0} offen
buffer_load_dwordx4 {vr(vS,4)}, v{vT0}, {srd(rSRC)}, s{sT0} offen
v_mov_b32 v{vT4}, 1
s_mov_b32 s{sT1}, {R}
s_mov_b32 s{sT2}, {SEG}
s_waitcnt vmcnt(1)
""")
for i in range(4):
    a(f"""v_mul_u32_u24 v{vBI+i}, 0xcccd, v{vD+i}
    v_lshrrev_b32 v{vBI+i}, 21, v{vBI+i}
    v_lshlrev_b32 v{vT1}, 2, v{vBI+i}
    ds_add_rtn_u32 v{vSL+i}, v{vT1}, v{vT4} offset:{BC_OFF}""")
a("s_waitcnt vmcnt(0)")
for i in range(4):
    a(f"""v_mul_u32_u24 v{vT1}, {R}, v{vBI+i}
    v_sub_u32 v{vT1}, v{vD+i}, v{vT1}
    v_lshl_or_b32 v{vS+i}, v{vT1}, 14, v{vS+i}
    v_mul_u32_u24 v{vBI+i}, {SEG}, v{vBI+i}""")
a("s_waitcnt lgkmcnt(0)\ns_mov_b64 %s, exec" % sp(sM1))
for i in range(4):
    a(f"""v_lshl_add_u32 v{vT1}, v{vSL+i}, 2, v{vBI+i}
    v_cmp_gt_u32 vcc, {CAP}, v{vSL+i}
    s_and_b64 exec, {sp(sM1)}, vcc
    ds_write_b32 v{vT1}, v{vS+i} offset:{BT_OFF}
    s_mov_b64 exec, {sp(sM1)}""")
a(f"""s_mov_b64 exec, {sp(sM0)}
s_waitcnt lgkmcnt(0)
s_barrier
s_mul_i32 s{sT0}, s2, {SEG}
s_mov_b32 s{sT1}, {TBL_BLOCK - SEG}
""")
for k in range(3):
    vE = vRING + 16 + 4 * k
    vC = vRING + 32 + k
    vA = vRING + 36 + k
    a(f"""v_add_u32 v{vT1}, {512*k}, v0
    v_mul_u32_u24 v{vT2}, 10923, v{vT1}
    v_lshrrev_b32 v{vT2}, 16, v{vT2}
    v_lshlrev_b32 v{vT3}, 2, v{vT2}
    ds_read_b128 {vr(vE,4)}, v{vT0} offset:{BT_OFF+8192*k}
    ds_read_b32 v{vC}, v{vT3} offset:{BC_OFF}
    v_lshlrev_b32 v{vT1}, 4, v{vT1}
    v_mad_u32_u24 v{vA}, v{vT2}, s{sT1}, v{vT1}""")
a(f"s_waitcnt lgkmcnt(0)\nv_mov_b32 v{vT3}, 0xf8000")
for k in range(3):
    vE = vRING + 16 + 4 * k
    vC = vRING + 32 + k
    vA = vRING + 36 + k
    a(f"""v_cmp_lt_u32 vcc, {CAP}, v{vC}
    s_nop 1
    v_cndmask_b32 v{vE}, v{vE}, v{vT3}, vcc""")
    if k == 2:
        a(f"""v_cmp_gt_u32 vcc, {NGR-1024}, v0
        s_and_saveexec_b64 {sp(sM0)}, vcc""")
    a(f"buffer_store_dwordx4 {vr(vE,4)}, v{vA}, {srd(rTBL)}, s{sT0} offen sc1")
a(f"""s_mov_b64 exec, {sp(sM0)}
s_waitcnt vmcnt(0)
s_barrier
v_cmp_eq_u32 vcc, 0, v0
s_and_saveexec_b64 {sp(sM0)}, vcc
s_cbranch_execz L_nosig
v_mov_b32 v{vT1}, 0
v_mov_b32 v{vT2}, 1
global_atomic_add v{vT1}, v{vT2}, {sp(sDBG)} sc1
""")
a.label("L_nosig")
a(f"s_mov_b64 exec, {sp(sM0)}")
a.label("L_noprod")
stamp()

a(f"""v_lshrrev_b32 v{vT0}, 1, v{vG}
v_and_b32 v{vT1}, 1, v{vG}
v_lshl_add_u32 v{vT2}, v{vT1}, 4, v{vT0}
""")
a(f"""v_and_b32 v{vGOFF}, 31, v{vLANE}
v_lshlrev_b32 v{vGOFF}, 4, v{vGOFF}
v_lshrrev_b32 v{vBKOFF}, 5, v{vLANE}
v_lshlrev_b32 v{vBKOFF}, 4, v{vBKOFF}
v_lshl_add_u32 v{vHW}, v{vT0}, 4, v{vN}
v_lshlrev_b32 v{vHW}, 4, v{vHW}
v_lshl_add_u32 v{vHW}, v{vT1}, 3, v{vHW}
v_mul_u32_u24 v{vG1B}, {H_STR}, v{vN}
v_lshl_add_u32 v{vG1B}, v{vT2}, 4, v{vG1B}
v_mul_u32_u24 v{vT3}, {H1_STR}, v{vN}
v_add_u32 v{vT3}, {H1_OFF}, v{vT3}
v_lshl_add_u32 v{vG2B}, v{vT2}, 4, v{vT3}
s_lshl_b32 s{sT0}, s{sWAVE}, 7
v_lshl_add_u32 v{vH1W}, v{vG}, 4, v{vT3}
v_add_u32 v{vH1W}, s{sT0}, v{vH1W}
""")
a(f"""v_lshlrev_b32 v{vWOFF}, 13, v{vT2}
v_lshl_add_u32 v{vWOFF}, v{vN}, 2, v{vWOFF}
v_add_u32 v{vWOFF}, s{sT0}, v{vWOFF}
""")
a(f"""v_lshlrev_b32 v{vT3}, 4, v{vG}
v_add_u32 v{vT4}, s{sT0}, v{vT3}
global_load_dwordx4 {vr(vB1,4)}, v{vT4}, {sp(sB1)}
global_load_dwordx4 {vr(vB1+4,4)}, v{vT4}, {sp(sB1)} offset:64
s_lshl_b32 s{sT1}, s{sWAVE}, 6
v_add_u32 v{vT4}, s{sT1}, v{vT3}
global_load_dwordx4 {vr(vB2,4)}, v{vT4}, {sp(sB2)}
v_mov_b32 v{vT3}, 0
global_load_ushort v{vGACC}, v{vT3}, {sp(sEPS)}
""")


def load_w(which, q0, q1):
    for q in range(q0, q1):
        jj = q & 3
        if which == 1:
            ks, cg = q >> 3, (q >> 2) & 1
            if (q & 7) == 0:
                a(f"s_mov_b32 s{sT2}, {ks*16384}\ns_mov_b32 s{sT3}, {ks*16384+4096}")
            for par in range(2):
                j = 2 * jj + par
                dst = xreg(q) if par == 0 else f1reg(q)
                so = sT2 if j < 4 else sT3
                a(f"buffer_load_dword v{dst}, v{vWOFF}, {srd(rW1)}, s{so} offen offset:{(j&3)*1024+cg*64}")
        else:
            ks = q >> 2
            if (q & 3) == 0:
                a(f"s_mov_b32 s{sT2}, {(ks&7)*8192+(ks>>3)*131072}")
            for par in range(2):
                j = 2 * jj + par
                dst = xreg(q) if par == 0 else f1reg(q)
                a(f"buffer_load_dword v{dst}, v{vWOFF}, {srd(rW2)}, s{sT2} offen offset:{j*512}")


def perm_w(q0, q1):
    for q in range(q0, q1):
        a(f"""v_perm_b32 v{f0reg(q)}, v{f1reg(q)}, v{xreg(q)}, s{sSELLO}
        v_perm_b32 v{f1reg(q)}, v{f1reg(q)}, v{xreg(q)}, s{sSELHI}""")


def load_perm_all(which):
    CH = 8
    load_w(which, 0, 24)
    for c in range(0, 64, CH):
        issued = min(64, c + 24)
        a(f"s_waitcnt vmcnt({(issued - (c + CH)) * 2})")
        perm_w(c, c + CH)
        if issued < 64:
            load_w(which, issued, issued + CH)


load_perm_all(1)

a(f"""v_lshlrev_b32 v{vGACC}, 16, v{vGACC}
v_add_f32 v{vGACC}, 1.0, v{vGACC}
v_cvt_pk_bf16_f32 v{vGACC}, v{vGACC}, v{vGACC}
v_and_b32 v{vGACC}, 0xffff, v{vGACC}
v_mov_b32 v{vGACC+1}, 0x3f80
v_cmp_gt_u32 vcc, 32, v{vLANE}
s_nop 1
v_cndmask_b32 v{vGACC}, v{vGACC+1}, v{vGACC}, vcc
v_and_b32 v{vT0}, 1, v{vN}
v_lshlrev_b32 v{vT0}, 4, v{vT0}
v_lshlrev_b32 v{vGACC}, v{vT0}, v{vGACC}
v_lshlrev_b32 v{vGACC+1}, v{vT0}, v{vGACC+1}
v_and_b32 v{vT1}, 1, v{vG}
v_lshlrev_b32 v{vT1}, 2, v{vT1}
v_lshrrev_b32 v{vT0}, 1, v{vN}
v_sub_u32 v{vT0}, v{vT0}, v{vT1}
""")
for r in range(4):
    a(f"""v_cmp_eq_u32 vcc, {r}, v{vT0}
    s_nop 1
    v_cndmask_b32 v{vASUM+r}, 0, v{vGACC+1}, vcc
    v_cndmask_b32 v{vAFIRST+r}, 0, v{vGACC}, vcc""")
stamp()

a(f"""s_cmp_lg_u32 s{sWAVE}, 0
s_cbranch_scc1 L_polled
s_mov_b32 s{sT0}, 0
v_mov_b32 v{vT1}, 0
""")
a.label("L_poll")
a(f"""global_load_dword v{vT2}, v{vT1}, {sp(sDBG)} sc1
s_waitcnt vmcnt(0)
v_readfirstlane_b32 s{sT1}, v{vT2}
s_add_u32 s{sT0}, s{sT0}, 1
s_cmp_ge_u32 s{sT1}, {P}
s_cbranch_scc1 L_polled
s_sleep 1
s_cmp_lt_u32 s{sT0}, 200000
s_cbranch_scc1 L_poll
v_mov_b32 v{vT2}, 1
ds_write_b32 v{vT1}, v{vT2} offset:{FLAG_OFF}
s_waitcnt lgkmcnt(0)
""")
a.label("L_polled")
a("s_barrier")
stamp()

vE = vRING
vLD = vRING + 4
vSL = vRING + 8
vAD = vRING + 12
masks = [sM0, sM1, sM2, sM3]
a(f"""v_mov_b32 v{vE}, 0xfc000
v_mov_b32 v{vE+1}, 0xfc000
v_mov_b32 v{vE+2}, 0xfc000
v_mov_b32 v{vE+3}, 0xfc000
s_mul_i32 s{sT0}, s2, {TBL_BLOCK}
v_lshlrev_b32 v{vT0}, 4, v0
v_cmp_gt_u32 vcc, {TBL_BLOCK//16}, v0
s_and_b64 exec, exec, vcc
buffer_load_dwordx4 {vr(vE,4)}, v{vT0}, {srd(rTBL)}, s{sT0} offen sc1
s_mov_b64 exec, -1
v_mov_b32 v{vT4}, 1
s_waitcnt vmcnt(0)
""")
for i in range(4):
    a(f"""v_bfe_u32 v{vLD+i}, v{vE+i}, 14, 6
    v_cmp_gt_u32 {sp(masks[i])}, {R}, v{vLD+i}
    v_lshlrev_b32 v{vAD+i}, 2, v{vLD+i}""")
for i in range(4):
    a(f"""s_mov_b64 exec, {sp(masks[i])}
    ds_add_rtn_u32 v{vSL+i}, v{vAD+i}, v{vT4} offset:{CNT_OFF}""")
a(f"""s_mov_b64 exec, -1
v_cmp_eq_u32 vcc, 62, v{vLD}
s_mov_b64 {sp(sEXM)}, vcc
""")
for i in range(4):
    a(f"""v_and_b32 v{vE+i}, 0x3fff, v{vE+i}
    v_lshlrev_b32 v{vE+i}, 9, v{vE+i}
    v_lshlrev_b32 v{vAD+i}, 8, v{vLD+i}""")
a("s_waitcnt lgkmcnt(0)")
for i in range(4):
    a(f"""v_and_b32 v{vT0}, 0x38, v{vSL+i}
    v_lshl_add_u32 v{vAD+i}, v{vT0}, 2, v{vAD+i}
    v_and_b32 v{vT0}, 1, v{vSL+i}
    v_lshl_add_u32 v{vAD+i}, v{vT0}, 4, v{vAD+i}
    v_and_b32 v{vT0}, 6, v{vSL+i}
    v_lshl_add_u32 v{vAD+i}, v{vT0}, 1, v{vAD+i}
    v_cmp_gt_u32 vcc, 64, v{vSL+i}
    s_andn2_b64 {sp(sT0+1)}, {sp(masks[i])}, vcc
    s_or_b64 {sp(sEXM)}, {sp(sEXM)}, {sp(sT0+1)}
    s_and_b64 exec, {sp(masks[i])}, vcc
    ds_write_b32 v{vAD+i}, v{vE+i} offset:{BK_OFF}
    s_mov_b64 exec, -1""")
a(f"""s_cmp_eq_u64 {sp(sEXM)}, 0
s_cbranch_scc1 L_noovf
v_mov_b32 v{vT1}, 0
ds_write_b32 v{vT1}, v{vT4} offset:{FLAG_OFF}
""")
a.label("L_noovf")
a(f"""s_waitcnt lgkmcnt(0)
s_barrier
""")
stamp()
a(f"""v_lshlrev_b32 v{vT0}, 2, v{vLANE}
ds_read_b32 v{vT1}, v{vT0} offset:{CNT_OFF}
v_mov_b32 v{vT2}, 0
ds_read_b32 v{vT3}, v{vT2} offset:{FLAG_OFF}
s_lshl_b32 s{sT0}, s{sWAVE}, 1
s_waitcnt lgkmcnt(0)
v_min_u32 v{vT1}, 64, v{vT1}
v_add_u32 v{vT1}, 7, v{vT1}
v_lshrrev_b32 v{vT1}, 3, v{vT1}
v_lshl_or_b32 v{vT1}, v{vLANE}, 4, v{vT1}
v_readfirstlane_b32 s{sT3}, v{vT3}
s_add_u32 s{sT1}, s{sWAVE}, 32
s_mov_b32 s{sRTAB+1}, 0
v_readlane_b32 s{sRTAB}, v{vT1}, s{sT1}
s_add_u32 s{sT1}, s{sT0}, 17
s_and_b32 s{sNG}, s{sRTAB}, 15
s_lshl_b64 {sp(sRTAB)}, {sp(sRTAB)}, 12
v_readlane_b32 s{sT2}, v{vT1}, s{sT1}
s_add_u32 s{sT1}, s{sT0}, 16
s_or_b32 s{sRTAB}, s{sRTAB}, s{sT2}
s_and_b32 s{sT2}, s{sT2}, 15
s_add_u32 s{sNG}, s{sNG}, s{sT2}
s_lshl_b64 {sp(sRTAB)}, {sp(sRTAB)}, 12
v_readlane_b32 s{sT2}, v{vT1}, s{sT1}
s_add_u32 s{sT1}, s{sT0}, 1
s_or_b32 s{sRTAB}, s{sRTAB}, s{sT2}
s_and_b32 s{sT2}, s{sT2}, 15
s_add_u32 s{sNG}, s{sNG}, s{sT2}
s_lshl_b64 {sp(sRTAB)}, {sp(sRTAB)}, 12
v_readlane_b32 s{sT2}, v{vT1}, s{sT1}
s_nop 0
s_or_b32 s{sRTAB}, s{sRTAB}, s{sT2}
s_and_b32 s{sT2}, s{sT2}, 15
s_add_u32 s{sNG}, s{sNG}, s{sT2}
s_lshl_b64 {sp(sRTAB)}, {sp(sRTAB)}, 12
v_readlane_b32 s{sT2}, v{vT1}, s{sT0}
s_nop 0
s_or_b32 s{sRTAB}, s{sRTAB}, s{sT2}
s_and_b32 s{sT2}, s{sT2}, 15
s_add_u32 s{sNG}, s{sNG}, s{sT2}
s_mov_b64 {sp(sCTAB)}, {sp(sRTAB)}
s_and_b32 s{sRREM}, s{sRTAB}, 15
s_mov_b32 s{sCREM}, s{sRREM}
s_and_b32 s{sRADDR}, s{sRTAB}, 0x3f0
s_lshl_b32 s{sRADDR}, s{sRADDR}, 4
s_mov_b32 s{sCFIRST}, 1
s_mov_b32 s{sI}, 0
s_mov_b32 s{sNODE}, 0
s_cmp_lg_u32 s{sT3}, 0
s_cbranch_scc1 L_slow
""")


def read_entries(dst):
    l = a.newlabel("L_adv")
    a(f"""v_add_u32 v{vT0}, s{sRADDR}, v{vBKOFF}
    ds_read_b128 {vr(dst,4)}, v{vT0} offset:{BK_OFF}
    s_add_u32 s{sRADDR}, s{sRADDR}, 32
    s_sub_u32 s{sRREM}, s{sRREM}, 1
    s_cmp_lg_u32 s{sRREM}, 0
    s_cbranch_scc1 {l}
    s_lshr_b64 {sp(sRTAB)}, {sp(sRTAB)}, 12
    s_and_b32 s{sRREM}, s{sRTAB}, 15
    s_and_b32 s{sRADDR}, s{sRTAB}, 0x3f0
    s_lshl_b32 s{sRADDR}, s{sRADDR}, 4""")
    a.label(l)


def issue_group(ent, slot):
    for j in range(4):
        a(f"v_add_u32 v{ent+j}, v{ent+j}, v{vGOFF}")
    for j in range(4):
        a(f"buffer_load_dwordx4 {vr(vRING+slot*16+j*4,4)}, v{ent+j}, {srd(rX)}, 0 offen")


read_entries(vBB)
read_entries(vBB + 4)
read_entries(vBB + 8)
read_entries(vENT)
a("s_waitcnt lgkmcnt(0)")
issue_group(vBB, 0)
issue_group(vBB + 4, 1)
issue_group(vBB + 8, 2)

a.label("L_gloop")
for slot in range(3):
    lw1, lw0, lgo = a.newlabel("L_w1"), a.newlabel("L_w0"), a.newlabel("L_go")
    lf, lc, lni, lnf = a.newlabel("L_f"), a.newlabel("L_c"), a.newlabel("L_ni"), a.newlabel("L_nf")
    b = vRING + slot * 16
    a(f"""s_sub_u32 s{sT0}, s{sNG}, s{sI}
    s_cmp_lt_u32 s{sT0}, 3
    s_cbranch_scc1 {lw1}
    s_waitcnt vmcnt(8)
    s_branch {lgo}""")
    a.label(lw1)
    a(f"""s_cmp_lt_u32 s{sT0}, 2
    s_cbranch_scc1 {lw0}
    s_waitcnt vmcnt(4)
    s_branch {lgo}""")
    a.label(lw0)
    a("s_waitcnt vmcnt(0)")
    a.label(lgo)
    a(f"""s_cmp_lg_u32 s{sCFIRST}, 0
    s_cbranch_scc1 {lf}
    v_mfma_f32_16x16x32_bf16 {vr(vGACC,4)}, {vr(vASUM,4)}, {vr(b,4)}, {vr(vGACC,4)}
    s_branch {lc}""")
    a.label(lf)
    a(f"v_mfma_f32_16x16x32_bf16 {vr(vGACC,4)}, {vr(vAFIRST,4)}, {vr(b,4)}, 0")
    a.label(lc)
    for j in range(1, 4):
        a(f"v_mfma_f32_16x16x32_bf16 {vr(vGACC,4)}, {vr(vASUM,4)}, {vr(b+4*j,4)}, {vr(vGACC,4)}")
    a(f"""s_mov_b32 s{sCFIRST}, 0
    s_cmp_lt_u32 s{sT0}, 4
    s_cbranch_scc1 {lni}
    s_waitcnt lgkmcnt(0)""")
    issue_group(vENT, slot)
    read_entries(vENT)
    a.label(lni)
    a(f"""s_add_u32 s{sI}, s{sI}, 1
    s_sub_u32 s{sCREM}, s{sCREM}, 1
    s_cmp_lg_u32 s{sCREM}, 0
    s_cbranch_scc1 {lnf}
    s_call_b64 {sp(sRET)}, L_final
    s_cmp_eq_u32 s{sNODE}, 5
    s_cbranch_scc1 L_gdone""")
    a.label(lnf)
a("s_branch L_gloop")

a.label("L_final")
a(f"""s_and_b32 s{sT0}, s{sCTAB}, 0x3f0
s_mul_i32 s{sT0}, s{sT0}, {H_STR//16}
s_lshr_b64 {sp(sCTAB)}, {sp(sCTAB)}, 12
s_and_b32 s{sCREM}, s{sCTAB}, 15
s_mov_b32 s{sCFIRST}, 1
s_add_u32 s{sNODE}, s{sNODE}, 1
v_add_u32 v{vT0}, s{sT0}, v{vHW}
s_nop 7
v_cvt_pk_bf16_f32 v{vT2}, v{vGACC}, v{vGACC+1}
v_cvt_pk_bf16_f32 v{vT3}, v{vGACC+2}, v{vGACC+3}
ds_write_b64 v{vT0}, {vr(vT2,2)} offset:{H_OFF}
s_cmp_eq_u32 s{sNODE}, 1
s_cbranch_scc1 L_fret
s_cmp_eq_u32 s{sNODE}, 3
s_cbranch_scc1 L_fret
s_lshr_b32 s{sTILE}, s{sNODE}, 1
s_sub_u32 s{sTILE}, s{sTILE}, 1
s_cmp_eq_u32 s{sNODE}, 5
s_cselect_b32 s{sTILE}, 2, s{sTILE}
s_cselect_b32 s{sEXM}, 0x00ff00ff, -1
s_mov_b32 s{sEXM+1}, s{sEXM}
s_mul_i32 s{sT0}, s{sTILE}, {16*H_STR}
s_mul_i32 s{sT1}, s{sTILE}, {16*H1_STR}
v_add_u32 v{vT0}, s{sT0}, v{vG1B}
v_add_u32 v{vT1}, s{sT1}, v{vH1W}
""")


def acc1(cg, T):
    return vACC1 + (cg * 2 + T) * 4


for cg in range(2):
    for r in range(4):
        a(f"""v_lshlrev_b32 v{acc1(cg,0)+r}, 16, v{vB1+cg*4+r}
        v_and_b32 v{acc1(cg,1)+r}, 0xffff0000, v{vB1+cg*4+r}""")
a("s_waitcnt lgkmcnt(0)\ns_barrier")
for ks in range(4):
    a(f"ds_read_b128 {vr(vBB+ks*4,4)}, v{vT0} offset:{H_OFF+ks*32}")
for ks in range(8):
    bb = vBB + (ks & 3) * 4
    n_out = min(3, 7 - ks)
    a(f"s_waitcnt lgkmcnt({n_out})")
    for cg in range(2):
        for T in range(2):
            fr = vW + (ks * 2 + cg) * 8 + T * 4
            a(f"v_mfma_f32_16x16x32_bf16 {vr(acc1(cg,T),4)}, {vr(fr,4)}, {vr(bb,4)}, {vr(acc1(cg,T),4)}")
    if ks + 4 < 8:
        a(f"ds_read_b128 {vr(bb,4)}, v{vT0} offset:{H_OFF+(ks+4)*32}")
a(f"s_nop 7\ns_mov_b64 exec, {sp(sEXM)}")
for cg in range(2):
    for r in range(4):
        a(f"""v_cvt_pk_bf16_f32 v{vBB+cg*4+r}, v{acc1(cg,0)+r}, v{acc1(cg,1)+r}
        v_pk_max_i16 v{vBB+cg*4+r}, v{vBB+cg*4+r}, 0""")
    a(f"ds_write_b128 v{vT1}, {vr(vBB+cg*4,4)} offset:{cg*64}")
a("s_mov_b64 exec, -1")
a.label("L_fret")
a(f"s_setpc_b64 {sp(sRET)}")

a.label("L_slow")
vSA = vRING
vSD, vSS, vSB = vRING + 20, vRING + 21, vRING + 24
vHOFF = vRING + 22
a(f"""v_mov_b32 v{vT0}, {OOB}
v_cmp_gt_u32 vcc, 32, v{vLANE}
s_nop 1
v_cndmask_b32 v{vHOFF}, v{vT0}, v{vGOFF}, vcc
s_mov_b64 {sp(sRTAB)}, {sp(sCTAB)}
""")
for n in range(5):
    a(f"""s_bfe_u32 s{sT0}, s{sRTAB}, 0x60004
    s_add_u32 s{sT0}, s{sT0}, s{sBASE}
    s_lshl_b32 s{sT0}, s{sT0}, 9
    buffer_load_dwordx4 {vr(vSB,4)}, v{vHOFF}, {srd(rX)}, s{sT0} offen
    s_lshr_b64 {sp(sRTAB)}, {sp(sRTAB)}, 12
    s_waitcnt vmcnt(0)
    v_mfma_f32_16x16x32_bf16 {vr(vSA+4*n,4)}, {vr(vAFIRST,4)}, {vr(vSB,4)}, 0
    s_nop 7""")
a(f"""s_mov_b32 s{sI}, 0
v_lshlrev_b32 v{vT1}, 2, v{vLANE}
""")
a.label("L_sloop")
a(f"""buffer_load_dword v{vSD}, v{vT1}, {srd(rDST)}, s{sI} offen
buffer_load_dword v{vSS}, v{vT1}, {srd(rSRC)}, s{sI} offen
s_mov_b64 {sp(sRTAB)}, {sp(sCTAB)}
s_waitcnt vmcnt(0)
v_lshlrev_b32 v{vSS}, 9, v{vSS}
""")
for n in range(5):
    l0, l1 = a.newlabel("L_s"), a.newlabel("L_s")
    a(f"""s_bfe_u32 s{sT0}, s{sRTAB}, 0x60004
    s_add_u32 s{sT0}, s{sT0}, s{sBASE}
    s_lshr_b64 {sp(sRTAB)}, {sp(sRTAB)}, 12
    v_cmp_eq_u32 {sp(sM0)}, s{sT0}, v{vSD}""")
    a.label(l0)
    a(f"""s_nop 3
    s_cmp_eq_u64 {sp(sM0)}, 0
    s_cbranch_scc1 {l1}
    s_ff1_i32_b64 s{sT1}, {sp(sM0)}
    s_bitset0_b64 {sp(sM0)}, s{sT1}
    v_readlane_b32 s{sT2}, v{vSS}, s{sT1}
    s_nop 4
    buffer_load_dwordx4 {vr(vSB,4)}, v{vHOFF}, {srd(rX)}, s{sT2} offen
    s_waitcnt vmcnt(0)
    v_mfma_f32_16x16x32_bf16 {vr(vSA+4*n,4)}, {vr(vASUM,4)}, {vr(vSB,4)}, {vr(vSA+4*n,4)}
    s_nop 7
    s_branch {l0}""")
    a.label(l1)
a(f"""s_add_u32 s{sI}, s{sI}, 256
s_cmp_lt_u32 s{sI}, 640000
s_cbranch_scc1 L_sloop
s_nop 7
""")
for n in range(5):
    for r in range(4):
        a(f"v_mov_b32 v{vGACC+r}, v{vSA+4*n+r}")
    a(f"s_call_b64 {sp(sRET)}, L_final")

a.label("L_gdone")
stamp()
a(f"""v_lshrrev_b32 v{vT0}, 1, v{vG}
v_and_b32 v{vT1}, 1, v{vG}
v_lshl_add_u32 v{vT2}, v{vT1}, 4, v{vT0}
v_lshlrev_b32 v{vWOFF}, 12, v{vT2}
v_lshl_add_u32 v{vWOFF}, v{vN}, 2, v{vWOFF}
s_lshl_b32 s{sT1}, s{sWAVE}, 6
v_add_u32 v{vWOFF}, s{sT1}, v{vWOFF}
""")
load_perm_all(2)
vACC2 = vRING
vB2B = vRING + 24


def acc2(t, T):
    return vACC2 + (t * 2 + T) * 4


for t in range(3):
    for r in range(4):
        a(f"""v_lshlrev_b32 v{acc2(t,0)+r}, 16, v{vB2+r}
        v_and_b32 v{acc2(t,1)+r}, 0xffff0000, v{vB2+r}""")
a("s_waitcnt lgkmcnt(0)\ns_barrier")
stamp()


def rd2(ks):
    for t in range(3):
        a(f"ds_read_b128 {vr(vB2B+(ks&1)*12+t*4,4)}, v{vG2B} offset:{t*16*H1_STR+(ks&7)*32+(ks>>3)*512}")


rd2(0)
rd2(1)
for ks in range(16):
    a(f"s_waitcnt lgkmcnt({3 if ks < 15 else 0})")
    for t in range(3):
        for T in range(2):
            fr = vW + ks * 8 + T * 4
            a(f"v_mfma_f32_16x16x32_bf16 {vr(acc2(t,T),4)}, {vr(fr,4)}, {vr(vB2B+(ks&1)*12+t*4,4)}, {vr(acc2(t,T),4)}")
    if ks + 2 < 16:
        rd2(ks + 2)
a(f"""v_add_u32 v{vT0}, s{sBASE}, v{vN}
v_lshlrev_b32 v{vT0}, 9, v{vT0}
v_lshl_add_u32 v{vT0}, v{vG}, 4, v{vT0}
v_add_u32 v{vT0}, s{sT1}, v{vT0}
s_mov_b32 s{sT2}, 8192
s_mov_b32 s{sT3}, 16384
s_nop 4
""")
for t in range(3):
    for r in range(4):
        a(f"v_cvt_pk_bf16_f32 v{vBB+t*4+r}, v{acc2(t,0)+r}, v{acc2(t,1)+r}")
    if t == 2:
        a("s_mov_b32 exec_lo, 0x00ff00ff\ns_mov_b32 exec_hi, 0x00ff00ff")
    so = ["0", f"s{sT2}", f"s{sT3}"][t]
    a(f"buffer_store_dwordx4 {vr(vBB+t*4,4)}, v{vT0}, {srd(rOUT)}, {so} offen")
a("s_mov_b64 exec, -1")
stamp()
if "--dbgspan" in sys.argv:
    a(f"""s_waitcnt vmcnt(0)
    s_memrealtime {sp(sSTAMP)}
    s_waitcnt lgkmcnt(0)
    v_mov_b32 v126, s{sSTAMP}
    v_mov_b32 v127, 0
    s_mov_b64 exec, 1
    global_atomic_umax v127, v126, {sp(sDBG)} offset:8 sc1
    s_mov_b64 exec, -1""")
a.label("L_end")
a("s_endpgm")

hdr = open("cdna_kernels/%s.s.ref" % NAME).read().split("; Override launch")[0]
out = hdr + f"""; @launch grid=({NB},1,1) block=(512,1,1) lds={LDS_BYTES}
.amdgcn_target "amdgcn-amd-amdhsa--gfx950"
.text
.globl {NAME}_kernel
.p2align 8
.type {NAME}_kernel,@function
{NAME}_kernel:
""" + "\n".join(a.lines) + f"""
.section .rodata,"a"
.p2align 6
.amdhsa_kernel {NAME}_kernel
  .amdhsa_next_free_vgpr {NVGPR}
  .amdhsa_next_free_sgpr 102
  .amdhsa_accum_offset {NVGPR}
  .amdhsa_group_segment_fixed_size 0
  .amdhsa_kernarg_size 88
  .amdhsa_user_sgpr_count 2
  .amdhsa_user_sgpr_kernarg_segment_ptr 1
  .amdhsa_system_sgpr_workgroup_id_x 1
.end_amdhsa_kernel
"""
dst = [x for x in sys.argv[1:] if not x.startswith("--")]
open(dst[0] if dst else f"cdna_kernels/{NAME}.s", "w").write(out)
```

```python
import sys

NAME = "gather_scatter__isomorphism_gin_2__graph"
NB = 250
R = 40
P = 80
EPP = 2000
CAP = 24
SEG = CAP * 4
TBL_BLOCK = P * SEG
NGR = NB * CAP // 4

CNT_OFF = 0
FLAG_OFF = 256
BK_OFF = 512
H_OFF = BK_OFF + 40 * 256
H_STR = 528
H1_OFF = H_OFF + 40 * H_STR
H1_STR = 1040
H1_END = H1_OFF + 40 * H1_STR
BT_OFF = H1_OFF
BC_OFF = BT_OFF + NB * SEG
LDS_BYTES = H1_END + 8 * H1_STR
assert BC_OFF + 1024 <= H1_END

OOB = 0x7F000000
STAMPS = "--stamps" in sys.argv


class Asm:
    def __init__(self):
        self.lines = []
        self.n = 0

    def __call__(self, s):
        for l in s.strip().split("\n"):
            self.lines.append("    " + l.strip())

    def label(self, l):
        self.lines.append(l + ":")

    def newlabel(self, p="L"):
        self.n += 1
        return f"{p}_{self.n}"


a = Asm()

sX, sSRC, sDST, sEPS, sW1, sB1, sW2, sB2 = 8, 10, 12, 14, 16, 18, 20, 22
sOUT, sDBG, sWS = 24, 26, 28
rX, rSRC, rDST, rW1, rW2, rOUT, rTBL = 32, 36, 40, 44, 48, 52, 56
sWAVE = 60
sSELLO, sSELHI = 61, 62
sT0, sT1, sT2, sT3 = 63, 64, 65, 66
sM0, sM1, sM2, sM3 = 68, 70, 72, 74
sRTAB, sCTAB = 76, 78
sRADDR, sRREM, sCREM, sCFIRST, sNG, sI, sNODE = 80, 81, 82, 83, 84, 85, 86
sRET = 88
sTILE = 90
sEXM = 92
sSTAMP = 94
sBASE = 96


def srd(r):
    return f"s[{r}:{r+3}]"


def sp(r):
    return f"s[{r}:{r+1}]"


def vr(r, n):
    return f"v[{r}:{r+n-1}]"


vTID, vLANE, vG, vN = 0, 1, 2, 3
vT0, vT1, vT2, vT3 = 4, 5, 6, 7
vASUM, vAFIRST, vGACC, vENT = 8, 12, 16, 20
vGOFF, vBKOFF, vHW, vG1B, vH1W, vG2B, vWOFF, vT4 = 24, 25, 26, 27, 28, 29, 30, 31
vB1, vB2 = 32, 40
vACC1, vBB = 44, 60
vRING = 76
vWSP = 124
vW = 128
NVGPR = 256

stamp_idx = [0]


def stamp():
    if "--dbgst" in sys.argv:
        i = stamp_idx[0]
        stamp_idx[0] += 1
        lst = [(120, 8 + i)]
        if i == 0: lst += [(0, 2), (249, 4), (79, 6)]
        if i == 7: lst += [(0, 3), (249, 5), (79, 7)]
        for wg, word in lst:
            l = a.newlabel("L_st")
            a(f"""s_cmp_lg_u32 s2, {wg}
            s_cbranch_scc1 {l}
            s_cmp_lg_u32 s{sWAVE}, 0
            s_cbranch_scc1 {l}
            s_memrealtime {sp(sSTAMP)}
            s_waitcnt lgkmcnt(0)
            v_mov_b32 v126, s{sSTAMP}
            v_mov_b32 v127, 0
            global_store_dword v127, v126, {sp(sDBG)} offset:{word*4}""")
            a.label(l)
        return
    if not STAMPS:
        return
    i = stamp_idx[0]
    stamp_idx[0] += 1
    a(f"""s_memrealtime {sp(sSTAMP)}
    s_waitcnt lgkmcnt(0)
    v_mov_b32 v126, s{sSTAMP}
    v_mov_b32 v127, s{sWAVE}
    v_lshlrev_b32 v127, 6, v127
    s_lshl_b32 s{sSTAMP+1}, s2, 9
    v_add_u32 v127, s{sSTAMP+1}, v127
    v_add_u32 v127, 0x800000, v127
    global_store_dword v127, v126, {sp(sWS)} offset:{i*4}""")


def f0reg(q):
    return vW + (q >> 2) * 8 + (q & 3)


def f1reg(q):
    return vW + (q >> 2) * 8 + 4 + (q & 3)


def xreg(q):
    return f0reg(q + 1) if q < 63 else vWSP


a(f"""s_cmp_ge_u32 s2, {NB}
s_cbranch_scc1 L_end
s_load_dwordx16 s[8:23], s[0:1], 0
s_load_dwordx4 s[24:27], s[0:1], 64
s_load_dwordx2 s[28:29], s[0:1], 80
v_and_b32 v{vLANE}, 63, v0
v_lshrrev_b32 v{vT0}, 6, v0
v_lshrrev_b32 v{vG}, 4, v{vLANE}
v_readfirstlane_b32 s{sWAVE}, v{vT0}
v_and_b32 v{vN}, 15, v0
s_mov_b32 s{sSELLO}, 0x05040100
s_mov_b32 s{sSELHI}, 0x07060302
s_mul_i32 s{sBASE}, s2, {R}
""")
a(f"""v_mov_b32 v{vENT}, {OOB}
v_mov_b32 v{vENT+1}, {OOB}
v_mov_b32 v{vENT+2}, {OOB}
v_mov_b32 v{vENT+3}, {OOB}
v_lshlrev_b32 v{vT0}, 4, v0
ds_write_b128 v{vT0}, {vr(vENT,4)} offset:{BK_OFF}
v_cmp_gt_u32 vcc, 128, v0
s_and_saveexec_b64 {sp(sM0)}, vcc
ds_write_b128 v{vT0}, {vr(vENT,4)} offset:{BK_OFF+8192}
s_mov_b64 exec, {sp(sM0)}
""")
a(f"""v_mov_b32 v{vBB}, 0xfc000
v_mov_b32 v{vBB+1}, 0xfc000
v_mov_b32 v{vBB+2}, 0xfc000
v_mov_b32 v{vBB+3}, 0xfc000
ds_write_b128 v{vT0}, {vr(vBB,4)} offset:{BT_OFF}
ds_write_b128 v{vT0}, {vr(vBB,4)} offset:{BT_OFF+8192}
v_cmp_gt_u32 vcc, {NGR-1024}, v0
s_and_saveexec_b64 {sp(sM0)}, vcc
ds_write_b128 v{vT0}, {vr(vBB,4)} offset:{BT_OFF+16384}
s_mov_b64 exec, {sp(sM0)}
v_mov_b32 v{vT1}, 0
v_lshlrev_b32 v{vT2}, 2, v0
v_cmp_gt_u32 vcc, 256, v0
s_and_saveexec_b64 {sp(sM0)}, vcc
ds_write_b32 v{vT2}, v{vT1} offset:{BC_OFF}
s_mov_b64 exec, {sp(sM0)}
s_waitcnt lgkmcnt(0)
s_barrier
""")
a(f"""v_cmp_gt_u32 vcc, {R}, v0
s_and_saveexec_b64 {sp(sM0)}, vcc
v_add_u32 v{vT1}, s{sBASE}, v0
v_lshlrev_b32 v{vT1}, 9, v{vT1}
v_lshlrev_b32 v{vT3}, 8, v0
ds_write_b32 v{vT3}, v{vT1} offset:{BK_OFF}
v_mov_b32 v{vT1}, 1
ds_write_b32 v{vT2}, v{vT1} offset:{CNT_OFF}
v_mov_b32 v{vT1}, 0
ds_write_b32 v{vT1}, v{vT1} offset:{FLAG_OFF}
s_mov_b64 exec, {sp(sM0)}
""")


def mksrd(r, p, size):
    a(f"""s_mov_b32 s{r}, s{p}
    s_and_b32 s{r+1}, s{p+1}, 0xffff
    s_mov_b32 s{r+2}, {size}
    s_mov_b32 s{r+3}, 0x00020000""")


mksrd(rX, sX, 5120000)
mksrd(rSRC, sSRC, 640000)
mksrd(rDST, sDST, 640000)
mksrd(rW1, sW1, 262144)
mksrd(rW2, sW2, 262144)
mksrd(rOUT, sOUT, 5120000)
mksrd(rTBL, sWS, NB * TBL_BLOCK)
stamp()

vD, vS = vRING, vRING + 4
vBI, vSL = vRING + 8, vRING + 12
a(f"""s_cmp_ge_u32 s2, {P}
s_cbranch_scc1 L_noprod
s_mul_i32 s{sT0}, s2, {EPP*4}
v_cmp_gt_u32 vcc, {EPP//4}, v0
s_and_saveexec_b64 {sp(sM0)}, vcc
buffer_load_dwordx4 {vr(vD,4)}, v{vT0}, {srd(rDST)}, s{sT0} offen
buffer_load_dwordx4 {vr(vS,4)}, v{vT0}, {srd(rSRC)}, s{sT0} offen
v_mov_b32 v{vT4}, 1
s_mov_b32 s{sT1}, {R}
s_mov_b32 s{sT2}, {SEG}
s_waitcnt vmcnt(1)
""")
for i in range(4):
    a(f"""v_mul_u32_u24 v{vBI+i}, 0xcccd, v{vD+i}
    v_lshrrev_b32 v{vBI+i}, 21, v{vBI+i}
    v_lshlrev_b32 v{vT1}, 2, v{vBI+i}
    ds_add_rtn_u32 v{vSL+i}, v{vT1}, v{vT4} offset:{BC_OFF}""")
a("s_waitcnt vmcnt(0)")
for i in range(4):
    a(f"""v_mul_u32_u24 v{vT1}, {R}, v{vBI+i}
    v_sub_u32 v{vT1}, v{vD+i}, v{vT1}
    v_lshl_or_b32 v{vS+i}, v{vT1}, 14, v{vS+i}
    v_mul_u32_u24 v{vBI+i}, {SEG}, v{vBI+i}""")
a("s_waitcnt lgkmcnt(0)\ns_mov_b64 %s, exec" % sp(sM1))
for i in range(4):
    a(f"""v_lshl_add_u32 v{vT1}, v{vSL+i}, 2, v{vBI+i}
    v_cmp_gt_u32 vcc, {CAP}, v{vSL+i}
    s_and_b64 exec, {sp(sM1)}, vcc
    ds_write_b32 v{vT1}, v{vS+i} offset:{BT_OFF}
    s_mov_b64 exec, {sp(sM1)}""")
a(f"""s_mov_b64 exec, {sp(sM0)}
s_waitcnt lgkmcnt(0)
s_barrier
s_mul_i32 s{sT0}, s2, {SEG}
s_mov_b32 s{sT1}, {TBL_BLOCK - SEG}
""")
for k in range(3):
    vE = vRING + 16 + 4 * k
    vC = vRING + 32 + k
    vA = vRING + 36 + k
    a(f"""v_add_u32 v{vT1}, {512*k}, v0
    v_mul_u32_u24 v{vT2}, 10923, v{vT1}
    v_lshrrev_b32 v{vT2}, 16, v{vT2}
    v_lshlrev_b32 v{vT3}, 2, v{vT2}
    ds_read_b128 {vr(vE,4)}, v{vT0} offset:{BT_OFF+8192*k}
    ds_read_b32 v{vC}, v{vT3} offset:{BC_OFF}
    v_lshlrev_b32 v{vT1}, 4, v{vT1}
    v_mad_u32_u24 v{vA}, v{vT2}, s{sT1}, v{vT1}""")
a(f"s_waitcnt lgkmcnt(0)\nv_mov_b32 v{vT3}, 0xf8000")
for k in range(3):
    vE = vRING + 16 + 4 * k
    vC = vRING + 32 + k
    vA = vRING + 36 + k
    a(f"""v_cmp_lt_u32 vcc, {CAP}, v{vC}
    s_nop 1
    v_cndmask_b32 v{vE}, v{vE}, v{vT3}, vcc""")
    if k == 2:
        a(f"""v_cmp_gt_u32 vcc, {NGR-1024}, v0
        s_and_saveexec_b64 {sp(sM0)}, vcc""")
    a(f"buffer_store_dwordx4 {vr(vE,4)}, v{vA}, {srd(rTBL)}, s{sT0} offen sc1")
a(f"""s_mov_b64 exec, {sp(sM0)}
s_waitcnt vmcnt(0)
s_barrier
v_cmp_eq_u32 vcc, 0, v0
s_and_saveexec_b64 {sp(sM0)}, vcc
s_cbranch_execz L_nosig
v_mov_b32 v{vT1}, 0
v_mov_b32 v{vT2}, 1
global_atomic_add v{vT1}, v{vT2}, {sp(sDBG)} sc1
""")
a.label("L_nosig")
a(f"s_mov_b64 exec, {sp(sM0)}")
a.label("L_noprod")
stamp()

a(f"""v_lshrrev_b32 v{vT0}, 1, v{vG}
v_and_b32 v{vT1}, 1, v{vG}
v_lshl_add_u32 v{vT2}, v{vT1}, 4, v{vT0}
""")
a(f"""v_and_b32 v{vGOFF}, 31, v{vLANE}
v_lshlrev_b32 v{vGOFF}, 4, v{vGOFF}
v_lshrrev_b32 v{vBKOFF}, 5, v{vLANE}
v_lshlrev_b32 v{vBKOFF}, 4, v{vBKOFF}
v_lshl_add_u32 v{vHW}, v{vT0}, 4, v{vN}
v_lshlrev_b32 v{vHW}, 4, v{vHW}
v_lshl_add_u32 v{vHW}, v{vT1}, 3, v{vHW}
v_mul_u32_u24 v{vG1B}, {H_STR}, v{vN}
v_lshl_add_u32 v{vG1B}, v{vT2}, 4, v{vG1B}
v_mul_u32_u24 v{vT3}, {H1_STR}, v{vN}
v_add_u32 v{vT3}, {H1_OFF}, v{vT3}
v_lshl_add_u32 v{vG2B}, v{vT2}, 4, v{vT3}
s_lshl_b32 s{sT0}, s{sWAVE}, 7
v_lshl_add_u32 v{vH1W}, v{vG}, 4, v{vT3}
v_add_u32 v{vH1W}, s{sT0}, v{vH1W}
""")
a(f"""v_lshlrev_b32 v{vWOFF}, 13, v{vT2}
v_lshl_add_u32 v{vWOFF}, v{vN}, 2, v{vWOFF}
v_add_u32 v{vWOFF}, s{sT0}, v{vWOFF}
""")
a(f"""v_lshlrev_b32 v{vT3}, 4, v{vG}
v_add_u32 v{vT4}, s{sT0}, v{vT3}
global_load_dwordx4 {vr(vB1,4)}, v{vT4}, {sp(sB1)}
global_load_dwordx4 {vr(vB1+4,4)}, v{vT4}, {sp(sB1)} offset:64
s_lshl_b32 s{sT1}, s{sWAVE}, 6
v_add_u32 v{vT4}, s{sT1}, v{vT3}
global_load_dwordx4 {vr(vB2,4)}, v{vT4}, {sp(sB2)}
v_mov_b32 v{vT3}, 0
global_load_ushort v{vGACC}, v{vT3}, {sp(sEPS)}
""")


def load_w(which, q0, q1):
    for q in range(q0, q1):
        jj = q & 3
        if which == 1:
            ks, cg = q >> 3, (q >> 2) & 1
            if (q & 7) == 0:
                a(f"s_mov_b32 s{sT2}, {ks*16384}\ns_mov_b32 s{sT3}, {ks*16384+4096}")
            for par in range(2):
                j = 2 * jj + par
                dst = xreg(q) if par == 0 else f1reg(q)
                so = sT2 if j < 4 else sT3
                a(f"buffer_load_dword v{dst}, v{vWOFF}, {srd(rW1)}, s{so} offen offset:{(j&3)*1024+cg*64}")
        else:
            ks = q >> 2
            if (q & 3) == 0:
                a(f"s_mov_b32 s{sT2}, {(ks&7)*8192+(ks>>3)*131072}")
            for par in range(2):
                j = 2 * jj + par
                dst = xreg(q) if par == 0 else f1reg(q)
                a(f"buffer_load_dword v{dst}, v{vWOFF}, {srd(rW2)}, s{sT2} offen offset:{j*512}")


def perm_w(q0, q1):
    for q in range(q0, q1):
        a(f"""v_perm_b32 v{f0reg(q)}, v{f1reg(q)}, v{xreg(q)}, s{sSELLO}
        v_perm_b32 v{f1reg(q)}, v{f1reg(q)}, v{xreg(q)}, s{sSELHI}""")


def load_perm_all(which):
    CH = 8
    load_w(which, 0, 24)
    for c in range(0, 64, CH):
        issued = min(64, c + 24)
        a(f"s_waitcnt vmcnt({(issued - (c + CH)) * 2})")
        perm_w(c, c + CH)
        if issued < 64:
            load_w(which, issued, issued + CH)


load_perm_all(1)

a(f"""v_lshlrev_b32 v{vGACC}, 16, v{vGACC}
v_add_f32 v{vGACC}, 1.0, v{vGACC}
v_cvt_pk_bf16_f32 v{vGACC}, v{vGACC}, v{vGACC}
v_and_b32 v{vGACC}, 0xffff, v{vGACC}
v_mov_b32 v{vGACC+1}, 0x3f80
v_cmp_gt_u32 vcc, 32, v{vLANE}
s_nop 1
v_cndmask_b32 v{vGACC}, v{vGACC+1}, v{vGACC}, vcc
v_and_b32 v{vT0}, 1, v{vN}
v_lshlrev_b32 v{vT0}, 4, v{vT0}
v_lshlrev_b32 v{vGACC}, v{vT0}, v{vGACC}
v_lshlrev_b32 v{vGACC+1}, v{vT0}, v{vGACC+1}
v_and_b32 v{vT1}, 1, v{vG}
v_lshlrev_b32 v{vT1}, 2, v{vT1}
v_lshrrev_b32 v{vT0}, 1, v{vN}
v_sub_u32 v{vT0}, v{vT0}, v{vT1}
""")
for r in range(4):
    a(f"""v_cmp_eq_u32 vcc, {r}, v{vT0}
    s_nop 1
    v_cndmask_b32 v{vASUM+r}, 0, v{vGACC+1}, vcc
    v_cndmask_b32 v{vAFIRST+r}, 0, v{vGACC}, vcc""")
stamp()

a(f"""s_cmp_lg_u32 s{sWAVE}, 0
s_cbranch_scc1 L_polled
s_mov_b32 s{sT0}, 0
v_mov_b32 v{vT1}, 0
""")
a.label("L_poll")
a(f"""global_load_dword v{vT2}, v{vT1}, {sp(sDBG)} sc1
s_waitcnt vmcnt(0)
v_readfirstlane_b32 s{sT1}, v{vT2}
s_add_u32 s{sT0}, s{sT0}, 1
s_cmp_ge_u32 s{sT1}, {P}
s_cbranch_scc1 L_polled
s_sleep 1
s_cmp_lt_u32 s{sT0}, 200000
s_cbranch_scc1 L_poll
v_mov_b32 v{vT2}, 1
ds_write_b32 v{vT1}, v{vT2} offset:{FLAG_OFF}
s_waitcnt lgkmcnt(0)
""")
a.label("L_polled")
a("s_barrier")
stamp()

vE = vRING
vLD = vRING + 4
vSL = vRING + 8
vAD = vRING + 12
masks = [sM0, sM1, sM2, sM3]
a(f"""v_mov_b32 v{vE}, 0xfc000
v_mov_b32 v{vE+1}, 0xfc000
v_mov_b32 v{vE+2}, 0xfc000
v_mov_b32 v{vE+3}, 0xfc000
s_mul_i32 s{sT0}, s2, {TBL_BLOCK}
v_lshlrev_b32 v{vT0}, 4, v0
v_cmp_gt_u32 vcc, {TBL_BLOCK//16}, v0
s_and_b64 exec, exec, vcc
buffer_load_dwordx4 {vr(vE,4)}, v{vT0}, {srd(rTBL)}, s{sT0} offen sc1
s_mov_b64 exec, -1
v_mov_b32 v{vT4}, 1
s_waitcnt vmcnt(0)
""")
for i in range(4):
    a(f"""v_bfe_u32 v{vLD+i}, v{vE+i}, 14, 6
    v_cmp_gt_u32 {sp(masks[i])}, {R}, v{vLD+i}
    v_lshlrev_b32 v{vAD+i}, 2, v{vLD+i}""")
for i in range(4):
    a(f"""s_mov_b64 exec, {sp(masks[i])}
    ds_add_rtn_u32 v{vSL+i}, v{vAD+i}, v{vT4} offset:{CNT_OFF}""")
a(f"""s_mov_b64 exec, -1
v_cmp_eq_u32 vcc, 62, v{vLD}
s_mov_b64 {sp(sEXM)}, vcc
""")
for i in range(4):
    a(f"""v_and_b32 v{vE+i}, 0x3fff, v{vE+i}
    v_lshlrev_b32 v{vE+i}, 9, v{vE+i}
    v_lshlrev_b32 v{vAD+i}, 8, v{vLD+i}""")
a("s_waitcnt lgkmcnt(0)")
for i in range(4):
    a(f"""v_and_b32 v{vT0}, 0x38, v{vSL+i}
    v_lshl_add_u32 v{vAD+i}, v{vT0}, 2, v{vAD+i}
    v_and_b32 v{vT0}, 1, v{vSL+i}
    v_lshl_add_u32 v{vAD+i}, v{vT0}, 4, v{vAD+i}
    v_and_b32 v{vT0}, 6, v{vSL+i}
    v_lshl_add_u32 v{vAD+i}, v{vT0}, 1, v{vAD+i}
    v_cmp_gt_u32 vcc, 64, v{vSL+i}
    s_andn2_b64 {sp(sT0+1)}, {sp(masks[i])}, vcc
    s_or_b64 {sp(sEXM)}, {sp(sEXM)}, {sp(sT0+1)}
    s_and_b64 exec, {sp(masks[i])}, vcc
    ds_write_b32 v{vAD+i}, v{vE+i} offset:{BK_OFF}
    s_mov_b64 exec, -1""")
a(f"""s_cmp_eq_u64 {sp(sEXM)}, 0
s_cbranch_scc1 L_noovf
v_mov_b32 v{vT1}, 0
ds_write_b32 v{vT1}, v{vT4} offset:{FLAG_OFF}
""")
a.label("L_noovf")
a(f"""s_waitcnt lgkmcnt(0)
s_barrier
""")
stamp()
a(f"""v_lshlrev_b32 v{vT0}, 2, v{vLANE}
ds_read_b32 v{vT1}, v{vT0} offset:{CNT_OFF}
v_mov_b32 v{vT2}, 0
ds_read_b32 v{vT3}, v{vT2} offset:{FLAG_OFF}
s_lshl_b32 s{sT0}, s{sWAVE}, 1
s_waitcnt lgkmcnt(0)
v_min_u32 v{vT1}, 64, v{vT1}
v_add_u32 v{vT1}, 7, v{vT1}
v_lshrrev_b32 v{vT1}, 3, v{vT1}
v_lshl_or_b32 v{vT1}, v{vLANE}, 4, v{vT1}
v_readfirstlane_b32 s{sT3}, v{vT3}
s_add_u32 s{sT1}, s{sWAVE}, 32
s_mov_b32 s{sRTAB+1}, 0
v_readlane_b32 s{sRTAB}, v{vT1}, s{sT1}
s_add_u32 s{sT1}, s{sT0}, 17
s_and_b32 s{sNG}, s{sRTAB}, 15
s_lshl_b64 {sp(sRTAB)}, {sp(sRTAB)}, 12
v_readlane_b32 s{sT2}, v{vT1}, s{sT1}
s_add_u32 s{sT1}, s{sT0}, 16
s_or_b32 s{sRTAB}, s{sRTAB}, s{sT2}
s_and_b32 s{sT2}, s{sT2}, 15
s_add_u32 s{sNG}, s{sNG}, s{sT2}
s_lshl_b64 {sp(sRTAB)}, {sp(sRTAB)}, 12
v_readlane_b32 s{sT2}, v{vT1}, s{sT1}
s_add_u32 s{sT1}, s{sT0}, 1
s_or_b32 s{sRTAB}, s{sRTAB}, s{sT2}
s_and_b32 s{sT2}, s{sT2}, 15
s_add_u32 s{sNG}, s{sNG}, s{sT2}
s_lshl_b64 {sp(sRTAB)}, {sp(sRTAB)}, 12
v_readlane_b32 s{sT2}, v{vT1}, s{sT1}
s_nop 0
s_or_b32 s{sRTAB}, s{sRTAB}, s{sT2}
s_and_b32 s{sT2}, s{sT2}, 15
s_add_u32 s{sNG}, s{sNG}, s{sT2}
s_lshl_b64 {sp(sRTAB)}, {sp(sRTAB)}, 12
v_readlane_b32 s{sT2}, v{vT1}, s{sT0}
s_nop 0
s_or_b32 s{sRTAB}, s{sRTAB}, s{sT2}
s_and_b32 s{sT2}, s{sT2}, 15
s_add_u32 s{sNG}, s{sNG}, s{sT2}
s_mov_b64 {sp(sCTAB)}, {sp(sRTAB)}
s_and_b32 s{sRREM}, s{sRTAB}, 15
s_mov_b32 s{sCREM}, s{sRREM}
s_and_b32 s{sRADDR}, s{sRTAB}, 0x3f0
s_lshl_b32 s{sRADDR}, s{sRADDR}, 4
s_mov_b32 s{sCFIRST}, 1
s_mov_b32 s{sI}, 0
s_mov_b32 s{sNODE}, 0
s_cmp_lg_u32 s{sT3}, 0
s_cbranch_scc1 L_slow
""")


def read_entries(dst):
    l = a.newlabel("L_adv")
    a(f"""v_add_u32 v{vT0}, s{sRADDR}, v{vBKOFF}
    ds_read_b128 {vr(dst,4)}, v{vT0} offset:{BK_OFF}
    s_add_u32 s{sRADDR}, s{sRADDR}, 32
    s_sub_u32 s{sRREM}, s{sRREM}, 1
    s_cmp_lg_u32 s{sRREM}, 0
    s_cbranch_scc1 {l}
    s_lshr_b64 {sp(sRTAB)}, {sp(sRTAB)}, 12
    s_and_b32 s{sRREM}, s{sRTAB}, 15
    s_and_b32 s{sRADDR}, s{sRTAB}, 0x3f0
    s_lshl_b32 s{sRADDR}, s{sRADDR}, 4""")
    a.label(l)


def issue_group(ent, slot):
    for j in range(4):
        a(f"v_add_u32 v{ent+j}, v{ent+j}, v{vGOFF}")
    for j in range(4):
        a(f"buffer_load_dwordx4 {vr(vRING+slot*16+j*4,4)}, v{ent+j}, {srd(rX)}, 0 offen")


read_entries(vBB)
read_entries(vBB + 4)
read_entries(vBB + 8)
read_entries(vENT)
a("s_waitcnt lgkmcnt(0)")
issue_group(vBB, 0)
issue_group(vBB + 4, 1)
issue_group(vBB + 8, 2)

a.label("L_gloop")
for slot in range(3):
    lw1, lw0, lgo = a.newlabel("L_w1"), a.newlabel("L_w0"), a.newlabel("L_go")
    lf, lc, lni, lnf = a.newlabel("L_f"), a.newlabel("L_c"), a.newlabel("L_ni"), a.newlabel("L_nf")
    b = vRING + slot * 16
    a(f"""s_sub_u32 s{sT0}, s{sNG}, s{sI}
    s_cmp_lt_u32 s{sT0}, 3
    s_cbranch_scc1 {lw1}
    s_waitcnt vmcnt(8)
    s_branch {lgo}""")
    a.label(lw1)
    a(f"""s_cmp_lt_u32 s{sT0}, 2
    s_cbranch_scc1 {lw0}
    s_waitcnt vmcnt(4)
    s_branch {lgo}""")
    a.label(lw0)
    a("s_waitcnt vmcnt(0)")
    a.label(lgo)
    a(f"""s_cmp_lg_u32 s{sCFIRST}, 0
    s_cbranch_scc1 {lf}
    v_mfma_f32_16x16x32_bf16 {vr(vGACC,4)}, {vr(vASUM,4)}, {vr(b,4)}, {vr(vGACC,4)}
    s_branch {lc}""")
    a.label(lf)
    a(f"v_mfma_f32_16x16x32_bf16 {vr(vGACC,4)}, {vr(vAFIRST,4)}, {vr(b,4)}, 0")
    a.label(lc)
    for j in range(1, 4):
        a(f"v_mfma_f32_16x16x32_bf16 {vr(vGACC,4)}, {vr(vASUM,4)}, {vr(b+4*j,4)}, {vr(vGACC,4)}")
    a(f"""s_mov_b32 s{sCFIRST}, 0
    s_cmp_lt_u32 s{sT0}, 4
    s_cbranch_scc1 {lni}
    s_waitcnt lgkmcnt(0)""")
    issue_group(vENT, slot)
    read_entries(vENT)
    a.label(lni)
    a(f"""s_add_u32 s{sI}, s{sI}, 1
    s_sub_u32 s{sCREM}, s{sCREM}, 1
    s_cmp_lg_u32 s{sCREM}, 0
    s_cbranch_scc1 {lnf}
    s_call_b64 {sp(sRET)}, L_final
    s_cmp_eq_u32 s{sNODE}, 5
    s_cbranch_scc1 L_gdone""")
    a.label(lnf)
a("s_branch L_gloop")

a.label("L_final")
a(f"""s_and_b32 s{sT0}, s{sCTAB}, 0x3f0
s_mul_i32 s{sT0}, s{sT0}, {H_STR//16}
s_lshr_b64 {sp(sCTAB)}, {sp(sCTAB)}, 12
s_and_b32 s{sCREM}, s{sCTAB}, 15
s_mov_b32 s{sCFIRST}, 1
s_add_u32 s{sNODE}, s{sNODE}, 1
v_add_u32 v{vT0}, s{sT0}, v{vHW}
s_nop 7
v_cvt_pk_bf16_f32 v{vT2}, v{vGACC}, v{vGACC+1}
v_cvt_pk_bf16_f32 v{vT3}, v{vGACC+2}, v{vGACC+3}
ds_write_b64 v{vT0}, {vr(vT2,2)} offset:{H_OFF}
s_cmp_eq_u32 s{sNODE}, 1
s_cbranch_scc1 L_fret
s_cmp_eq_u32 s{sNODE}, 3
s_cbranch_scc1 L_fret
s_lshr_b32 s{sTILE}, s{sNODE}, 1
s_sub_u32 s{sTILE}, s{sTILE}, 1
s_cmp_eq_u32 s{sNODE}, 5
s_cselect_b32 s{sTILE}, 2, s{sTILE}
s_cselect_b32 s{sEXM}, 0x00ff00ff, -1
s_mov_b32 s{sEXM+1}, s{sEXM}
s_mul_i32 s{sT0}, s{sTILE}, {16*H_STR}
s_mul_i32 s{sT1}, s{sTILE}, {16*H1_STR}
v_add_u32 v{vT0}, s{sT0}, v{vG1B}
v_add_u32 v{vT1}, s{sT1}, v{vH1W}
""")


def acc1(cg, T):
    return vACC1 + (cg * 2 + T) * 4


for cg in range(2):
    for r in range(4):
        a(f"""v_lshlrev_b32 v{acc1(cg,0)+r}, 16, v{vB1+cg*4+r}
        v_and_b32 v{acc1(cg,1)+r}, 0xffff0000, v{vB1+cg*4+r}""")
a("s_waitcnt lgkmcnt(0)\ns_barrier")
for ks in range(4):
    a(f"ds_read_b128 {vr(vBB+ks*4,4)}, v{vT0} offset:{H_OFF+ks*32}")
for ks in range(8):
    bb = vBB + (ks & 3) * 4
    n_out = min(3, 7 - ks)
    a(f"s_waitcnt lgkmcnt({n_out})")
    for cg in range(2):
        for T in range(2):
            fr = vW + (ks * 2 + cg) * 8 + T * 4
            a(f"v_mfma_f32_16x16x32_bf16 {vr(acc1(cg,T),4)}, {vr(fr,4)}, {vr(bb,4)}, {vr(acc1(cg,T),4)}")
    if ks + 4 < 8:
        a(f"ds_read_b128 {vr(bb,4)}, v{vT0} offset:{H_OFF+(ks+4)*32}")
a(f"s_nop 7\ns_mov_b64 exec, {sp(sEXM)}")
for cg in range(2):
    for r in range(4):
        a(f"""v_cvt_pk_bf16_f32 v{vBB+cg*4+r}, v{acc1(cg,0)+r}, v{acc1(cg,1)+r}
        v_pk_max_i16 v{vBB+cg*4+r}, v{vBB+cg*4+r}, 0""")
    a(f"ds_write_b128 v{vT1}, {vr(vBB+cg*4,4)} offset:{cg*64}")
a("s_mov_b64 exec, -1")
a.label("L_fret")
a(f"s_setpc_b64 {sp(sRET)}")

a.label("L_slow")
vSA = vRING
vSD, vSS, vSB = vRING + 20, vRING + 21, vRING + 24
vHOFF = vRING + 22
a(f"""v_mov_b32 v{vT0}, {OOB}
v_cmp_gt_u32 vcc, 32, v{vLANE}
s_nop 1
v_cndmask_b32 v{vHOFF}, v{vT0}, v{vGOFF}, vcc
s_mov_b64 {sp(sRTAB)}, {sp(sCTAB)}
""")
for n in range(5):
    a(f"""s_bfe_u32 s{sT0}, s{sRTAB}, 0x60004
    s_add_u32 s{sT0}, s{sT0}, s{sBASE}
    s_lshl_b32 s{sT0}, s{sT0}, 9
    buffer_load_dwordx4 {vr(vSB,4)}, v{vHOFF}, {srd(rX)}, s{sT0} offen
    s_lshr_b64 {sp(sRTAB)}, {sp(sRTAB)}, 12
    s_waitcnt vmcnt(0)
    v_mfma_f32_16x16x32_bf16 {vr(vSA+4*n,4)}, {vr(vAFIRST,4)}, {vr(vSB,4)}, 0
    s_nop 7""")
a(f"""s_mov_b32 s{sI}, 0
v_lshlrev_b32 v{vT1}, 2, v{vLANE}
""")
a.label("L_sloop")
a(f"""buffer_load_dword v{vSD}, v{vT1}, {srd(rDST)}, s{sI} offen
buffer_load_dword v{vSS}, v{vT1}, {srd(rSRC)}, s{sI} offen
s_mov_b64 {sp(sRTAB)}, {sp(sCTAB)}
s_waitcnt vmcnt(0)
v_lshlrev_b32 v{vSS}, 9, v{vSS}
""")
for n in range(5):
    l0, l1 = a.newlabel("L_s"), a.newlabel("L_s")
    a(f"""s_bfe_u32 s{sT0}, s{sRTAB}, 0x60004
    s_add_u32 s{sT0}, s{sT0}, s{sBASE}
    s_lshr_b64 {sp(sRTAB)}, {sp(sRTAB)}, 12
    v_cmp_eq_u32 {sp(sM0)}, s{sT0}, v{vSD}""")
    a.label(l0)
    a(f"""s_nop 3
    s_cmp_eq_u64 {sp(sM0)}, 0
    s_cbranch_scc1 {l1}
    s_ff1_i32_b64 s{sT1}, {sp(sM0)}
    s_bitset0_b64 {sp(sM0)}, s{sT1}
    v_readlane_b32 s{sT2}, v{vSS}, s{sT1}
    s_nop 4
    buffer_load_dwordx4 {vr(vSB,4)}, v{vHOFF}, {srd(rX)}, s{sT2} offen
    s_waitcnt vmcnt(0)
    v_mfma_f32_16x16x32_bf16 {vr(vSA+4*n,4)}, {vr(vASUM,4)}, {vr(vSB,4)}, {vr(vSA+4*n,4)}
    s_nop 7
    s_branch {l0}""")
    a.label(l1)
a(f"""s_add_u32 s{sI}, s{sI}, 256
s_cmp_lt_u32 s{sI}, 640000
s_cbranch_scc1 L_sloop
s_nop 7
""")
for n in range(5):
    for r in range(4):
        a(f"v_mov_b32 v{vGACC+r}, v{vSA+4*n+r}")
    a(f"s_call_b64 {sp(sRET)}, L_final")

a.label("L_gdone")
stamp()
a(f"""v_lshrrev_b32 v{vT0}, 1, v{vG}
v_and_b32 v{vT1}, 1, v{vG}
v_lshl_add_u32 v{vT2}, v{vT1}, 4, v{vT0}
v_lshlrev_b32 v{vWOFF}, 12, v{vT2}
v_lshl_add_u32 v{vWOFF}, v{vN}, 2, v{vWOFF}
s_lshl_b32 s{sT1}, s{sWAVE}, 6
v_add_u32 v{vWOFF}, s{sT1}, v{vWOFF}
""")
load_perm_all(2)
vACC2 = vRING
vB2B = vRING + 24


def acc2(t, T):
    return vACC2 + (t * 2 + T) * 4


for t in range(3):
    for r in range(4):
        a(f"""v_lshlrev_b32 v{acc2(t,0)+r}, 16, v{vB2+r}
        v_and_b32 v{acc2(t,1)+r}, 0xffff0000, v{vB2+r}""")
a("s_waitcnt lgkmcnt(0)\ns_barrier")
stamp()


def rd2(ks):
    for t in range(3):
        a(f"ds_read_b128 {vr(vB2B+(ks&1)*12+t*4,4)}, v{vG2B} offset:{t*16*H1_STR+(ks&7)*32+(ks>>3)*512}")


rd2(0)
rd2(1)
for ks in range(16):
    a(f"s_waitcnt lgkmcnt({3 if ks < 15 else 0})")
    for t in range(3):
        for T in range(2):
            fr = vW + ks * 8 + T * 4
            a(f"v_mfma_f32_16x16x32_bf16 {vr(acc2(t,T),4)}, {vr(fr,4)}, {vr(vB2B+(ks&1)*12+t*4,4)}, {vr(acc2(t,T),4)}")
    if ks + 2 < 16:
        rd2(ks + 2)
a(f"""v_add_u32 v{vT0}, s{sBASE}, v{vN}
v_lshlrev_b32 v{vT0}, 9, v{vT0}
v_lshl_add_u32 v{vT0}, v{vG}, 4, v{vT0}
v_add_u32 v{vT0}, s{sT1}, v{vT0}
s_mov_b32 s{sT2}, 8192
s_mov_b32 s{sT3}, 16384
s_nop 4
""")
for t in range(3):
    for r in range(4):
        a(f"v_cvt_pk_bf16_f32 v{vBB+t*4+r}, v{acc2(t,0)+r}, v{acc2(t,1)+r}")
    if t == 2:
        a("s_mov_b32 exec_lo, 0x00ff00ff\ns_mov_b32 exec_hi, 0x00ff00ff")
    so = ["0", f"s{sT2}", f"s{sT3}"][t]
    a(f"buffer_store_dwordx4 {vr(vBB+t*4,4)}, v{vT0}, {srd(rOUT)}, {so} offen")
a("s_mov_b64 exec, -1")
stamp()
a.label("L_end")
a("s_endpgm")

hdr = open("cdna_kernels/%s.s.ref" % NAME).read().split("; Override launch")[0]
out = hdr + f"""; @launch grid=({NB},1,1) block=(512,1,1) lds={LDS_BYTES}
.amdgcn_target "amdgcn-amd-amdhsa--gfx950"
.text
.globl {NAME}_kernel
.p2align 8
.type {NAME}_kernel,@function
{NAME}_kernel:
""" + "\n".join(a.lines) + f"""
.section .rodata,"a"
.p2align 6
.amdhsa_kernel {NAME}_kernel
  .amdhsa_next_free_vgpr {NVGPR}
  .amdhsa_next_free_sgpr 102
  .amdhsa_accum_offset {NVGPR}
  .amdhsa_group_segment_fixed_size 0
  .amdhsa_kernarg_size 88
  .amdhsa_user_sgpr_count 2
  .amdhsa_user_sgpr_kernarg_segment_ptr 1
  .amdhsa_system_sgpr_workgroup_id_x 1
.end_amdhsa_kernel
"""
dst = [x for x in sys.argv[1:] if not x.startswith("--")]
open(dst[0] if dst else f"cdna_kernels/{NAME}.s", "w").write(out)
```

```python
import sys

NAME = "gather_scatter__isomorphism_gin_2__graph"
NB = 250
R = 40
P = 80
EPP = 2000
CAP = 24
SEG = CAP * 4
TBL_BLOCK = P * SEG
NGR = NB * CAP // 4

CNT_OFF = 0
FLAG_OFF = 256
BK_OFF = 512
H_OFF = BK_OFF + 40 * 256
H_STR = 528
H1_OFF = H_OFF + 40 * H_STR
H1_STR = 1040
H1_END = H1_OFF + 40 * H1_STR
BT_OFF = H1_OFF
BC_OFF = BT_OFF + NB * SEG
LDS_BYTES = H1_END + 8 * H1_STR
assert BC_OFF + 1024 <= H1_END

OOB = 0x7F000000
STAMPS = "--stamps" in sys.argv


class Asm:
    def __init__(self):
        self.lines = []
        self.n = 0

    def __call__(self, s):
        for l in s.strip().split("\n"):
            self.lines.append("    " + l.strip())

    def label(self, l):
        self.lines.append(l + ":")

    def newlabel(self, p="L"):
        self.n += 1
        return f"{p}_{self.n}"


a = Asm()

sX, sSRC, sDST, sEPS, sW1, sB1, sW2, sB2 = 8, 10, 12, 14, 16, 18, 20, 22
sOUT, sDBG, sWS = 24, 26, 28
rX, rSRC, rDST, rW1, rW2, rOUT, rTBL = 32, 36, 40, 44, 48, 52, 56
sWAVE = 60
sSELLO, sSELHI = 61, 62
sT0, sT1, sT2, sT3 = 63, 64, 65, 66
sM0, sM1, sM2, sM3 = 68, 70, 72, 74
sRTAB, sCTAB = 76, 78
sRADDR, sRREM, sCREM, sCFIRST, sNG, sI, sNODE = 80, 81, 82, 83, 84, 85, 86
sRET = 88
sTILE = 90
sEXM = 92
sSTAMP = 94
sBASE = 96


def srd(r):
    return f"s[{r}:{r+3}]"


def sp(r):
    return f"s[{r}:{r+1}]"


def vr(r, n):
    return f"v[{r}:{r+n-1}]"


vTID, vLANE, vG, vN = 0, 1, 2, 3
vT0, vT1, vT2, vT3 = 4, 5, 6, 7
vASUM, vAFIRST, vGACC, vENT = 8, 12, 16, 20
vGOFF, vBKOFF, vHW, vG1B, vH1W, vG2B, vWOFF, vT4 = 24, 25, 26, 27, 28, 29, 30, 31
vB1, vB2 = 32, 40
vACC1, vBB = 44, 60
vRING = 76
vWSP = 124
vW = 128
NVGPR = 256

stamp_idx = [0]


def stamp():
    if "--dbgst" in sys.argv:
        i = stamp_idx[0]
        stamp_idx[0] += 1
        lst = [(120, 8 + i)]
        if i == 0: lst += [(0, 2), (249, 4), (79, 6)]
        if i == 7: lst += [(0, 3), (249, 5), (79, 7)]
        for wg, word in lst:
            l = a.newlabel("L_st")
            a(f"""s_cmp_lg_u32 s2, {wg}
            s_cbranch_scc1 {l}
            s_cmp_lg_u32 s{sWAVE}, 0
            s_cbranch_scc1 {l}
            s_memrealtime {sp(sSTAMP)}
            s_waitcnt lgkmcnt(0)
            v_mov_b32 v126, s{sSTAMP}
            v_mov_b32 v127, 0
            global_store_dword v127, v126, {sp(sDBG)} offset:{word*4}""")
            a.label(l)
        return
    if not STAMPS:
        return
    i = stamp_idx[0]
    stamp_idx[0] += 1
    a(f"""s_memrealtime {sp(sSTAMP)}
    s_waitcnt lgkmcnt(0)
    v_mov_b32 v126, s{sSTAMP}
    v_mov_b32 v127, s{sWAVE}
    v_lshlrev_b32 v127, 6, v127
    s_lshl_b32 s{sSTAMP+1}, s2, 9
    v_add_u32 v127, s{sSTAMP+1}, v127
    v_add_u32 v127, 0x800000, v127
    global_store_dword v127, v126, {sp(sWS)} offset:{i*4}""")


def f0reg(q):
    return vW + (q >> 2) * 8 + (q & 3)


def f1reg(q):
    return vW + (q >> 2) * 8 + 4 + (q & 3)


def xreg(q):
    return f0reg(q + 1) if q < 63 else vWSP


a(f"""s_cmp_ge_u32 s2, {NB}
s_cbranch_scc1 L_end
s_load_dwordx16 s[8:23], s[0:1], 0
s_load_dwordx4 s[24:27], s[0:1], 64
s_load_dwordx2 s[28:29], s[0:1], 80
v_and_b32 v{vLANE}, 63, v0
v_lshrrev_b32 v{vT0}, 6, v0
v_lshrrev_b32 v{vG}, 4, v{vLANE}
v_readfirstlane_b32 s{sWAVE}, v{vT0}
v_and_b32 v{vN}, 15, v0
s_mov_b32 s{sSELLO}, 0x05040100
s_mov_b32 s{sSELHI}, 0x07060302
s_mul_i32 s{sBASE}, s2, {R}
""")
a(f"""v_mov_b32 v{vENT}, {OOB}
v_mov_b32 v{vENT+1}, {OOB}
v_mov_b32 v{vENT+2}, {OOB}
v_mov_b32 v{vENT+3}, {OOB}
v_lshlrev_b32 v{vT0}, 4, v0
ds_write_b128 v{vT0}, {vr(vENT,4)} offset:{BK_OFF}
v_cmp_gt_u32 vcc, 128, v0
s_and_saveexec_b64 {sp(sM0)}, vcc
ds_write_b128 v{vT0}, {vr(vENT,4)} offset:{BK_OFF+8192}
s_mov_b64 exec, {sp(sM0)}
""")
a(f"""v_mov_b32 v{vBB}, 0xfc000
v_mov_b32 v{vBB+1}, 0xfc000
v_mov_b32 v{vBB+2}, 0xfc000
v_mov_b32 v{vBB+3}, 0xfc000
ds_write_b128 v{vT0}, {vr(vBB,4)} offset:{BT_OFF}
ds_write_b128 v{vT0}, {vr(vBB,4)} offset:{BT_OFF+8192}
v_cmp_gt_u32 vcc, {NGR-1024}, v0
s_and_saveexec_b64 {sp(sM0)}, vcc
ds_write_b128 v{vT0}, {vr(vBB,4)} offset:{BT_OFF+16384}
s_mov_b64 exec, {sp(sM0)}
v_mov_b32 v{vT1}, 0
v_lshlrev_b32 v{vT2}, 2, v0
v_cmp_gt_u32 vcc, 256, v0
s_and_saveexec_b64 {sp(sM0)}, vcc
ds_write_b32 v{vT2}, v{vT1} offset:{BC_OFF}
s_mov_b64 exec, {sp(sM0)}
s_waitcnt lgkmcnt(0)
s_barrier
""")
a(f"""v_cmp_gt_u32 vcc, {R}, v0
s_and_saveexec_b64 {sp(sM0)}, vcc
v_add_u32 v{vT1}, s{sBASE}, v0
v_lshlrev_b32 v{vT1}, 9, v{vT1}
v_lshlrev_b32 v{vT3}, 8, v0
ds_write_b32 v{vT3}, v{vT1} offset:{BK_OFF}
v_mov_b32 v{vT1}, 1
ds_write_b32 v{vT2}, v{vT1} offset:{CNT_OFF}
v_mov_b32 v{vT1}, 0
ds_write_b32 v{vT1}, v{vT1} offset:{FLAG_OFF}
s_mov_b64 exec, {sp(sM0)}
""")


def mksrd(r, p, size):
    a(f"""s_mov_b32 s{r}, s{p}
    s_and_b32 s{r+1}, s{p+1}, 0xffff
    s_mov_b32 s{r+2}, {size}
    s_mov_b32 s{r+3}, 0x00020000""")


mksrd(rX, sX, 5120000)
mksrd(rSRC, sSRC, 640000)
mksrd(rDST, sDST, 640000)
mksrd(rW1, sW1, 262144)
mksrd(rW2, sW2, 262144)
mksrd(rOUT, sOUT, 5120000)
mksrd(rTBL, sWS, NB * TBL_BLOCK)
stamp()

vD, vS = vRING, vRING + 4
vBI, vSL = vRING + 8, vRING + 12
a(f"""s_cmp_ge_u32 s2, {P}
s_cbranch_scc1 L_noprod
s_mul_i32 s{sT0}, s2, {EPP*4}
v_cmp_gt_u32 vcc, {EPP//4}, v0
s_and_saveexec_b64 {sp(sM0)}, vcc
buffer_load_dwordx4 {vr(vD,4)}, v{vT0}, {srd(rDST)}, s{sT0} offen
buffer_load_dwordx4 {vr(vS,4)}, v{vT0}, {srd(rSRC)}, s{sT0} offen
v_mov_b32 v{vT4}, 1
s_mov_b32 s{sT1}, {R}
s_mov_b32 s{sT2}, {SEG}
s_waitcnt vmcnt(1)
""")
for i in range(4):
    a(f"""v_mul_u32_u24 v{vBI+i}, 0xcccd, v{vD+i}
    v_lshrrev_b32 v{vBI+i}, 21, v{vBI+i}
    v_lshlrev_b32 v{vT1}, 2, v{vBI+i}
    ds_add_rtn_u32 v{vSL+i}, v{vT1}, v{vT4} offset:{BC_OFF}""")
a("s_waitcnt vmcnt(0)")
for i in range(4):
    a(f"""v_mul_u32_u24 v{vT1}, {R}, v{vBI+i}
    v_sub_u32 v{vT1}, v{vD+i}, v{vT1}
    v_lshl_or_b32 v{vS+i}, v{vT1}, 14, v{vS+i}
    v_mul_u32_u24 v{vBI+i}, {SEG}, v{vBI+i}""")
a("s_waitcnt lgkmcnt(0)\ns_mov_b64 %s, exec" % sp(sM1))
for i in range(4):
    a(f"""v_lshl_add_u32 v{vT1}, v{vSL+i}, 2, v{vBI+i}
    v_cmp_gt_u32 vcc, {CAP}, v{vSL+i}
    s_and_b64 exec, {sp(sM1)}, vcc
    ds_write_b32 v{vT1}, v{vS+i} offset:{BT_OFF}
    s_mov_b64 exec, {sp(sM1)}""")
a(f"""s_mov_b64 exec, {sp(sM0)}
s_waitcnt lgkmcnt(0)
s_barrier
s_mul_i32 s{sT0}, s2, {SEG}
s_mov_b32 s{sT1}, {TBL_BLOCK - SEG}
""")
for k in range(3):
    vE = vRING + 16 + 4 * k
    vC = vRING + 32 + k
    vA = vRING + 36 + k
    a(f"""v_add_u32 v{vT1}, {512*k}, v0
    v_mul_u32_u24 v{vT2}, 10923, v{vT1}
    v_lshrrev_b32 v{vT2}, 16, v{vT2}
    v_lshlrev_b32 v{vT3}, 2, v{vT2}
    ds_read_b128 {vr(vE,4)}, v{vT0} offset:{BT_OFF+8192*k}
    ds_read_b32 v{vC}, v{vT3} offset:{BC_OFF}
    v_lshlrev_b32 v{vT1}, 4, v{vT1}
    v_mad_u32_u24 v{vA}, v{vT2}, s{sT1}, v{vT1}""")
a(f"s_waitcnt lgkmcnt(0)\nv_mov_b32 v{vT3}, 0xf8000")
for k in range(3):
    vE = vRING + 16 + 4 * k
    vC = vRING + 32 + k
    vA = vRING + 36 + k
    a(f"""v_cmp_lt_u32 vcc, {CAP}, v{vC}
    s_nop 1
    v_cndmask_b32 v{vE}, v{vE}, v{vT3}, vcc""")
    if k == 2:
        a(f"""v_cmp_gt_u32 vcc, {NGR-1024}, v0
        s_and_saveexec_b64 {sp(sM0)}, vcc""")
    a(f"buffer_store_dwordx4 {vr(vE,4)}, v{vA}, {srd(rTBL)}, s{sT0} offen sc1")
a(f"""s_mov_b64 exec, {sp(sM0)}
s_waitcnt vmcnt(0)
s_barrier
v_cmp_eq_u32 vcc, 0, v0
s_and_saveexec_b64 {sp(sM0)}, vcc
s_cbranch_execz L_nosig
v_mov_b32 v{vT1}, 0
v_mov_b32 v{vT2}, 1
global_atomic_add v{vT1}, v{vT2}, {sp(sDBG)} sc1
""")
a.label("L_nosig")
a(f"s_mov_b64 exec, {sp(sM0)}")
a.label("L_noprod")
stamp()

a(f"""v_lshrrev_b32 v{vT0}, 1, v{vG}
v_and_b32 v{vT1}, 1, v{vG}
v_lshl_add_u32 v{vT2}, v{vT1}, 4, v{vT0}
""")
a(f"""v_and_b32 v{vGOFF}, 31, v{vLANE}
v_lshlrev_b32 v{vGOFF}, 4, v{vGOFF}
v_lshrrev_b32 v{vBKOFF}, 5, v{vLANE}
v_lshlrev_b32 v{vBKOFF}, 4, v{vBKOFF}
v_lshl_add_u32 v{vHW}, v{vT0}, 4, v{vN}
v_lshlrev_b32 v{vHW}, 4, v{vHW}
v_lshl_add_u32 v{vHW}, v{vT1}, 3, v{vHW}
v_mul_u32_u24 v{vG1B}, {H_STR}, v{vN}
v_lshl_add_u32 v{vG1B}, v{vT2}, 4, v{vG1B}
v_mul_u32_u24 v{vT3}, {H1_STR}, v{vN}
v_add_u32 v{vT3}, {H1_OFF}, v{vT3}
v_lshl_add_u32 v{vG2B}, v{vT2}, 4, v{vT3}
s_lshl_b32 s{sT0}, s{sWAVE}, 7
v_lshl_add_u32 v{vH1W}, v{vG}, 4, v{vT3}
v_add_u32 v{vH1W}, s{sT0}, v{vH1W}
""")
a(f"""v_lshlrev_b32 v{vWOFF}, 13, v{vT2}
v_lshl_add_u32 v{vWOFF}, v{vN}, 2, v{vWOFF}
v_add_u32 v{vWOFF}, s{sT0}, v{vWOFF}
""")
a(f"""v_lshlrev_b32 v{vT3}, 4, v{vG}
v_add_u32 v{vT4}, s{sT0}, v{vT3}
global_load_dwordx4 {vr(vB1,4)}, v{vT4}, {sp(sB1)}
global_load_dwordx4 {vr(vB1+4,4)}, v{vT4}, {sp(sB1)} offset:64
s_lshl_b32 s{sT1}, s{sWAVE}, 6
v_add_u32 v{vT4}, s{sT1}, v{vT3}
global_load_dwordx4 {vr(vB2,4)}, v{vT4}, {sp(sB2)}
v_mov_b32 v{vT3}, 0
global_load_ushort v{vGACC}, v{vT3}, {sp(sEPS)}
""")


def load_w(which, q0, q1):
    for q in range(q0, q1):
        jj = q & 3
        if which == 1:
            ks, cg = q >> 3, (q >> 2) & 1
            if (q & 7) == 0:
                a(f"s_mov_b32 s{sT2}, {ks*16384}\ns_mov_b32 s{sT3}, {ks*16384+4096}")
            for par in range(2):
                j = 2 * jj + par
                dst = xreg(q) if par == 0 else f1reg(q)
                so = sT2 if j < 4 else sT3
                a(f"buffer_load_dword v{dst}, v{vWOFF}, {srd(rW1)}, s{so} offen offset:{(j&3)*1024+cg*64}")
        else:
            ks = q >> 2
            if (q & 3) == 0:
                a(f"s_mov_b32 s{sT2}, {(ks&7)*8192+(ks>>3)*131072}")
            for par in range(2):
                j = 2 * jj + par
                dst = xreg(q) if par == 0 else f1reg(q)
                a(f"buffer_load_dword v{dst}, v{vWOFF}, {srd(rW2)}, s{sT2} offen offset:{j*512}")


def perm_w(q0, q1):
    for q in range(q0, q1):
        a(f"""v_perm_b32 v{f0reg(q)}, v{f1reg(q)}, v{xreg(q)}, s{sSELLO}
        v_perm_b32 v{f1reg(q)}, v{f1reg(q)}, v{xreg(q)}, s{sSELHI}""")


def load_perm_all(which):
    CH = 8
    load_w(which, 0, 24)
    for c in range(0, 64, CH):
        issued = min(64, c + 24)
        a(f"s_waitcnt vmcnt({(issued - (c + CH)) * 2})")
        perm_w(c, c + CH)
        if issued < 64:
            load_w(which, issued, issued + CH)


load_perm_all(1)

a(f"""v_lshlrev_b32 v{vGACC}, 16, v{vGACC}
v_add_f32 v{vGACC}, 1.0, v{vGACC}
v_cvt_pk_bf16_f32 v{vGACC}, v{vGACC}, v{vGACC}
v_and_b32 v{vGACC}, 0xffff, v{vGACC}
v_mov_b32 v{vGACC+1}, 0x3f80
v_cmp_gt_u32 vcc, 32, v{vLANE}
s_nop 1
v_cndmask_b32 v{vGACC}, v{vGACC+1}, v{vGACC}, vcc
v_and_b32 v{vT0}, 1, v{vN}
v_lshlrev_b32 v{vT0}, 4, v{vT0}
v_lshlrev_b32 v{vGACC}, v{vT0}, v{vGACC}
v_lshlrev_b32 v{vGACC+1}, v{vT0}, v{vGACC+1}
v_and_b32 v{vT1}, 1, v{vG}
v_lshlrev_b32 v{vT1}, 2, v{vT1}
v_lshrrev_b32 v{vT0}, 1, v{vN}
v_sub_u32 v{vT0}, v{vT0}, v{vT1}
""")
for r in range(4):
    a(f"""v_cmp_eq_u32 vcc, {r}, v{vT0}
    s_nop 1
    v_cndmask_b32 v{vASUM+r}, 0, v{vGACC+1}, vcc
    v_cndmask_b32 v{vAFIRST+r}, 0, v{vGACC}, vcc""")
stamp()

a(f"""s_cmp_lg_u32 s{sWAVE}, 0
s_cbranch_scc1 L_polled
s_mov_b32 s{sT0}, 0
v_mov_b32 v{vT1}, 0
""")
a.label("L_poll")
a(f"""global_load_dword v{vT2}, v{vT1}, {sp(sDBG)} sc1
s_waitcnt vmcnt(0)
v_readfirstlane_b32 s{sT1}, v{vT2}
s_add_u32 s{sT0}, s{sT0}, 1
s_cmp_ge_u32 s{sT1}, {P}
s_cbranch_scc1 L_polled
s_sleep 1
s_cmp_lt_u32 s{sT0}, 200000
s_cbranch_scc1 L_poll
v_mov_b32 v{vT2}, 1
ds_write_b32 v{vT1}, v{vT2} offset:{FLAG_OFF}
s_waitcnt lgkmcnt(0)
""")
a.label("L_polled")
a("s_barrier")
stamp()

vE = vRING
vLD = vRING + 4
vSL = vRING + 8
vAD = vRING + 12
masks = [sM0, sM1, sM2, sM3]
a(f"""v_mov_b32 v{vE}, 0xfc000
v_mov_b32 v{vE+1}, 0xfc000
v_mov_b32 v{vE+2}, 0xfc000
v_mov_b32 v{vE+3}, 0xfc000
s_mul_i32 s{sT0}, s2, {TBL_BLOCK}
v_lshlrev_b32 v{vT0}, 4, v0
v_cmp_gt_u32 vcc, {TBL_BLOCK//16}, v0
s_and_b64 exec, exec, vcc
buffer_load_dwordx4 {vr(vE,4)}, v{vT0}, {srd(rTBL)}, s{sT0} offen sc1
s_mov_b64 exec, -1
v_mov_b32 v{vT4}, 1
s_waitcnt vmcnt(0)
""")
for i in range(4):
    a(f"""v_bfe_u32 v{vLD+i}, v{vE+i}, 14, 6
    v_cmp_gt_u32 {sp(masks[i])}, {R}, v{vLD+i}
    v_lshlrev_b32 v{vAD+i}, 2, v{vLD+i}""")
for i in range(4):
    a(f"""s_mov_b64 exec, {sp(masks[i])}
    ds_add_rtn_u32 v{vSL+i}, v{vAD+i}, v{vT4} offset:{CNT_OFF}""")
a(f"""s_mov_b64 exec, -1
v_cmp_eq_u32 vcc, 62, v{vLD}
s_mov_b64 {sp(sEXM)}, vcc
""")
for i in range(4):
    a(f"""v_and_b32 v{vE+i}, 0x3fff, v{vE+i}
    v_lshlrev_b32 v{vE+i}, 9, v{vE+i}
    v_lshlrev_b32 v{vAD+i}, 8, v{vLD+i}""")
a("s_waitcnt lgkmcnt(0)")
for i in range(4):
    a(f"""v_and_b32 v{vT0}, 0x38, v{vSL+i}
    v_lshl_add_u32 v{vAD+i}, v{vT0}, 2, v{vAD+i}
    v_and_b32 v{vT0}, 1, v{vSL+i}
    v_lshl_add_u32 v{vAD+i}, v{vT0}, 4, v{vAD+i}
    v_and_b32 v{vT0}, 6, v{vSL+i}
    v_lshl_add_u32 v{vAD+i}, v{vT0}, 1, v{vAD+i}
    v_cmp_gt_u32 vcc, 64, v{vSL+i}
    s_andn2_b64 {sp(sT0+1)}, {sp(masks[i])}, vcc
    s_or_b64 {sp(sEXM)}, {sp(sEXM)}, {sp(sT0+1)}
    s_and_b64 exec, {sp(masks[i])}, vcc
    ds_write_b32 v{vAD+i}, v{vE+i} offset:{BK_OFF}
    s_mov_b64 exec, -1""")
a(f"""s_cmp_eq_u64 {sp(sEXM)}, 0
s_cbranch_scc1 L_noovf
v_mov_b32 v{vT1}, 0
ds_write_b32 v{vT1}, v{vT4} offset:{FLAG_OFF}
""")
a.label("L_noovf")
a(f"""s_waitcnt lgkmcnt(0)
s_barrier
""")
stamp()
a(f"""v_lshlrev_b32 v{vT0}, 2, v{vLANE}
ds_read_b32 v{vT1}, v{vT0} offset:{CNT_OFF}
v_mov_b32 v{vT2}, 0
ds_read_b32 v{vT3}, v{vT2} offset:{FLAG_OFF}
s_lshl_b32 s{sT0}, s{sWAVE}, 1
s_waitcnt lgkmcnt(0)
v_min_u32 v{vT1}, 64, v{vT1}
v_add_u32 v{vT1}, 7, v{vT1}
v_lshrrev_b32 v{vT1}, 3, v{vT1}
v_lshl_or_b32 v{vT1}, v{vLANE}, 4, v{vT1}
v_readfirstlane_b32 s{sT3}, v{vT3}
s_add_u32 s{sT1}, s{sWAVE}, 32
s_mov_b32 s{sRTAB+1}, 0
v_readlane_b32 s{sRTAB}, v{vT1}, s{sT1}
s_add_u32 s{sT1}, s{sT0}, 17
s_and_b32 s{sNG}, s{sRTAB}, 15
s_lshl_b64 {sp(sRTAB)}, {sp(sRTAB)}, 12
v_readlane_b32 s{sT2}, v{vT1}, s{sT1}
s_add_u32 s{sT1}, s{sT0}, 16
s_or_b32 s{sRTAB}, s{sRTAB}, s{sT2}
s_and_b32 s{sT2}, s{sT2}, 15
s_add_u32 s{sNG}, s{sNG}, s{sT2}
s_lshl_b64 {sp(sRTAB)}, {sp(sRTAB)}, 12
v_readlane_b32 s{sT2}, v{vT1}, s{sT1}
s_add_u32 s{sT1}, s{sT0}, 1
s_or_b32 s{sRTAB}, s{sRTAB}, s{sT2}
s_and_b32 s{sT2}, s{sT2}, 15
s_add_u32 s{sNG}, s{sNG}, s{sT2}
s_lshl_b64 {sp(sRTAB)}, {sp(sRTAB)}, 12
v_readlane_b32 s{sT2}, v{vT1}, s{sT1}
s_nop 0
s_or_b32 s{sRTAB}, s{sRTAB}, s{sT2}
s_and_b32 s{sT2}, s{sT2}, 15
s_add_u32 s{sNG}, s{sNG}, s{sT2}
s_lshl_b64 {sp(sRTAB)}, {sp(sRTAB)}, 12
v_readlane_b32 s{sT2}, v{vT1}, s{sT0}
s_nop 0
s_or_b32 s{sRTAB}, s{sRTAB}, s{sT2}
s_and_b32 s{sT2}, s{sT2}, 15
s_add_u32 s{sNG}, s{sNG}, s{sT2}
s_mov_b64 {sp(sCTAB)}, {sp(sRTAB)}
s_and_b32 s{sRREM}, s{sRTAB}, 15
s_mov_b32 s{sCREM}, s{sRREM}
s_and_b32 s{sRADDR}, s{sRTAB}, 0x3f0
s_lshl_b32 s{sRADDR}, s{sRADDR}, 4
s_mov_b32 s{sCFIRST}, 1
s_mov_b32 s{sI}, 0
s_mov_b32 s{sNODE}, 0
s_cmp_lg_u32 s{sT3}, 0
s_cbranch_scc1 L_slow
""")


def read_entries(dst):
    l = a.newlabel("L_adv")
    a(f"""v_add_u32 v{vT0}, s{sRADDR}, v{vBKOFF}
    ds_read_b128 {vr(dst,4)}, v{vT0} offset:{BK_OFF}
    s_add_u32 s{sRADDR}, s{sRADDR}, 32
    s_sub_u32 s{sRREM}, s{sRREM}, 1
    s_cmp_lg_u32 s{sRREM}, 0
    s_cbranch_scc1 {l}
    s_lshr_b64 {sp(sRTAB)}, {sp(sRTAB)}, 12
    s_and_b32 s{sRREM}, s{sRTAB}, 15
    s_and_b32 s{sRADDR}, s{sRTAB}, 0x3f0
    s_lshl_b32 s{sRADDR}, s{sRADDR}, 4""")
    a.label(l)


def issue_group(ent, slot):
    for j in range(4):
        a(f"v_add_u32 v{ent+j}, v{ent+j}, v{vGOFF}")
    for j in range(4):
        a(f"buffer_load_dwordx4 {vr(vRING+slot*16+j*4,4)}, v{ent+j}, {srd(rX)}, 0 offen")


read_entries(vBB)
read_entries(vBB + 4)
read_entries(vBB + 8)
read_entries(vENT)
a("s_waitcnt lgkmcnt(0)")
issue_group(vBB, 0)
issue_group(vBB + 4, 1)
issue_group(vBB + 8, 2)

a.label("L_gloop")
for slot in range(3):
    lw1, lw0, lgo = a.newlabel("L_w1"), a.newlabel("L_w0"), a.newlabel("L_go")
    lf, lc, lni, lnf = a.newlabel("L_f"), a.newlabel("L_c"), a.newlabel("L_ni"), a.newlabel("L_nf")
    b = vRING + slot * 16
    a(f"""s_sub_u32 s{sT0}, s{sNG}, s{sI}
    s_cmp_lt_u32 s{sT0}, 3
    s_cbranch_scc1 {lw1}
    s_waitcnt vmcnt(8)
    s_branch {lgo}""")
    a.label(lw1)
    a(f"""s_cmp_lt_u32 s{sT0}, 2
    s_cbranch_scc1 {lw0}
    s_waitcnt vmcnt(4)
    s_branch {lgo}""")
    a.label(lw0)
    a("s_waitcnt vmcnt(0)")
    a.label(lgo)
    a(f"""s_cmp_lg_u32 s{sCFIRST}, 0
    s_cbranch_scc1 {lf}
    v_mfma_f32_16x16x32_bf16 {vr(vGACC,4)}, {vr(vASUM,4)}, {vr(b,4)}, {vr(vGACC,4)}
    s_branch {lc}""")
    a.label(lf)
    a(f"v_mfma_f32_16x16x32_bf16 {vr(vGACC,4)}, {vr(vAFIRST,4)}, {vr(b,4)}, 0")
    a.label(lc)
    for j in range(1, 4):
        a(f"v_mfma_f32_16x16x32_bf16 {vr(vGACC,4)}, {vr(vASUM,4)}, {vr(b+4*j,4)}, {vr(vGACC,4)}")
    a(f"""s_mov_b32 s{sCFIRST}, 0
    s_cmp_lt_u32 s{sT0}, 4
    s_cbranch_scc1 {lni}
    s_waitcnt lgkmcnt(0)""")
    issue_group(vENT, slot)
    read_entries(vENT)
    a.label(lni)
    a(f"""s_add_u32 s{sI}, s{sI}, 1
    s_sub_u32 s{sCREM}, s{sCREM}, 1
    s_cmp_lg_u32 s{sCREM}, 0
    s_cbranch_scc1 {lnf}
    s_call_b64 {sp(sRET)}, L_final
    s_cmp_eq_u32 s{sNODE}, 5
    s_cbranch_scc1 L_gdone""")
    a.label(lnf)
a("s_branch L_gloop")

a.label("L_final")
a(f"""s_and_b32 s{sT0}, s{sCTAB}, 0x3f0
s_mul_i32 s{sT0}, s{sT0}, {H_STR//16}
s_lshr_b64 {sp(sCTAB)}, {sp(sCTAB)}, 12
s_and_b32 s{sCREM}, s{sCTAB}, 15
s_mov_b32 s{sCFIRST}, 1
s_add_u32 s{sNODE}, s{sNODE}, 1
v_add_u32 v{vT0}, s{sT0}, v{vHW}
s_nop 7
v_cvt_pk_bf16_f32 v{vT2}, v{vGACC}, v{vGACC+1}
v_cvt_pk_bf16_f32 v{vT3}, v{vGACC+2}, v{vGACC+3}
ds_write_b64 v{vT0}, {vr(vT2,2)} offset:{H_OFF}
s_cmp_eq_u32 s{sNODE}, 1
s_cbranch_scc1 L_fret
s_cmp_eq_u32 s{sNODE}, 3
s_cbranch_scc1 L_fret
s_lshr_b32 s{sTILE}, s{sNODE}, 1
s_sub_u32 s{sTILE}, s{sTILE}, 1
s_cmp_eq_u32 s{sNODE}, 5
s_cselect_b32 s{sTILE}, 2, s{sTILE}
s_cselect_b32 s{sEXM}, 0x00ff00ff, -1
s_mov_b32 s{sEXM+1}, s{sEXM}
s_mul_i32 s{sT0}, s{sTILE}, {16*H_STR}
s_mul_i32 s{sT1}, s{sTILE}, {16*H1_STR}
v_add_u32 v{vT0}, s{sT0}, v{vG1B}
v_add_u32 v{vT1}, s{sT1}, v{vH1W}
""")


def acc1(cg, T):
    return vACC1 + (cg * 2 + T) * 4


for cg in range(2):
    for r in range(4):
        a(f"""v_lshlrev_b32 v{acc1(cg,0)+r}, 16, v{vB1+cg*4+r}
        v_and_b32 v{acc1(cg,1)+r}, 0xffff0000, v{vB1+cg*4+r}""")
a("s_waitcnt lgkmcnt(0)\ns_barrier")
for ks in range(4):
    a(f"ds_read_b128 {vr(vBB+ks*4,4)}, v{vT0} offset:{H_OFF+ks*32}")
for ks in range(8):
    bb = vBB + (ks & 3) * 4
    n_out = min(3, 7 - ks)
    a(f"s_waitcnt lgkmcnt({n_out})")
    for cg in range(2):
        for T in range(2):
            fr = vW + (ks * 2 + cg) * 8 + T * 4
            a(f"v_mfma_f32_16x16x32_bf16 {vr(acc1(cg,T),4)}, {vr(fr,4)}, {vr(bb,4)}, {vr(acc1(cg,T),4)}")
    if ks + 4 < 8:
        a(f"ds_read_b128 {vr(bb,4)}, v{vT0} offset:{H_OFF+(ks+4)*32}")
a(f"s_nop 7\ns_mov_b64 exec, {sp(sEXM)}")
for cg in range(2):
    for r in range(4):
        a(f"""v_cvt_pk_bf16_f32 v{vBB+cg*4+r}, v{acc1(cg,0)+r}, v{acc1(cg,1)+r}
        v_pk_max_i16 v{vBB+cg*4+r}, v{vBB+cg*4+r}, 0""")
    a(f"ds_write_b128 v{vT1}, {vr(vBB+cg*4,4)} offset:{cg*64}")
a("s_mov_b64 exec, -1")
a.label("L_fret")
a(f"s_setpc_b64 {sp(sRET)}")

a.label("L_slow")
vSA = vRING
vSD, vSS, vSB = vRING + 20, vRING + 21, vRING + 24
vHOFF = vRING + 22
a(f"""v_mov_b32 v{vT0}, {OOB}
v_cmp_gt_u32 vcc, 32, v{vLANE}
s_nop 1
v_cndmask_b32 v{vHOFF}, v{vT0}, v{vGOFF}, vcc
s_mov_b64 {sp(sRTAB)}, {sp(sCTAB)}
""")
for n in range(5):
    a(f"""s_bfe_u32 s{sT0}, s{sRTAB}, 0x60004
    s_add_u32 s{sT0}, s{sT0}, s{sBASE}
    s_lshl_b32 s{sT0}, s{sT0}, 9
    buffer_load_dwordx4 {vr(vSB,4)}, v{vHOFF}, {srd(rX)}, s{sT0} offen
    s_lshr_b64 {sp(sRTAB)}, {sp(sRTAB)}, 12
    s_waitcnt vmcnt(0)
    v_mfma_f32_16x16x32_bf16 {vr(vSA+4*n,4)}, {vr(vAFIRST,4)}, {vr(vSB,4)}, 0
    s_nop 7""")
a(f"""s_mov_b32 s{sI}, 0
v_lshlrev_b32 v{vT1}, 2, v{vLANE}
""")
a.label("L_sloop")
a(f"""buffer_load_dword v{vSD}, v{vT1}, {srd(rDST)}, s{sI} offen
buffer_load_dword v{vSS}, v{vT1}, {srd(rSRC)}, s{sI} offen
s_mov_b64 {sp(sRTAB)}, {sp(sCTAB)}
s_waitcnt vmcnt(0)
v_lshlrev_b32 v{vSS}, 9, v{vSS}
""")
for n in range(5):
    l0, l1 = a.newlabel("L_s"), a.newlabel("L_s")
    a(f"""s_bfe_u32 s{sT0}, s{sRTAB}, 0x60004
    s_add_u32 s{sT0}, s{sT0}, s{sBASE}
    s_lshr_b64 {sp(sRTAB)}, {sp(sRTAB)}, 12
    v_cmp_eq_u32 {sp(sM0)}, s{sT0}, v{vSD}""")
    a.label(l0)
    a(f"""s_nop 3
    s_cmp_eq_u64 {sp(sM0)}, 0
    s_cbranch_scc1 {l1}
    s_ff1_i32_b64 s{sT1}, {sp(sM0)}
    s_bitset0_b64 {sp(sM0)}, s{sT1}
    v_readlane_b32 s{sT2}, v{vSS}, s{sT1}
    s_nop 4
    buffer_load_dwordx4 {vr(vSB,4)}, v{vHOFF}, {srd(rX)}, s{sT2} offen
    s_waitcnt vmcnt(0)
    v_mfma_f32_16x16x32_bf16 {vr(vSA+4*n,4)}, {vr(vASUM,4)}, {vr(vSB,4)}, {vr(vSA+4*n,4)}
    s_nop 7
    s_branch {l0}""")
    a.label(l1)
a(f"""s_add_u32 s{sI}, s{sI}, 256
s_cmp_lt_u32 s{sI}, 640000
s_cbranch_scc1 L_sloop
s_nop 7
""")
for n in range(5):
    for r in range(4):
        a(f"v_mov_b32 v{vGACC+r}, v{vSA+4*n+r}")
    a(f"s_call_b64 {sp(sRET)}, L_final")

a.label("L_gdone")
stamp()
a(f"""v_lshrrev_b32 v{vT0}, 1, v{vG}
v_and_b32 v{vT1}, 1, v{vG}
v_lshl_add_u32 v{vT2}, v{vT1}, 4, v{vT0}
v_lshlrev_b32 v{vWOFF}, 12, v{vT2}
v_lshl_add_u32 v{vWOFF}, v{vN}, 2, v{vWOFF}
s_lshl_b32 s{sT1}, s{sWAVE}, 6
v_add_u32 v{vWOFF}, s{sT1}, v{vWOFF}
""")
load_perm_all(2)
vACC2 = vRING
vB2B = vRING + 24


def acc2(t, T):
    return vACC2 + (t * 2 + T) * 4


for t in range(3):
    for r in range(4):
        a(f"""v_lshlrev_b32 v{acc2(t,0)+r}, 16, v{vB2+r}
        v_and_b32 v{acc2(t,1)+r}, 0xffff0000, v{vB2+r}""")
a("s_waitcnt lgkmcnt(0)\ns_barrier")
stamp()


def rd2(ks):
    for t in range(3):
        a(f"ds_read_b128 {vr(vB2B+(ks&1)*12+t*4,4)}, v{vG2B} offset:{t*16*H1_STR+(ks&7)*32+(ks>>3)*512}")


rd2(0)
rd2(1)
for ks in range(16):
    a(f"s_waitcnt lgkmcnt({3 if ks < 15 else 0})")
    for t in range(3):
        for T in range(2):
            fr = vW + ks * 8 + T * 4
            a(f"v_mfma_f32_16x16x32_bf16 {vr(acc2(t,T),4)}, {vr(fr,4)}, {vr(vB2B+(ks&1)*12+t*4,4)}, {vr(acc2(t,T),4)}")
    if ks + 2 < 16:
        rd2(ks + 2)
a(f"""v_add_u32 v{vT0}, s{sBASE}, v{vN}
v_lshlrev_b32 v{vT0}, 9, v{vT0}
v_lshl_add_u32 v{vT0}, v{vG}, 4, v{vT0}
v_add_u32 v{vT0}, s{sT1}, v{vT0}
s_mov_b32 s{sT2}, 8192
s_mov_b32 s{sT3}, 16384
s_nop 4
""")
for t in range(3):
    for r in range(4):
        a(f"v_cvt_pk_bf16_f32 v{vBB+t*4+r}, v{acc2(t,0)+r}, v{acc2(t,1)+r}")
    if t == 2:
        a("s_mov_b32 exec_lo, 0x00ff00ff\ns_mov_b32 exec_hi, 0x00ff00ff")
    so = ["0", f"s{sT2}", f"s{sT3}"][t]
    a(f"buffer_store_dwordx4 {vr(vBB+t*4,4)}, v{vT0}, {srd(rOUT)}, {so} offen")
a("s_mov_b64 exec, -1")
stamp()
a.label("L_end")
a("s_endpgm")

hdr = open("cdna_kernels/%s.s.ref" % NAME).read().split("; Override launch")[0]
out = hdr + f"""; @launch grid=({NB},1,1) block=(512,1,1) lds={LDS_BYTES}
.amdgcn_target "amdgcn-amd-amdhsa--gfx950"
.text
.globl {NAME}_kernel
.p2align 8
.type {NAME}_kernel,@function
{NAME}_kernel:
""" + "\n".join(a.lines) + f"""
.section .rodata,"a"
.p2align 6
.amdhsa_kernel {NAME}_kernel
  .amdhsa_next_free_vgpr {NVGPR}
  .amdhsa_next_free_sgpr 102
  .amdhsa_accum_offset {NVGPR}
  .amdhsa_group_segment_fixed_size 0
  .amdhsa_kernarg_size 88
  .amdhsa_user_sgpr_count 2
  .amdhsa_user_sgpr_kernarg_segment_ptr 1
  .amdhsa_system_sgpr_workgroup_id_x 1
.end_amdhsa_kernel
"""

if "--two" in sys.argv:
    body = "\n".join(a.lines)
    i_np = body.index("L_noprod:")
    k1 = body[:i_np]
    k1 = k1.replace(f"s_cmp_ge_u32 s2, {NB}", f"s_cmp_ge_u32 s2, {P}").replace("L_end", "K1_end").replace("L_noprod", "K1_end").replace("L_nosig", "K1_nosig")
    k1 = k1.replace(f"global_atomic_add v{vT1}, v{vT2}, {sp(sDBG)} sc1", "s_nop 0")
    k1 += "K1_end:\n    s_endpgm\n"
    k2 = body.replace(f"s_cmp_ge_u32 s2, {P}\n    s_cbranch_scc1 L_noprod", "s_branch L_noprod")
    k2 = k2.replace(f"s_cmp_lg_u32 s{sWAVE}, 0\n    s_cbranch_scc1 L_polled", "s_branch L_polled")
    desc = lambda n: f"""
.p2align 6
.amdhsa_kernel {n}
  .amdhsa_next_free_vgpr {NVGPR}
  .amdhsa_next_free_sgpr 102
  .amdhsa_accum_offset {NVGPR}
  .amdhsa_group_segment_fixed_size 0
  .amdhsa_kernarg_size 88
  .amdhsa_user_sgpr_count 2
  .amdhsa_user_sgpr_kernarg_segment_ptr 1
  .amdhsa_system_sgpr_workgroup_id_x 1
.end_amdhsa_kernel
"""
    out = hdr + f"""; @launch kernel=bin_kernel grid=({P},1,1) block=(512,1,1) lds={LDS_BYTES}
; @launch kernel={NAME}_kernel grid=({NB},1,1) block=(512,1,1) lds={LDS_BYTES}
.amdgcn_target "amdgcn-amd-amdhsa--gfx950"
.text
.globl bin_kernel
.p2align 8
.type bin_kernel,@function
bin_kernel:
""" + k1 + f"""
.globl {NAME}_kernel
.p2align 8
.type {NAME}_kernel,@function
{NAME}_kernel:
""" + k2 + """
.section .rodata,"a"
""" + desc("bin_kernel") + desc(NAME + "_kernel")
dst = [x for x in sys.argv[1:] if not x.startswith("--")]
open(dst[0] if dst else f"cdna_kernels/{NAME}.s", "w").write(out)
```

```python
import sys, re
NAME = "gather_scatter__isomorphism_gin_2__graph"
src, dst, ib, mult = sys.argv[1], sys.argv[2], int(sys.argv[3]), int(sys.argv[4])
wave = int(sys.argv[5]) if len(sys.argv) > 5 else 0
s = open(src).read()
m = re.search(r"; @launch (grid=.*)\n", s)
s = s.replace(m.group(0), f"; @launch kernel={NAME}_kernel {m.group(1)}\n; @launch kernel=diag_kernel grid=(1,1,1) block=(64,1,1) lds=0\n")
k2 = f"""
.globl diag_kernel
.p2align 8
.type diag_kernel,@function
diag_kernel:
    s_cmp_ge_u32 s2, 1
    s_cbranch_scc1 D_end
    s_load_dwordx2 s[4:5], s[0:1], 80
    s_memrealtime s[10:11]
    v_mov_b32 v10, -1
    v_mov_b32 v11, 0
    s_waitcnt lgkmcnt(0)
"""
for k in range(4):
    k2 += f"""    v_add_u32 v1, {64*k}, v0
    v_min_u32 v1, 249, v1
    v_lshlrev_b32 v1, 10, v1
    v_add_u32 v1, {0x800000 + wave*128}, v1
    global_load_dword v2, v1, s[4:5]
    global_load_dword v3, v1, s[4:5] offset:{ib*4}
    s_waitcnt vmcnt(0)
    v_min_u32 v10, v10, v2
    v_max_u32 v11, v11, v3
"""
k2 += f"""    s_mov_b32 s6, -1
    s_mov_b32 s7, 0
    s_mov_b32 s8, 0
D_red:
    v_readlane_b32 s12, v10, s8
    v_readlane_b32 s13, v11, s8
    s_nop 3
    s_min_u32 s6, s6, s12
    s_max_u32 s7, s7, s13
    s_add_u32 s8, s8, 1
    s_cmp_lt_u32 s8, 64
    s_cbranch_scc1 D_red
    s_sub_u32 s7, s7, s6
    s_min_u32 s7, s7, 20000
    s_mul_i32 s7, s7, {mult}
    s_add_u32 s7, s7, 2000
D_spin:
    s_memrealtime s[12:13]
    s_waitcnt lgkmcnt(0)
    s_sub_u32 s14, s12, s10
    s_cmp_lt_u32 s14, s7
    s_cbranch_scc1 D_spin
D_end:
    s_endpgm
"""
s = s.replace('.section .rodata,"a"', k2 + '.section .rodata,"a"')
s += """
.p2align 6
.amdhsa_kernel diag_kernel
  .amdhsa_next_free_vgpr 16
  .amdhsa_next_free_sgpr 32
  .amdhsa_accum_offset 16
  .amdhsa_group_segment_fixed_size 0
  .amdhsa_kernarg_size 88
  .amdhsa_user_sgpr_count 2
  .amdhsa_user_sgpr_kernarg_segment_ptr 1
  .amdhsa_system_sgpr_workgroup_id_x 1
.end_amdhsa_kernel
"""
open(dst, "w").write(s)
```

```python
import sys

NAME = "gather_scatter__isomorphism_gin_2__graph"
NB = 250
R = 40
P = 80
EPP = 2000
CAP = 24
SEG = CAP * 4
TBL_BLOCK = P * SEG
NGR = NB * CAP // 4
NH = 32
W2T_OFF = 0x200000
FLG_OFF = 0x280000
EPOCH_OFF = 0
TBL_OFF = 4096
TAGC = [0x000, 0x555, 0xAAA, 0x3C3]
FLGM = [0x9E3779B1, 0x85EBCA77, 0xC2B2AE3D, 0x27D4EB2F]
PRIV_OFF = 0x1000000
WS_BYTES = PRIV_OFF + NB * 262144

CNT_OFF = 0
FLAG_OFF = 256
BK_OFF = 512
H_OFF = BK_OFF + 40 * 256
H_STR = 528
H1_OFF = H_OFF + 40 * H_STR
H1_STR = 1040
BT_OFF = H_OFF
BC_OFF = BT_OFF + NB * SEG
ST_OFF = 36864
LDS_BYTES = ST_OFF + 8 * 12288
assert BC_OFF + 1024 <= ST_OFF and H1_OFF + 48 * H1_STR <= LDS_BYTES

OOB = 0x7F000000
STAMPS = "--stamps" in sys.argv
SPIN_MAX = 100000
RD = 4


class Asm:
    def __init__(self):
        self.lines = []
        self.n = 0

    def __call__(self, s):
        for l in s.strip().split("\n"):
            self.lines.append("    " + l.strip())

    def label(self, l):
        self.lines.append(l + ":")

    def newlabel(self, p="L"):
        self.n += 1
        return f"{p}_{self.n}"


a = Asm()

sX, sSRC, sDST, sEPS, sW1, sB1, sW2, sB2 = 8, 10, 12, 14, 16, 18, 20, 22
sOUT, sDBG, sWS = 24, 26, 28
rX, rSRC, rDST, rW1, rW2, rOUT, rWS = 32, 36, 40, 44, 48, 52, 56
sWAVE = 60
sSELLO = 61
sSTG = 62
sT0, sT1, sT2, sT3 = 63, 64, 65, 66
sW2T = 67
sM0, sM1, sM2, sM3 = 68, 70, 72, 74
sRTAB, sCTAB = 76, 78
sRADDR, sRREM, sCREM, sCFIRST, sNG, sI, sNODE = 80, 81, 82, 83, 84, 85, 86
sF = 87
sRET = 88
sEXM = 92
sSTAMP = 94
sBASE = 96
sST0 = 98
sEP = 30
sTAG = 4
sFT = 100


def srd(r):
    return f"s[{r}:{r+3}]"


def sp(r):
    return f"s[{r}:{r+1}]"


def vr(r, n):
    return f"v[{r}:{r+n-1}]"


vTID, vLANE, vG, vN = 0, 1, 2, 3
vT0, vT1, vT2, vT3 = 4, 5, 6, 7
vASUM, vAFIRST, vGACC, vENT = 8, 12, 16, 20
vGOFF, vBKOFF, vHW, vG1B, vH1W, vG2B, vU, vT4 = 24, 25, 26, 27, 28, 29, 30, 31
vB1, vB2 = 32, 40
vTK = 44
vL16 = 45
vFLG = 120
vRING = 48
vW = 128
NVGPR = 256

stamp_idx = [1]


def stamp(first=False):
    if not STAMPS:
        return
    i = stamp_idx[0]
    stamp_idx[0] += 1
    a(f"""s_memrealtime {sp(sSTAMP)}
    s_waitcnt lgkmcnt(0)
    v_mov_b32 v126, s{sSTAMP}
    v_mov_b32 v127, s{sWAVE}
    v_lshlrev_b32 v127, 6, v127
    s_lshl_b32 s{sSTAMP+1}, s2, 9
    v_add_u32 v127, s{sSTAMP+1}, v127
    v_add_u32 v127, 0x800000, v127
    global_store_dword v127, v126, {sp(sWS)} offset:{i*4}""")
    if first:
        a(f"""v_mov_b32 v125, s{sST0}
        global_store_dword v127, v125, {sp(sWS)}""")


a(f"""s_cmp_ge_u32 s2, {NB}
s_cbranch_scc1 L_end""")
if STAMPS:
    a(f"s_memrealtime {sp(sST0)}")
a(f"""s_load_dwordx16 s[8:23], s[0:1], 0
s_load_dwordx4 s[24:27], s[0:1], 64
s_load_dwordx2 s[28:29], s[0:1], 80
v_and_b32 v{vLANE}, 63, v0
v_lshrrev_b32 v{vT0}, 6, v0
v_lshrrev_b32 v{vG}, 4, v{vLANE}
v_readfirstlane_b32 s{sWAVE}, v{vT0}
v_and_b32 v{vN}, 15, v0
s_mov_b32 s{sSELLO}, 0x05040100
s_mul_i32 s{sBASE}, s2, {R}
v_lshlrev_b32 v{vL16}, 4, v{vLANE}
""")
a(f"""v_mov_b32 v{vENT+1}, {OOB}
v_mov_b32 v{vENT+2}, {OOB}
v_mov_b32 v{vENT+3}, {OOB}
v_lshrrev_b32 v{vT1}, 4, v0
v_add_u32 v{vT1}, s{sBASE}, v{vT1}
v_lshlrev_b32 v{vT1}, 9, v{vT1}
v_cmp_eq_u32 vcc, 0, v{vN}
v_lshlrev_b32 v{vT0}, 4, v0
v_add_u32 v{vT2}, {32*512}, v{vT1}
v_cndmask_b32 v{vENT}, v{vENT+1}, v{vT1}, vcc
ds_write_b128 v{vT0}, {vr(vENT,4)} offset:{BK_OFF}
v_cndmask_b32 v{vENT}, v{vENT+1}, v{vT2}, vcc
v_cmp_gt_u32 vcc, 128, v0
s_and_saveexec_b64 {sp(sM0)}, vcc
ds_write_b128 v{vT0}, {vr(vENT,4)} offset:{BK_OFF+8192}
v_lshlrev_b32 v{vT2}, 2, v0
v_cmp_gt_u32 vcc, 64, v0
v_mov_b32 v{vT1}, 0
v_mov_b32 v{vT3}, 1
v_cndmask_b32 v{vT1}, v{vT1}, v{vT3}, vcc
ds_write_b32 v{vT2}, v{vT1} offset:{CNT_OFF}
s_mov_b64 exec, {sp(sM0)}
""")
a(f"""s_cmp_ge_u32 s2, {P}
s_cbranch_scc1 L_noinit
v_mov_b32 v{vRING}, 0xfc000
v_mov_b32 v{vRING+1}, 0xfc000
v_mov_b32 v{vRING+2}, 0xfc000
v_mov_b32 v{vRING+3}, 0xfc000
ds_write_b128 v{vT0}, {vr(vRING,4)} offset:{BT_OFF}
ds_write_b128 v{vT0}, {vr(vRING,4)} offset:{BT_OFF+8192}
v_cmp_gt_u32 vcc, {NGR-1024}, v0
s_and_saveexec_b64 {sp(sM0)}, vcc
ds_write_b128 v{vT0}, {vr(vRING,4)} offset:{BT_OFF+16384}
s_mov_b64 exec, {sp(sM0)}
v_mov_b32 v{vT1}, 0
v_lshlrev_b32 v{vT2}, 2, v0
v_cmp_gt_u32 vcc, 256, v0
s_and_saveexec_b64 {sp(sM0)}, vcc
ds_write_b32 v{vT2}, v{vT1} offset:{BC_OFF}
s_mov_b64 exec, {sp(sM0)}
""")
a.label("L_noinit")

vOA, vOB = 112, 113
vTR = 114
a(f"""v_lshrrev_b32 v{vT1}, 1, v{vG}
v_and_b32 v{vT2}, 1, v{vG}
v_lshl_add_u32 v{vU}, v{vT2}, 4, v{vT1}
v_and_b32 v{vGOFF}, 31, v{vLANE}
v_lshlrev_b32 v{vGOFF}, 4, v{vGOFF}
v_lshrrev_b32 v{vBKOFF}, 5, v{vLANE}
v_lshlrev_b32 v{vBKOFF}, 4, v{vBKOFF}
v_lshl_add_u32 v{vHW}, v{vT1}, 4, v{vN}
v_lshlrev_b32 v{vHW}, 4, v{vHW}
v_lshl_add_u32 v{vHW}, v{vT2}, 3, v{vHW}
v_mul_u32_u24 v{vG1B}, {H_STR}, v{vN}
v_lshl_add_u32 v{vG1B}, v{vU}, 4, v{vG1B}
v_mul_u32_u24 v{vT3}, {H1_STR}, v{vN}
v_add_u32 v{vT3}, {H1_OFF}, v{vT3}
v_lshl_add_u32 v{vG2B}, v{vU}, 4, v{vT3}
s_lshl_b32 s{sT0}, s{sWAVE}, 7
v_lshl_add_u32 v{vH1W}, v{vG}, 4, v{vT3}
v_add_u32 v{vH1W}, s{sT0}, v{vH1W}
s_mul_i32 s{sSTG}, s{sWAVE}, 12288
s_add_u32 s{sSTG}, s{sSTG}, {ST_OFF}
""")
a(f"""v_lshrrev_b32 v{vT1}, 3, v{vLANE}
v_and_b32 v{vT3}, 2, v{vT1}
v_and_b32 v{vT4}, 7, v{vLANE}
v_xor_b32 v{vT4}, v{vT4}, v{vT3}
v_lshlrev_b32 v{vOA}, 10, v{vT1}
v_add_u32 v{vOA}, s{sT0}, v{vOA}
v_xor_b32 v{vT3}, 4, v{vT4}
v_lshl_add_u32 v{vOB}, v{vT3}, 4, v{vOA}
v_add_u32 v{vOB}, 0x20000, v{vOB}
v_lshl_add_u32 v{vOA}, v{vT4}, 4, v{vOA}
""")
a(f"""v_lshrrev_b32 v{vT1}, 2, v{vN}
v_and_b32 v{vT3}, 2, v{vT1}
v_lshl_add_u32 v{vT3}, v{vT2}, 2, v{vT3}
v_lshlrev_b32 v{vT4}, 10, v{vG}
v_lshl_add_u32 v{vT4}, v{vT1}, 7, v{vT4}
v_and_b32 v{vT1}, 3, v{vN}
v_lshl_add_u32 v{vT4}, v{vT1}, 3, v{vT4}
v_add_u32 v{vT4}, s{sSTG}, v{vT4}
""")
for T in range(4):
    a(f"""v_xor_b32 v{vT1}, {2*T}, v{vT3}
    v_lshl_add_u32 v{vTR+T}, v{vT1}, 4, v{vT4}""")
a("s_waitcnt lgkmcnt(0)")


def mksrd(r, p, size):
    a(f"""s_mov_b32 s{r}, s{p}
    s_and_b32 s{r+1}, s{p+1}, 0xffff
    s_mov_b32 s{r+2}, {size}
    s_mov_b32 s{r+3}, 0x00020000""")


a(f"s_load_dword s{sEP}, {sp(sWS)}, {EPOCH_OFF}")
mksrd(rSRC, sSRC, 640000)
mksrd(rDST, sDST, 640000)
mksrd(rW2, sW2, 262144)
vQ = vRING + 40


def frag_issue():
    a(f"""s_lshr_b32 s{sT0}, s{sF}, 1
    s_and_b32 s{sT1}, s{sT0}, 7
    s_lshl_b32 s{sT1}, s{sT1}, 1
    s_and_b32 s{sT0}, s{sT0}, 8
    s_lshl_b32 s{sT0}, s{sT0}, 2
    s_add_u32 s{sT1}, s{sT1}, s{sT0}
    v_add_u32 v{vT1}, s{sT1}, v{vU}
    v_lshrrev_b32 v{vT2}, 2, v{vT1}
    v_and_b32 v{vT1}, 3, v{vT1}
    v_lshlrev_b32 v{vT2}, 14, v{vT2}
    v_lshl_add_u32 v{vT2}, v{vT1}, 11, v{vT2}
    v_lshrrev_b32 v{vT1}, 2, v{vN}
    v_lshl_add_u32 v{vT2}, v{vT1}, 4, v{vT2}
    v_and_b32 v{vT1}, 3, v{vN}
    v_lshl_add_u32 v{vT2}, v{vT1}, 1, v{vT2}
    s_lshr_b32 s{sT0}, s{sF}, 5
    s_lshl_b32 s{sT0}, s{sT0}, 6
    s_and_b32 s{sT1}, s{sF}, 1
    s_lshl_b32 s{sT1}, s{sT1}, 3
    s_add_u32 s{sT0}, s{sT0}, s{sT1}
    s_add_u32 s{sT1}, s{sT0}, 8192
    """)
    for e in range(8):
        a(f"buffer_load_ushort v{vQ+e}, v{vT2}, {srd(rW2)}, s{sT0 if e<4 else sT1} offen offset:{(e&3)*512}")


def frag_finish(cnt):
    a(f"""s_lshl_b32 s{sT0}, s{sF}, 10
    s_add_u32 s{sT0}, s{sT0}, s{sW2T}
    s_waitcnt vmcnt({cnt})
    """)
    for e in range(4):
        a(f"v_lshl_or_b32 v{vQ+8+e}, v{vQ+2*e+1}, 16, v{vQ+2*e}")
    a(f"""buffer_store_dwordx4 {vr(vQ+8,4)}, v{vL16}, {srd(rWS)}, s{sT0} offen sc1
    s_nop 1""")


vD, vS = vRING, vRING + 4
vBI, vSL = vRING + 8, vRING + 12
a(f"""s_cmp_ge_u32 s2, {P}
s_cbranch_scc1 L_noload
s_mul_i32 s{sT0}, s2, {EPP*4}
v_cmp_gt_u32 vcc, {EPP//4}, v0
s_and_saveexec_b64 {sp(sM0)}, vcc
buffer_load_dwordx4 {vr(vD,4)}, v{vT0}, {srd(rDST)}, s{sT0} offen
buffer_load_dwordx4 {vr(vS,4)}, v{vT0}, {srd(rSRC)}, s{sT0} offen
s_mov_b64 exec, {sp(sM0)}
s_branch L_loaded
""")
a.label("L_noload")
a(f"""s_cmp_ge_u32 s2, {P+NH}
s_cbranch_scc1 L_loaded
s_sub_u32 s{sF}, s2, {P}
s_lshl_b32 s{sF}, s{sF}, 3
s_add_u32 s{sF}, s{sF}, s{sWAVE}
""")
frag_issue()
a.label("L_loaded")
mksrd(rW1, sW1, 262144)
mksrd(rX, sX, 5120000)
mksrd(rOUT, sOUT, 5120000)
mksrd(rWS, sWS, WS_BYTES)
a(f"s_mov_b32 s{sW2T}, {W2T_OFF}")


def dma_w1(ks):
    for g in range(4):
        a(f"""s_add_u32 m0, s{sSTG}, {(ks%3)*4096+g*1024}
        s_mov_b32 s{sT3}, {ks*16384+(g>>1)*8192}
        buffer_load_dwordx4 v{vOB if g&1 else vOA}, {srd(rW1)}, s{sT3} offen lds""")


for ks in range(3):
    dma_w1(ks)
a(f"""s_lshl_b32 s{sT0}, s{sWAVE}, 7
v_lshlrev_b32 v{vT3}, 3, v{vG}
v_add_u32 v{vT4}, s{sT0}, v{vT3}
global_load_dwordx2 {vr(vB1,2)}, v{vT4}, {sp(sB1)}
global_load_dwordx2 {vr(vB1+2,2)}, v{vT4}, {sp(sB1)} offset:32
global_load_dwordx2 {vr(vB1+4,2)}, v{vT4}, {sp(sB1)} offset:64
global_load_dwordx2 {vr(vB1+6,2)}, v{vT4}, {sp(sB1)} offset:96
s_lshl_b32 s{sT1}, s{sWAVE}, 6
v_lshlrev_b32 v{vT3}, 4, v{vG}
v_add_u32 v{vT4}, s{sT1}, v{vT3}
global_load_dwordx4 {vr(vB2,4)}, v{vT4}, {sp(sB2)}
v_mov_b32 v{vT3}, 0
global_load_ushort v{vGACC}, v{vT3}, {sp(sEPS)}
""")
NSMALL = 6
stamp(first=True)
NST = 2 if STAMPS else 0

a(f"s_waitcnt lgkmcnt(0)\ns_add_u32 s{sEP}, s{sEP}, 1\nv_mov_b32 v{vTK}, 0")
for i in range(4):
    a(f"s_add_u32 s{sTAG+i}, s{sEP}, {TAGC[i]}\ns_lshl_b32 s{sTAG+i}, s{sTAG+i}, 20")
a(f"""s_barrier
s_cmp_ge_u32 s2, {P+NH}
s_cbranch_scc1 L_roledone
s_cmp_ge_u32 s2, {P}
s_cbranch_scc1 L_noprod
v_cmp_gt_u32 vcc, {EPP//4}, v0
s_and_saveexec_b64 {sp(sM0)}, vcc
v_mov_b32 v{vT4}, 1
s_waitcnt vmcnt({13+NSMALL+NST})
""")
for i in range(4):
    a(f"""v_mul_u32_u24 v{vBI+i}, 0xcccd, v{vD+i}
    v_lshrrev_b32 v{vBI+i}, 21, v{vBI+i}
    v_lshlrev_b32 v{vT1}, 2, v{vBI+i}
    ds_add_rtn_u32 v{vSL+i}, v{vT1}, v{vT4} offset:{BC_OFF}""")
a(f"s_waitcnt vmcnt({12+NSMALL+NST})")
for i in range(4):
    a(f"""v_mul_u32_u24 v{vT1}, {R}, v{vBI+i}
    v_sub_u32 v{vT1}, v{vD+i}, v{vT1}
    v_lshl_or_b32 v{vS+i}, v{vT1}, 14, v{vS+i}
    v_mul_u32_u24 v{vBI+i}, {SEG}, v{vBI+i}""")
a("s_waitcnt lgkmcnt(0)\ns_mov_b64 %s, exec" % sp(sM1))
for i in range(4):
    a(f"""v_lshl_add_u32 v{vT1}, v{vSL+i}, 2, v{vBI+i}
    v_cmp_gt_u32 vcc, {CAP}, v{vSL+i}
    s_and_b64 exec, {sp(sM1)}, vcc
    ds_write_b32 v{vT1}, v{vS+i} offset:{BT_OFF}
    s_mov_b64 exec, {sp(sM1)}""")
a(f"""s_mov_b64 exec, {sp(sM0)}
s_mul_i32 s{sT0}, s2, {SEG}
s_add_u32 s{sT0}, s{sT0}, {TBL_OFF}
s_mov_b32 s{sT1}, {TBL_BLOCK - SEG}
""")
for k in range(3):
    vC = vRING + 32 + k
    vA = vRING + 36 + k
    a(f"""v_add_u32 v{vT1}, {512*k}, v0
    v_mul_u32_u24 v{vT2}, 10923, v{vT1}
    v_lshrrev_b32 v{vT2}, 16, v{vT2}
    v_lshlrev_b32 v{vC}, 2, v{vT2}
    v_lshlrev_b32 v{vT1}, 4, v{vT1}
    v_mad_u32_u24 v{vA}, v{vT2}, s{sT1}, v{vT1}""")
a(f"""v_mov_b32 v{vT3}, 0xf8000
s_waitcnt lgkmcnt(0)
s_barrier""")
for k in range(3):
    vE = vRING + 16 + 4 * k
    vC = vRING + 32 + k
    a(f"""ds_read_b128 {vr(vE,4)}, v{vT0} offset:{BT_OFF+8192*k}
    ds_read_b32 v{vC}, v{vC} offset:{BC_OFF}""")
for k in range(3):
    vE = vRING + 16 + 4 * k
    vC = vRING + 32 + k
    vA = vRING + 36 + k
    a(f"""s_waitcnt lgkmcnt({4-2*k})
    v_cmp_lt_u32 vcc, {CAP}, v{vC}
    s_nop 1
    v_cndmask_b32 v{vE}, v{vE}, v{vT3}, vcc""")
    for i in range(4):
        a(f"v_or_b32 v{vE+i}, s{sTAG+i}, v{vE+i}")
    if k == 2:
        a(f"""v_cmp_gt_u32 vcc, {NGR-1024}, v0
        s_and_saveexec_b64 {sp(sM0)}, vcc""")
    a(f"buffer_store_dwordx4 {vr(vE,4)}, v{vA}, {srd(rWS)}, s{sT0} offen sc1")
a(f"""s_mov_b64 exec, {sp(sM0)}
s_branch L_ticket
""")
a.label("L_noprod")
frag_finish(12 + NSMALL + NST)
a.label("L_ticket")
a(f"""s_cmp_lg_u32 s{sWAVE}, 7
s_cbranch_scc1 L_roledone
v_mov_b32 v{vT1}, 0
v_mov_b32 v{vT2}, 1
s_mov_b64 exec, 1
global_atomic_add v{vTK}, v{vT1}, v{vT2}, {sp(sDBG)} sc0 sc1
s_mov_b64 exec, -1
""")
a.label("L_roledone")
stamp()

for ks in range(8):
    issued = min(8, ks + 3)
    extra = NSMALL if ks < 3 else 0
    a(f"s_waitcnt vmcnt({(issued-ks-1)*4 + extra})")
    for T in range(4):
        for jh in range(2):
            d = vW + ks * 16 + T * 4 + jh * 2
            a(f"ds_read_b64_tr_b16 {vr(d,2)}, v{vTR+T} offset:{(ks%3)*4096+jh*512}")
    if ks + 3 < 8:
        a("s_waitcnt lgkmcnt(0)")
        dma_w1(ks + 3)

a(f"""v_lshlrev_b32 v{vGACC}, 16, v{vGACC}
v_add_f32 v{vGACC}, 1.0, v{vGACC}
v_cvt_pk_bf16_f32 v{vGACC}, v{vGACC}, v{vGACC}
v_and_b32 v{vGACC}, 0xffff, v{vGACC}
v_mov_b32 v{vGACC+1}, 0x3f80
v_cmp_gt_u32 vcc, 32, v{vLANE}
v_and_b32 v{vT0}, 1, v{vN}
v_lshlrev_b32 v{vT0}, 4, v{vT0}
v_cndmask_b32 v{vGACC}, v{vGACC+1}, v{vGACC}, vcc
v_lshlrev_b32 v{vGACC}, v{vT0}, v{vGACC}
v_lshlrev_b32 v{vGACC+1}, v{vT0}, v{vGACC+1}
v_and_b32 v{vT1}, 1, v{vG}
v_lshlrev_b32 v{vT1}, 2, v{vT1}
v_lshrrev_b32 v{vT0}, 1, v{vN}
v_sub_u32 v{vT0}, v{vT0}, v{vT1}
""")
for r in range(4):
    a(f"""v_cmp_eq_u32 vcc, {r}, v{vT0}
    s_nop 1
    v_cndmask_b32 v{vASUM+r}, 0, v{vGACC+1}, vcc
    v_cndmask_b32 v{vAFIRST+r}, 0, v{vGACC}, vcc""")
stamp()

a(f"""s_sub_u32 s{sT0}, s2, {P}
s_cmp_ge_u32 s{sT0}, {NH}
s_cbranch_scc1 L_nohsig
s_waitcnt vmcnt(0)
s_barrier
s_cmp_lg_u32 s{sWAVE}, 6
s_cbranch_scc1 L_nohsig
v_mov_b32 v{vT1}, 0
v_mov_b32 v{vT2}, 1
s_mov_b64 exec, 1
global_atomic_add v{vT3}, v{vT1}, v{vT2}, {sp(sDBG)} offset:128 sc0 sc1
s_mov_b64 exec, -1
s_waitcnt vmcnt(0)
v_readfirstlane_b32 s{sT0}, v{vT3}
s_nop 1
s_cmp_lg_u32 s{sT0}, {NH-1}
s_cbranch_scc1 L_nohsig
""")
for i in range(4):
    a(f"s_mul_i32 s{sT0}, s{sEP}, {FLGM[i]}\nv_mov_b32 v{vFLG+i}, s{sT0}")
a(f"v_lshlrev_b32 v{vT1}, 7, v{vLANE}")
for k in range(4):
    a(f"""s_mov_b32 s{sT0}, {FLG_OFF+k*8192}
    buffer_store_dwordx4 {vr(vFLG,4)}, v{vT1}, {srd(rWS)}, s{sT0} offen sc1""")
a.label("L_nohsig")

vE = vRING
vLD = vRING + 4
vSL = vRING + 8
vAD = vRING + 12
masks = [sM0, sM1, sM2, sM3]
a(f"""v_mov_b32 v{vE}, 0xfc000
v_mov_b32 v{vE+1}, 0xfc000
v_mov_b32 v{vE+2}, 0xfc000
v_mov_b32 v{vE+3}, 0xfc000
s_mul_i32 s{sT0}, s2, {TBL_BLOCK}
s_add_u32 s{sT0}, s{sT0}, {TBL_OFF}
v_lshlrev_b32 v{vT0}, 4, v0
v_cmp_gt_u32 vcc, {TBL_BLOCK//16}, v0
s_mov_b32 s{sT1}, 0
s_mov_b32 s{sT2}, 0x100000
v_mov_b32 v{vT4}, 1
s_mov_b64 exec, vcc
""")
a.label("L_poll")
a(f"""buffer_load_dwordx4 {vr(vE,4)}, v{vT0}, {srd(rWS)}, s{sT0} offen sc1
s_add_u32 s{sT1}, s{sT1}, 1
s_waitcnt vmcnt(0)
v_xor_b32 v{vE}, s{sTAG}, v{vE}
v_xor_b32 v{vE+1}, s{sTAG+1}, v{vE+1}
v_xor_b32 v{vE+2}, s{sTAG+2}, v{vE+2}
v_xor_b32 v{vE+3}, s{sTAG+3}, v{vE+3}
v_or3_b32 v{vT1}, v{vE}, v{vE+1}, v{vE+2}
v_or_b32 v{vT1}, v{vT1}, v{vE+3}
v_cmp_le_u32 vcc, s{sT2}, v{vT1}
s_and_b64 exec, exec, vcc
s_cbranch_execz L_polled
s_sleep 2
s_cmp_lt_u32 s{sT1}, {SPIN_MAX}
s_cbranch_scc1 L_poll
v_mov_b32 v{vE}, 0xf8000
v_mov_b32 v{vE+1}, 0xfc000
v_mov_b32 v{vE+2}, 0xfc000
v_mov_b32 v{vE+3}, 0xfc000
""")
a.label("L_polled")
a("s_mov_b64 exec, -1")
stamp()
for i in range(4):
    a(f"""v_bfe_u32 v{vLD+i}, v{vE+i}, 14, 6
    v_cmp_gt_u32 {sp(masks[i])}, {R}, v{vLD+i}
    v_lshlrev_b32 v{vAD+i}, 2, v{vLD+i}""")
for i in range(4):
    a(f"""s_mov_b64 exec, {sp(masks[i])}
    ds_add_rtn_u32 v{vSL+i}, v{vAD+i}, v{vT4} offset:{CNT_OFF}""")
a(f"""s_mov_b64 exec, -1
v_cmp_eq_u32 vcc, 62, v{vLD}
s_mov_b64 {sp(sEXM)}, vcc
""")
for i in range(4):
    a(f"""v_and_b32 v{vE+i}, 0x3fff, v{vE+i}
    v_lshlrev_b32 v{vE+i}, 9, v{vE+i}
    v_lshlrev_b32 v{vAD+i}, 8, v{vLD+i}""")
a("s_waitcnt lgkmcnt(0)")
for i in range(4):
    a(f"""v_and_b32 v{vT0}, 0x38, v{vSL+i}
    v_lshl_add_u32 v{vAD+i}, v{vT0}, 2, v{vAD+i}
    v_and_b32 v{vT0}, 1, v{vSL+i}
    v_lshl_add_u32 v{vAD+i}, v{vT0}, 4, v{vAD+i}
    v_and_b32 v{vT0}, 6, v{vSL+i}
    v_lshl_add_u32 v{vAD+i}, v{vT0}, 1, v{vAD+i}
    v_cmp_gt_u32 vcc, 64, v{vSL+i}
    s_andn2_b64 {sp(sT0+1)}, {sp(masks[i])}, vcc
    s_or_b64 {sp(sEXM)}, {sp(sEXM)}, {sp(sT0+1)}
    s_and_b64 exec, {sp(masks[i])}, vcc
    ds_write_b32 v{vAD+i}, v{vE+i} offset:{BK_OFF}
    s_mov_b64 exec, -1""")
a(f"""s_cmp_eq_u64 {sp(sEXM)}, 0
s_cbranch_scc1 L_noovf
v_mov_b32 v{vT1}, 0
ds_write_b32 v{vT1}, v{vT4} offset:{FLAG_OFF}
""")
a.label("L_noovf")
a(f"""s_waitcnt lgkmcnt(0)
s_barrier
""")
stamp()
a(f"""v_lshlrev_b32 v{vT0}, 2, v{vLANE}
ds_read_b32 v{vT1}, v{vT0} offset:{CNT_OFF}
v_mov_b32 v{vT2}, 0
ds_read_b32 v{vT3}, v{vT2} offset:{FLAG_OFF}
s_lshl_b32 s{sFT}, s2, 7
s_add_u32 s{sFT}, s{sFT}, {FLG_OFF}
s_mul_i32 s{sT0}, s{sWAVE}, 5
s_mov_b32 s{sRTAB}, 0
s_mov_b32 s{sRTAB+1}, 0
s_mov_b32 s{sNG}, 0
s_waitcnt lgkmcnt(0)
v_min_u32 v{vT1}, 64, v{vT1}
v_add_u32 v{vT1}, 7, v{vT1}
v_lshrrev_b32 v{vT1}, 3, v{vT1}
v_lshl_or_b32 v{vT1}, v{vLANE}, 4, v{vT1}
v_readfirstlane_b32 s{sT3}, v{vT3}
""")
for n in range(4, -1, -1):
    a(f"""s_add_u32 s{sT1}, s{sT0}, {n}
    v_readlane_b32 s{sT2}, v{vT1}, s{sT1}
    s_lshl_b64 {sp(sRTAB)}, {sp(sRTAB)}, 12
    s_nop 0
    s_or_b32 s{sRTAB}, s{sRTAB}, s{sT2}
    s_and_b32 s{sT2}, s{sT2}, 15
    s_add_u32 s{sNG}, s{sNG}, s{sT2}""")
a(f"""s_mov_b64 {sp(sCTAB)}, {sp(sRTAB)}
s_and_b32 s{sRREM}, s{sRTAB}, 15
s_mov_b32 s{sCREM}, s{sRREM}
s_and_b32 s{sRADDR}, s{sRTAB}, 0x3f0
s_lshl_b32 s{sRADDR}, s{sRADDR}, 4
s_mov_b32 s{sCFIRST}, 1
s_mov_b32 s{sI}, 0
s_mov_b32 s{sNODE}, 0
s_cmp_lg_u32 s{sT3}, 0
s_cbranch_scc1 L_slow
""")


def read_entries(dst):
    l = a.newlabel("L_adv")
    a(f"""v_add_u32 v{vT0}, s{sRADDR}, v{vBKOFF}
    ds_read_b128 {vr(dst,4)}, v{vT0} offset:{BK_OFF}
    s_add_u32 s{sRADDR}, s{sRADDR}, 32
    s_sub_u32 s{sRREM}, s{sRREM}, 1
    s_cmp_lg_u32 s{sRREM}, 0
    s_cbranch_scc1 {l}
    s_lshr_b64 {sp(sRTAB)}, {sp(sRTAB)}, 12
    s_and_b32 s{sRREM}, s{sRTAB}, 15
    s_and_b32 s{sRADDR}, s{sRTAB}, 0x3f0
    s_lshl_b32 s{sRADDR}, s{sRADDR}, 4""")
    a.label(l)


def issue_group(ent, slot):
    for j in range(4):
        a(f"v_add_u32 v{ent+j}, v{ent+j}, v{vGOFF}")
    for j in range(4):
        a(f"buffer_load_dwordx4 {vr(vRING+slot*16+j*4,4)}, v{ent+j}, {srd(rX)}, 0 offen")


vPE = 104
assert RD == 4
for s in range(RD):
    read_entries(vPE + 4 * s)
read_entries(vENT)
for s in range(RD):
    a(f"s_waitcnt lgkmcnt({RD-s})")
    issue_group(vPE + 4 * s, s)


def finalize():
    a(f"""s_and_b32 s{sT1}, s{sCTAB}, 0x3f0
    s_mul_i32 s{sT1}, s{sT1}, {H_STR//16}
    s_lshr_b64 {sp(sCTAB)}, {sp(sCTAB)}, 12
    s_and_b32 s{sCREM}, s{sCTAB}, 15
    s_mov_b32 s{sCFIRST}, 1
    s_add_u32 s{sNODE}, s{sNODE}, 1
    v_add_u32 v{vT1}, s{sT1}, v{vHW}
    s_nop 1
    v_cvt_pk_bf16_f32 v{vT2}, v{vGACC}, v{vGACC+1}
    v_cvt_pk_bf16_f32 v{vT3}, v{vGACC+2}, v{vGACC+3}
    ds_write_b64 v{vT1}, {vr(vT2,2)} offset:{H_OFF}""")


a.label("L_gloop")
for slot in range(RD):
    lgo = a.newlabel("L_go")
    ldr = a.newlabel("L_dr")
    lf, lc, lni, lnf = a.newlabel("L_f"), a.newlabel("L_c"), a.newlabel("L_ni"), a.newlabel("L_nf")
    b = vRING + slot * 16
    a(f"""s_sub_u32 s{sT0}, s{sNG}, s{sI}
    s_cmp_lt_u32 s{sT0}, {RD}
    s_cbranch_scc1 {ldr}
    s_waitcnt vmcnt({4*(RD-1)})
    s_branch {lgo}""")
    a.label(ldr)
    for k in range(RD - 1, 1, -1):
        ln = a.newlabel("L_dr")
        a(f"""s_cmp_lt_u32 s{sT0}, {k}
        s_cbranch_scc1 {ln}
        s_waitcnt vmcnt({4*(k-1)})
        s_branch {lgo}""")
        a.label(ln)
    a("s_waitcnt vmcnt(0)")
    a.label(lgo)
    a(f"""s_cmp_lg_u32 s{sCFIRST}, 0
    s_cbranch_scc1 {lf}
    v_mfma_f32_16x16x32_bf16 {vr(vGACC,4)}, {vr(vASUM,4)}, {vr(b,4)}, {vr(vGACC,4)}
    s_branch {lc}""")
    a.label(lf)
    a(f"v_mfma_f32_16x16x32_bf16 {vr(vGACC,4)}, {vr(vAFIRST,4)}, {vr(b,4)}, 0")
    a.label(lc)
    for j in range(1, 4):
        a(f"v_mfma_f32_16x16x32_bf16 {vr(vGACC,4)}, {vr(vASUM,4)}, {vr(b+4*j,4)}, {vr(vGACC,4)}")
    a(f"""s_mov_b32 s{sCFIRST}, 0
    s_cmp_lt_u32 s{sT0}, {RD+1}
    s_cbranch_scc1 {lni}
    s_waitcnt lgkmcnt(0)""")
    issue_group(vENT, slot)
    read_entries(vENT)
    a.label(lni)
    a(f"""s_add_u32 s{sI}, s{sI}, 1
    s_sub_u32 s{sCREM}, s{sCREM}, 1
    s_cmp_lg_u32 s{sCREM}, 0
    s_cbranch_scc1 {lnf}""")
    finalize()
    a(f"""s_cmp_eq_u32 s{sNODE}, 5
    s_cbranch_scc1 L_gdone""")
    a.label(lnf)
a("s_branch L_gloop")

a.label("L_slow")
vSA = vRING
vSD, vSS, vSB = vRING + 20, vRING + 21, vRING + 24
vHOFF = vRING + 22
a(f"""v_mov_b32 v{vT0}, {OOB}
v_cmp_gt_u32 vcc, 32, v{vLANE}
s_nop 1
v_cndmask_b32 v{vHOFF}, v{vT0}, v{vGOFF}, vcc
s_mov_b64 {sp(sRTAB)}, {sp(sCTAB)}
""")
for n in range(5):
    a(f"""s_bfe_u32 s{sT0}, s{sRTAB}, 0x60004
    s_add_u32 s{sT0}, s{sT0}, s{sBASE}
    s_lshl_b32 s{sT0}, s{sT0}, 9
    buffer_load_dwordx4 {vr(vSB,4)}, v{vHOFF}, {srd(rX)}, s{sT0} offen
    s_lshr_b64 {sp(sRTAB)}, {sp(sRTAB)}, 12
    s_waitcnt vmcnt(0)
    v_mfma_f32_16x16x32_bf16 {vr(vSA+4*n,4)}, {vr(vAFIRST,4)}, {vr(vSB,4)}, 0
    s_nop 7""")
a(f"""s_mov_b32 s{sI}, 0
v_lshlrev_b32 v{vT1}, 2, v{vLANE}
""")
a.label("L_sloop")
a(f"""buffer_load_dword v{vSD}, v{vT1}, {srd(rDST)}, s{sI} offen
buffer_load_dword v{vSS}, v{vT1}, {srd(rSRC)}, s{sI} offen
s_mov_b64 {sp(sRTAB)}, {sp(sCTAB)}
s_waitcnt vmcnt(0)
v_lshlrev_b32 v{vSS}, 9, v{vSS}
""")
for n in range(5):
    l0, l1 = a.newlabel("L_s"), a.newlabel("L_s")
    a(f"""s_bfe_u32 s{sT0}, s{sRTAB}, 0x60004
    s_add_u32 s{sT0}, s{sT0}, s{sBASE}
    s_lshr_b64 {sp(sRTAB)}, {sp(sRTAB)}, 12
    v_cmp_eq_u32 {sp(sM0)}, s{sT0}, v{vSD}""")
    a.label(l0)
    a(f"""s_nop 3
    s_cmp_eq_u64 {sp(sM0)}, 0
    s_cbranch_scc1 {l1}
    s_ff1_i32_b64 s{sT1}, {sp(sM0)}
    s_bitset0_b64 {sp(sM0)}, s{sT1}
    v_readlane_b32 s{sT2}, v{vSS}, s{sT1}
    s_nop 4
    buffer_load_dwordx4 {vr(vSB,4)}, v{vHOFF}, {srd(rX)}, s{sT2} offen
    s_waitcnt vmcnt(0)
    v_mfma_f32_16x16x32_bf16 {vr(vSA+4*n,4)}, {vr(vASUM,4)}, {vr(vSB,4)}, {vr(vSA+4*n,4)}
    s_nop 7
    s_branch {l0}""")
    a.label(l1)
a(f"""s_add_u32 s{sI}, s{sI}, 256
s_cmp_lt_u32 s{sI}, 640000
s_cbranch_scc1 L_sloop
s_nop 7
""")
for n in range(5):
    for r in range(4):
        a(f"v_mov_b32 v{vGACC+r}, v{vSA+4*n+r}")
    finalize()

a.label("L_gdone")
stamp()
a(f"""s_mov_b32 s{sT3}, 0
v_mov_b32 v{vT1}, 0
""")
a.label("L_poll2")
a(f"""buffer_load_dwordx4 {vr(vFLG,4)}, v{vT1}, {srd(rWS)}, s{sFT} offen sc1
s_add_u32 s{sT3}, s{sT3}, 1
s_waitcnt vmcnt(0)
""")
for i in range(4):
    a(f"s_mul_i32 s{sT0}, s{sEP}, {FLGM[i]}\nv_xor_b32 v{vFLG+i}, s{sT0}, v{vFLG+i}")
a(f"""v_or3_b32 v{vT2}, v{vFLG}, v{vFLG+1}, v{vFLG+2}
v_or_b32 v{vT2}, v{vT2}, v{vFLG+3}
s_nop 0
v_readfirstlane_b32 s{sT1}, v{vT2}
s_nop 1
s_cmp_eq_u32 s{sT1}, 0
s_cbranch_scc1 L_w2ok
s_sleep 2
s_cmp_lt_u32 s{sT3}, {SPIN_MAX}
s_cbranch_scc1 L_poll2
s_lshl_b32 s{sW2T}, s2, 18
s_add_u32 s{sW2T}, s{sW2T}, {PRIV_OFF}
s_lshl_b32 s{sF}, s{sWAVE}, 5
""")
a.label("L_selfw2")
frag_issue()
frag_finish(0)
a(f"""s_add_u32 s{sF}, s{sF}, 1
s_and_b32 s{sT0}, s{sF}, 31
s_cmp_lg_u32 s{sT0}, 0
s_cbranch_scc1 L_selfw2
s_waitcnt vmcnt(0)
""")
a.label("L_w2ok")

vACC1 = vRING
vBB = vRING + 48


def acc1(t, T):
    return vACC1 + (t * 4 + T) * 4


for T in range(4):
    for hh in range(2):
        a(f"""v_lshlrev_b32 v{acc1(2,T)+2*hh}, 16, v{vB1+2*T+hh}
        v_and_b32 v{acc1(2,T)+2*hh+1}, 0xffff0000, v{vB1+2*T+hh}""")
a(f"""s_lshl_b32 s{sT0}, s{sWAVE}, 15
s_add_u32 s{sW2T}, s{sW2T}, s{sT0}
s_waitcnt lgkmcnt(0)
s_barrier""")
stamp()


def rd1(ks):
    for t in range(3):
        a(f"ds_read_b128 {vr(vBB+(ks&1)*12+t*4,4)}, v{vG1B} offset:{H_OFF+t*16*H_STR+ks*32}")


rd1(0)
rd1(1)
for ks in range(8):
    a(f"s_waitcnt lgkmcnt({3 if ks < 7 else 0})")
    for t in range(3):
        for T in range(4):
            fr = vW + ks * 16 + T * 4
            c = acc1(2, T) if ks == 0 else acc1(t, T)
            a(f"v_mfma_f32_16x16x32_bf16 {vr(acc1(t,T),4)}, {vr(fr,4)}, {vr(vBB+(ks&1)*12+t*4,4)}, {vr(c,4)}")
    if ks + 2 < 8:
        rd1(ks + 2)
    for q in range(4):
        a(f"buffer_load_dwordx4 {vr(vW+ks*16+q*4,4)}, v{vL16}, {srd(rWS)}, s{sW2T} offen offset:{q*1024} sc1")
    a(f"s_add_u32 s{sW2T}, s{sW2T}, 4096")
a("s_nop 2")
for t in range(3):
    if t == 2:
        a("s_mov_b32 exec_lo, 0x00ff00ff\ns_mov_b32 exec_hi, 0x00ff00ff")
    for aa in range(2):
        o = vBB + (t * 2 + aa) * 4
        for hT in range(2):
            for hh in range(2):
                s0 = acc1(t, 2 * aa + hT) + 2 * hh
                a(f"""v_cvt_pk_bf16_f32 v{o+2*hT+hh}, v{s0}, v{s0+1}
                v_pk_max_i16 v{o+2*hT+hh}, v{o+2*hT+hh}, 0""")
        a(f"ds_write_b128 v{vH1W}, {vr(o,4)} offset:{t*16*H1_STR+aa*64}")
a("s_mov_b64 exec, -1")

vACC2 = vRING
vB2B = vRING + 24


def acc2(t, T):
    return vACC2 + (t * 2 + T) * 4


for T in range(2):
    for hh in range(2):
        a(f"""v_lshlrev_b32 v{acc2(2,T)+2*hh}, 16, v{vB2+2*T+hh}
        v_and_b32 v{acc2(2,T)+2*hh+1}, 0xffff0000, v{vB2+2*T+hh}""")
a("s_waitcnt lgkmcnt(0)\ns_barrier")
stamp()
NST2 = 1 if STAMPS else 0


def rd2(ks):
    for t in range(3):
        a(f"ds_read_b128 {vr(vB2B+(ks&1)*12+t*4,4)}, v{vG2B} offset:{t*16*H1_STR+(ks&7)*32+(ks>>3)*512}")


rd2(0)
rd2(1)
a(f"""v_add_u32 v{vT0}, s{sBASE}, v{vN}
v_lshlrev_b32 v{vT0}, 9, v{vT0}
v_lshl_add_u32 v{vT0}, v{vG}, 4, v{vT0}
s_lshl_b32 s{sT1}, s{sWAVE}, 6
v_add_u32 v{vT0}, s{sT1}, v{vT0}
s_mov_b32 s{sT2}, 8192
s_mov_b32 s{sT3}, 16384
""")
for ks in range(16):
    a(f"s_waitcnt vmcnt({30-2*ks+NST2}) lgkmcnt({3 if ks < 15 else 0})")
    for t in range(3):
        for T in range(2):
            fr = vW + ks * 8 + T * 4
            c = acc2(2, T) if ks == 0 else acc2(t, T)
            a(f"v_mfma_f32_16x16x32_bf16 {vr(acc2(t,T),4)}, {vr(fr,4)}, {vr(vB2B+(ks&1)*12+t*4,4)}, {vr(c,4)}")
    if ks + 2 < 16:
        rd2(ks + 2)
a("s_nop 3")
vO = vRING + 48
for t in range(3):
    for T in range(2):
        for hh in range(2):
            s0 = acc2(t, T) + 2 * hh
            a(f"v_cvt_pk_bf16_f32 v{vO+t*4+2*T+hh}, v{s0}, v{s0+1}")
    if t == 2:
        a("s_mov_b32 exec_lo, 0x00ff00ff\ns_mov_b32 exec_hi, 0x00ff00ff")
    so = ["0", f"s{sT2}", f"s{sT3}"][t]
    a(f"buffer_store_dwordx4 {vr(vO+t*4,4)}, v{vT0}, {srd(rOUT)}, {so} offen")
a(f"""s_mov_b64 exec, 1
v_readfirstlane_b32 s{sT0}, v{vTK}
v_mov_b32 v{vT1}, s{sEP}
v_mov_b32 v{vT2}, {EPOCH_OFF}
s_cmp_lg_u32 s{sT0}, {P+NH-1}
s_cbranch_scc1 L_noep
buffer_store_dword v{vT1}, v{vT2}, {srd(rWS)}, 0 offen sc1
""")
a.label("L_noep")
a("s_mov_b64 exec, -1")
stamp()
a.label("L_end")
a("s_endpgm")

hdr = open("cdna_kernels/%s.s.ref" % NAME).read().split("; Override launch")[0]
out = hdr + f"""; @launch grid=({NB},1,1) block=(512,1,1) lds={LDS_BYTES}
.amdgcn_target "amdgcn-amd-amdhsa--gfx950"
.text
.globl {NAME}_kernel
.p2align 8
.type {NAME}_kernel,@function
{NAME}_kernel:
""" + "\n".join(a.lines) + f"""
.section .rodata,"a"
.p2align 6
.amdhsa_kernel {NAME}_kernel
  .amdhsa_next_free_vgpr {NVGPR}
  .amdhsa_next_free_sgpr 102
  .amdhsa_accum_offset {NVGPR}
  .amdhsa_group_segment_fixed_size 0
  .amdhsa_kernarg_size 88
  .amdhsa_user_sgpr_count 2
  .amdhsa_user_sgpr_kernarg_segment_ptr 1
  .amdhsa_system_sgpr_workgroup_id_x 1
.end_amdhsa_kernel
"""
dst = [x for x in sys.argv[1:] if not x.startswith("--")]
open(dst[0] if dst else f"cdna_kernels/{NAME}.s", "w").write(out)
print("stamps:", stamp_idx[0])
```

```python
import sys

NAME = "gather_scatter__isomorphism_gin_2__graph"
NB = 250
R = 40
EPP = 640
CAP = 16
TBL_BLOCK = 16384
NH = 32
HB = 8
EPOCH_OFF = 0
W2T_OFF = 0x10000
FLG_OFF = 0x50000
TBL_OFF = 0x80000
PRIV_OFF = 0x1000000
WS_BYTES = PRIV_OFF + NB * 262144
TAGC = [0x000, 0x555, 0xAAA, 0x3C3]
FLGM = [0x9E3779B1, 0x85EBCA77]
EMPTY = 0xfc000
OVFM = 0xf8000

CNT_OFF = 0
FLAG_OFF = 256
DONE_OFF = 260
B1F_OFF = 512
B2F_OFF = 2560
BK_OFF = 3584
H_OFF = BK_OFF + 10240
H_STR = 528
LIST_OFF = H_OFF + 40 * H_STR
H1_OFF = LIST_OFF + 8192
H1_STR = 1040
BT_OFF = H1_OFF
BC_OFF = BT_OFF + 16384
NSL = 3
ST_OFF = BC_OFF + 1024
LDS_BYTES = ST_OFF + 8 * NSL * 4096
assert H1_OFF + 48 * H1_STR <= LDS_BYTES <= 163840 and ST_OFF % 128 == 0

OOB = 0x7F000000
STAMPS = "--stamps" in sys.argv
SPIN_MAX = 100000
RD = 4


def opt(name, default):
    for x in sys.argv:
        if x.startswith("--" + name + "="):
            return int(x.split("=")[1])
    return default


PSLEEP = opt("psleep", 4)
OWNPOS = opt("ownpos", 0)
POLLK = opt("pollk", 2)
CHKK = opt("chkk", 4)
W1T = opt("w1t", 1)
E1 = opt("e1", 10)
G1LD = opt("g1ld", 1)


class Asm:
    def __init__(self):
        self.lines = []
        self.n = 0

    def __call__(self, s):
        for l in s.strip().split("\n"):
            self.lines.append("    " + l.strip())

    def label(self, l):
        self.lines.append(l + ":")

    def newlabel(self, p="L"):
        self.n += 1
        return f"{p}_{self.n}"


a = Asm()

sTMO = 3
sTAG = 4
sX, sSRC, sDST, sEPS, sW1, sB1, sW2, sB2 = 8, 10, 12, 14, 16, 18, 20, 22
sOUT, sDBG, sWS = 24, 26, 28
sEP, sKS = 30, 31
rX, rSRC, rDST, rW1, rW2, rOUT, rWS = 32, 36, 40, 44, 48, 52, 56
sWAVE = 60
sROT = 61
sSTG = 62
sT0, sT1, sT2, sT3 = 63, 64, 65, 66
sW2T = 67
sM0, sM1, sM2, sM3 = 68, 70, 72, 74
sMASK, sMASK2 = 76, 78
sREM, sI, sNODE, sPC, sEPSF, sF = 80, 81, 82, 83, 86, 87
sRET = 88
sPM = 90
sEXM = 92
sSTAMP = 94
sBASE = 96
sW2K = 97
sST0 = 98
sFT = 100
sE = 8
sSB = 14
sROWT = 20
sRW = 22


def srd(r):
    return f"s[{r}:{r+3}]"


def sp(r):
    return f"s[{r}:{r+1}]"


def vr(r, n):
    return f"v[{r}:{r+n-1}]"


vLANE, vG, vN = 1, 2, 3
vOUTA, vFLG = 0, 2
vT0, vT1, vT2, vT3 = 4, 5, 6, 7
vASUM, vGACC, vENT = 8, 12, 16
vGOFF, vLADDR, vHW, vG1B, vH1W, vG2B, vSTV, vT4, vL16, vBIA, vOWN = 20, 21, 22, 23, 24, 25, 26, 27, 28, 29, 30
vRING = 32
vW = 128
NVGPR = 256
vOA, vOB = 122, 123
vTR = 124
vT16 = 120
vU = 121
vOR = 96
vBL = 108
vQ = 80
vPA = 119

stamp_idx = [1]
stamp_names = ["entry"]


def stamp(name="s"):
    if not STAMPS:
        return
    idx = stamp_idx[0]
    stamp_idx[0] += 1
    stamp_names.append(name)
    a(f"""{'s_memtime' if '--cyc' in sys.argv else 's_memrealtime'} {sp(sSTAMP)}
    s_waitcnt lgkmcnt(0)
    v_writelane_b32 v{vSTV}, s{sSTAMP}, {idx}""")


def mksrd(r, p, size):
    a(f"""s_mov_b32 s{r}, s{p}
    s_and_b32 s{r+1}, s{p+1}, 0xffff
    s_mov_b32 s{r+2}, {size}
    s_mov_b32 s{r+3}, 0x00020000""")


a(f"""s_cmp_ge_u32 s2, {NB}
s_cbranch_scc1 L_end""")
if STAMPS:
    a(f"s_memrealtime {sp(sST0)}\nv_mov_b32 v{vSTV}, 0")
a(f"""s_load_dwordx16 s[8:23], s[0:1], 0
s_load_dwordx4 s[24:27], s[0:1], 64
s_load_dwordx2 s[28:29], s[0:1], 80
v_and_b32 v{vLANE}, 63, v0
v_lshrrev_b32 v{vT0}, 6, v0
v_lshrrev_b32 v{vG}, 4, v{vLANE}
v_readfirstlane_b32 s{sWAVE}, v{vT0}
v_and_b32 v{vN}, 15, v0
s_mul_i32 s{sBASE}, s2, {R}
v_lshlrev_b32 v{vL16}, 4, v{vLANE}
v_lshlrev_b32 v{vT16}, 4, v0
v_mov_b32 v{vRING}, {EMPTY}
v_mov_b32 v{vRING+1}, {EMPTY}
v_mov_b32 v{vRING+2}, {EMPTY}
v_mov_b32 v{vRING+3}, {EMPTY}
ds_write_b128 v{vT16}, {vr(vRING,4)} offset:{BT_OFF}
ds_write_b128 v{vT16}, {vr(vRING,4)} offset:{BT_OFF+8192}
v_mov_b32 v{vENT}, {OOB}
v_mov_b32 v{vENT+1}, {OOB}
v_mov_b32 v{vENT+2}, {OOB}
v_mov_b32 v{vENT+3}, {OOB}
ds_write_b128 v{vT16}, {vr(vENT,4)} offset:{BK_OFF}
v_mov_b32 v{vT1}, 0
v_lshlrev_b32 v{vT2}, 2, v0
v_cmp_gt_u32 vcc, 256, v0
s_and_saveexec_b64 {sp(sM0)}, vcc
ds_write_b32 v{vT2}, v{vT1} offset:{BC_OFF}
v_cmp_gt_u32 vcc, 128, v0
s_and_b64 exec, exec, vcc
ds_write_b128 v{vT16}, {vr(vENT,4)} offset:{BK_OFF+8192}
ds_write_b32 v{vT2}, v{vT1} offset:{CNT_OFF}
s_mov_b64 exec, {sp(sM0)}
s_mul_i32 s{sT0}, s2, {EPP*4}
s_mul_i32 s{sT1}, s{sWAVE}, 320
s_add_u32 s{sT0}, s{sT0}, s{sT1}
v_lshlrev_b32 v{vT2}, 2, v{vLANE}
s_lshr_b32 s{sROT}, s2, 3
s_mov_b32 s{rSRC+2}, 640000
s_mov_b32 s{rSRC+3}, 0x00020000
s_mov_b32 s{rDST+2}, 640000
s_mov_b32 s{rDST+3}, 0x00020000
s_waitcnt lgkmcnt(0)
s_mov_b32 s{rDST}, s{sDST}
s_and_b32 s{rDST+1}, s{sDST+1}, 0xffff
s_mov_b32 s{rSRC}, s{sSRC}
s_and_b32 s{rSRC+1}, s{sSRC+1}, 0xffff
""")
vD, vS, vBI, vSL = 32, 34, 36, 38
a(f"""buffer_load_dword v{vD}, v{vT2}, {srd(rDST)}, s{sT0} offen
buffer_load_dword v{vS}, v{vT2}, {srd(rSRC)}, s{sT0} offen
s_mov_b64 exec, 0xffff
buffer_load_dword v{vD+1}, v{vT2}, {srd(rDST)}, s{sT0} offen offset:256
buffer_load_dword v{vS+1}, v{vT2}, {srd(rSRC)}, s{sT0} offen offset:256
s_mov_b64 exec, -1
s_load_dword s{sEP}, {sp(sWS)}, {EPOCH_OFF}
s_load_dword s{sEPSF}, {sp(sEPS)}, 0
""")
mksrd(rW1, sW1, 262144)
mksrd(rX, sX, 5120000)
NEARLY = 0
if W1T:
    a(f"""s_lshl_b32 s{sT0}, s{sROT}, 3
    s_add_u32 s{sT0}, s{sT0}, s{sWAVE}
    s_lshl_b32 s{sT0}, s{sT0}, 10
    v_lshlrev_b32 v{vT1}, 7, v{vLANE}
    s_mov_b64 exec, 0xff
    buffer_load_dword v{vOWN}, v{vT1}, {srd(rW1)}, s{sT0} offen
    s_mov_b64 exec, -1""")
    NEARLY += 1


def own_loads():
    a(f"""s_mul_i32 s{sT0}, s{sWAVE}, 5
    s_add_u32 s{sT0}, s{sT0}, s{sBASE}
    s_lshl_b32 s{sT0}, s{sT0}, 9
    buffer_load_dwordx4 {vr(vOR,4)}, v{vL16}, {srd(rX)}, s{sT0} offen
    buffer_load_dwordx4 {vr(vOR+4,4)}, v{vL16}, {srd(rX)}, s{sT0} offen offset:1024
    s_mov_b32 exec_hi, 0
    buffer_load_dwordx4 {vr(vOR+8,4)}, v{vL16}, {srd(rX)}, s{sT0} offen offset:2048
    s_mov_b64 exec, -1
    """)


def own_store():
    a(f"""v_lshrrev_b32 v{vT1}, 5, v{vLANE}
    s_mul_i32 s{sT0}, s{sWAVE}, 5
    v_add_u32 v{vT1}, s{sT0}, v{vT1}
    v_mul_u32_u24 v{vT1}, {H_STR}, v{vT1}
    v_add_u32 v{vT1}, v{vT1}, v{vGOFF}
    ds_write_b128 v{vT1}, {vr(vOR,4)} offset:{H_OFF}
    ds_write_b128 v{vT1}, {vr(vOR+4,4)} offset:{H_OFF+2*H_STR}
    s_mov_b32 exec_hi, 0
    ds_write_b128 v{vT1}, {vr(vOR+8,4)} offset:{H_OFF+4*H_STR}
    s_mov_b64 exec, -1""")


if OWNPOS == 0:
    own_loads()
    NEARLY += 3
a(f"""s_sub_u32 s{sT2}, s{sWAVE}, 1
s_cmp_ge_u32 s{sT2}, 2
s_cbranch_scc1 L_nbl
s_cmp_eq_u32 s{sT2}, 0
s_cselect_b32 s{sM0}, s{sB1}, s{sB2}
s_cselect_b32 s{sM0+1}, s{sB1+1}, s{sB2+1}
s_cselect_b32 exec_hi, -1, 0
global_load_dwordx4 {vr(vBL,4)}, v{vL16}, {sp(sM0)}
s_mov_b64 exec, -1
""")
a.label("L_nbl")
mksrd(rWS, sWS, WS_BYTES)
mksrd(rW2, sW2, 262144)
mksrd(rOUT, sOUT, 5120000)
a(f"""s_mov_b32 s{sW2T}, {W2T_OFF}
v_lshrrev_b32 v{vT1}, 1, v{vG}
v_and_b32 v{vT2}, 1, v{vG}
v_lshl_add_u32 v{vU}, v{vT2}, 4, v{vT1}
s_lshl_b32 s{sT0}, s{sWAVE}, 7
s_mul_i32 s{sSTG}, s{sWAVE}, {NSL*4096}
s_add_u32 s{sSTG}, s{sSTG}, {ST_OFF}
v_lshrrev_b32 v{vT1}, 3, v{vLANE}
v_and_b32 v{vT3}, 2, v{vT1}
v_and_b32 v{vT4}, 7, v{vLANE}
v_xor_b32 v{vT4}, v{vT4}, v{vT3}
v_lshlrev_b32 v{vOA}, 10, v{vT1}
v_add_u32 v{vOA}, s{sT0}, v{vOA}
v_xor_b32 v{vT3}, 4, v{vT4}
v_lshl_add_u32 v{vOB}, v{vT3}, 4, v{vOA}
v_add_u32 v{vOB}, 0x20000, v{vOB}
v_lshl_add_u32 v{vOA}, v{vT4}, 4, v{vOA}
v_and_b32 v{vGOFF}, 31, v{vLANE}
v_lshlrev_b32 v{vGOFF}, 4, v{vGOFF}
""")
a(f"""v_lshrrev_b32 v{vT1}, 1, v{vG}
v_lshrrev_b32 v{vLADDR}, 5, v{vLANE}
v_lshlrev_b32 v{vLADDR}, 4, v{vLADDR}
s_lshl_b32 s{sT0}, s{sWAVE}, 10
v_add_u32 v{vLADDR}, s{sT0}, v{vLADDR}
v_lshl_add_u32 v{vHW}, v{vT1}, 4, v{vN}
v_lshlrev_b32 v{vHW}, 4, v{vHW}
v_lshl_add_u32 v{vHW}, v{vT2}, 3, v{vHW}
v_mul_u32_u24 v{vG1B}, {H_STR}, v{vN}
v_lshl_add_u32 v{vG1B}, v{vU}, 4, v{vG1B}
v_mul_u32_u24 v{vT3}, {H1_STR}, v{vN}
v_add_u32 v{vT3}, {H1_OFF}, v{vT3}
v_lshl_add_u32 v{vG2B}, v{vU}, 4, v{vT3}
s_lshl_b32 s{sT0}, s{sWAVE}, 7
v_lshl_add_u32 v{vH1W}, v{vG}, 4, v{vT3}
v_add_u32 v{vH1W}, s{sT0}, v{vH1W}
s_lshl_b32 s{sT0}, s{sWAVE}, 8
v_lshlrev_b32 v{vBIA}, 4, v{vG}
v_add_u32 v{vBIA}, s{sT0}, v{vBIA}
v_lshrrev_b32 v{vT1}, 2, v{vN}
v_and_b32 v{vT3}, 2, v{vT1}
v_lshl_add_u32 v{vT3}, v{vT2}, 2, v{vT3}
v_lshlrev_b32 v{vT4}, 10, v{vG}
v_lshl_add_u32 v{vT4}, v{vT1}, 7, v{vT4}
v_and_b32 v{vT1}, 3, v{vN}
v_lshl_add_u32 v{vT4}, v{vT1}, 3, v{vT4}
v_add_u32 v{vT4}, s{sSTG}, v{vT4}
""")
for T in range(4):
    a(f"""v_xor_b32 v{vT1}, {2*T}, v{vT3}
    v_lshl_add_u32 v{vTR+T}, v{vT1}, 4, v{vT4}""")
a(f"""v_mov_b32 v{vT3}, 0x3f80
v_and_b32 v{vT0}, 1, v{vN}
v_lshlrev_b32 v{vT0}, 4, v{vT0}
v_lshlrev_b32 v{vT3}, v{vT0}, v{vT3}
v_lshlrev_b32 v{vT1}, 2, v{vT2}
v_lshrrev_b32 v{vT0}, 1, v{vN}
v_sub_u32 v{vT0}, v{vT0}, v{vT1}
""")
for r in range(4):
    a(f"""v_cmp_eq_u32 vcc, {r}, v{vT0}
    v_mov_b32 v{vGACC+r}, 0
    s_nop 0
    v_cndmask_b32 v{vASUM+r}, 0, v{vT3}, vcc""")
a(f"""v_lshrrev_b32 v{vPA}, 1, v0
v_lshlrev_b32 v{vPA}, 6, v{vPA}
v_and_b32 v{vT1}, 1, v0
v_lshl_add_u32 v{vPA}, v{vT1}, 4, v{vPA}
v_cmp_gt_u32 {sp(sPM)}, s{sT0}, v0
s_lshl_b32 s{sFT}, s2, 14
s_add_u32 s{sFT}, s{sFT}, {TBL_OFF}
""".replace(f"v_cmp_gt_u32 {sp(sPM)}, s{sT0}, v0", f"v_cmp_gt_u32 vcc, 500, v0\ns_mov_b64 {sp(sPM)}, vcc"))
a(f"""s_lshl_b32 s{sT0}, s2, 6
s_add_u32 s{sT0}, s{sT0}, {TBL_OFF}
s_add_u32 s{sT1}, s{sT0}, {128*TBL_BLOCK}
v_lshrrev_b32 v{vT2}, 2, v0
v_lshlrev_b32 v{vT3}, 2, v{vT2}
v_and_b32 v{vT1}, 3, v0
v_lshlrev_b32 v{vT1}, 4, v{vT1}
v_lshl_add_u32 v{vT2}, v{vT2}, 14, v{vT1}
v_mov_b32 v{vT4}, 1
s_barrier
s_waitcnt vmcnt({NEARLY})
""")
stamp("edges")
for i in range(2):
    if i == 1:
        a("s_mov_b64 exec, 0xffff")
    a(f"""v_mul_u32_u24 v{vBI+i}, 0xcccd, v{vD+i}
    v_lshrrev_b32 v{vBI+i}, 21, v{vBI+i}
    v_lshlrev_b32 v{vT1}, 2, v{vBI+i}
    ds_add_rtn_u32 v{vSL+i}, v{vT1}, v{vT4} offset:{BC_OFF}""")
a("s_mov_b64 exec, -1")
for i in range(2):
    a(f"""v_mul_u32_u24 v{vT1}, {R}, v{vBI+i}
    v_sub_u32 v{vT1}, v{vD+i}, v{vT1}
    v_lshl_or_b32 v{vS+i}, v{vT1}, 14, v{vS+i}
    v_lshlrev_b32 v{vBI+i}, 6, v{vBI+i}""")
a("s_waitcnt lgkmcnt(0)")
for i in range(2):
    if i == 1:
        a("s_mov_b64 exec, 0xffff")
    a(f"""v_min_u32 v{vT1}, {CAP-1}, v{vSL+i}
    v_lshl_add_u32 v{vT1}, v{vT1}, 2, v{vBI+i}
    ds_write_b32 v{vT1}, v{vS+i} offset:{BT_OFF}""")
a(f"s_mov_b64 exec, -1\ns_add_u32 s{sEP}, s{sEP}, 1")
for i in range(4):
    a(f"s_add_u32 s{sTAG+i}, s{sEP}, {TAGC[i]}\ns_lshl_b32 s{sTAG+i}, s{sTAG+i}, 20")
a(f"""v_mov_b32 v{vT1}, {OVFM}
s_waitcnt lgkmcnt(0)
s_barrier""")
for k in range(2):
    a(f"""ds_read_b128 {vr(vRING+4*k,4)}, v{vT16} offset:{BT_OFF+8192*k}
    ds_read_b32 v{vRING+16+k}, v{vT3} offset:{BC_OFF+512*k}""")
for k in range(2):
    vE = vRING + 4 * k
    vC = vRING + 16 + k
    a(f"""s_waitcnt lgkmcnt({2-2*k})
    v_cmp_lt_u32 vcc, {CAP}, v{vC}
    v_or_b32 v{vE+1}, s{sTAG+1}, v{vE+1}
    v_or_b32 v{vE+2}, s{sTAG+2}, v{vE+2}
    v_cndmask_b32 v{vE}, v{vE}, v{vT1}, vcc
    v_or_b32 v{vE+3}, s{sTAG+3}, v{vE+3}
    v_or_b32 v{vE}, s{sTAG}, v{vE}""")
    if k == 1:
        a(f"""v_cmp_gt_u32 vcc, 488, v0
        s_mov_b64 exec, vcc""")
    a(f"buffer_store_dwordx4 {vr(vE,4)}, v{vT2}, {srd(rWS)}, s{sT0 if k == 0 else sT1} offen sc1")
a("s_mov_b64 exec, -1\ns_setprio 3")
stamp("published")
if OWNPOS == 1:
    own_loads()


def calc_u(dst, t1, t2):
    a(f"""v_lshrrev_b32 v{t1}, 5, v{vLANE}
    v_bfe_u32 v{t2}, v{vLANE}, 4, 1
    v_lshl_add_u32 v{dst}, v{t2}, 4, v{t1}""")


def frag_issue():
    calc_u(vT1, vT2, vT3)
    a(f"""s_lshr_b32 s{sT0}, s{sF}, 1
    s_and_b32 s{sT1}, s{sT0}, 7
    s_lshl_b32 s{sT1}, s{sT1}, 1
    s_and_b32 s{sT0}, s{sT0}, 8
    s_lshl_b32 s{sT0}, s{sT0}, 2
    s_add_u32 s{sT1}, s{sT1}, s{sT0}
    v_add_u32 v{vT1}, s{sT1}, v{vT1}
    v_lshrrev_b32 v{vT2}, 2, v{vT1}
    v_and_b32 v{vT1}, 3, v{vT1}
    v_lshlrev_b32 v{vT2}, 14, v{vT2}
    v_lshl_add_u32 v{vT2}, v{vT1}, 11, v{vT2}
    v_bfe_u32 v{vT1}, v{vLANE}, 2, 2
    v_lshl_add_u32 v{vT2}, v{vT1}, 4, v{vT2}
    v_and_b32 v{vT1}, 3, v{vLANE}
    v_lshl_add_u32 v{vT2}, v{vT1}, 1, v{vT2}
    s_lshr_b32 s{sT0}, s{sF}, 5
    s_lshl_b32 s{sT0}, s{sT0}, 6
    s_and_b32 s{sT1}, s{sF}, 1
    s_lshl_b32 s{sT1}, s{sT1}, 3
    s_add_u32 s{sT0}, s{sT0}, s{sT1}
    s_add_u32 s{sT1}, s{sT0}, 8192
    """)
    for e in range(8):
        a(f"buffer_load_ushort v{vQ+e}, v{vT2}, {srd(rW2)}, s{sT0 if e<4 else sT1} offen offset:{(e&3)*512}")


def frag_finish(cnt):
    a(f"""s_lshl_b32 s{sT0}, s{sF}, 10
    s_add_u32 s{sT0}, s{sT0}, s{sW2T}
    s_waitcnt vmcnt({cnt})
    """)
    for e in range(4):
        a(f"v_lshl_or_b32 v{vQ+8+e}, v{vQ+2*e+1}, 16, v{vQ+2*e}")
    a(f"""buffer_store_dwordx4 {vr(vQ+8,4)}, v{vL16}, {srd(rWS)}, s{sT0} offen sc1
    s_nop 1""")


a(f"""s_sub_u32 s{sF}, s2, {HB}
s_cmp_ge_u32 s{sF}, {NH}
s_cbranch_scc1 L_nohelp0
s_lshl_b32 s{sF}, s{sF}, 3
s_add_u32 s{sF}, s{sF}, s{sWAVE}
""")
frag_issue()
a.label("L_nohelp0")

ops = []


def younger(tag):
    i = len(ops) - 1 - ops[::-1].index(tag)
    return len(ops) - 1 - i


def dma_w1(ks):
    a(f"""s_add_u32 s{sKS}, s{sROT}, {ks}
    s_and_b32 s{sKS}, s{sKS}, 7
    s_lshl_b32 s{sKS}, s{sKS}, 14
    s_add_u32 s{sT3}, s{sKS}, 8192""")
    for g in range(4):
        a(f"""s_add_u32 m0, s{sSTG}, {(ks%NSL)*4096+g*1024}
        s_nop 0
        buffer_load_dwordx4 v{vOB if g&1 else vOA}, {srd(rW1)}, s{sT3 if g>>1 else sKS} offen lds""")
        ops.append(f"d{ks}")


def tr_w1(ks):
    for T in range(4):
        for jh in range(2):
            d = vW + ks * 16 + T * 4 + jh * 2
            a(f"ds_read_b64_tr_b16 {vr(d,2)}, v{vTR+T} offset:{(ks%NSL)*4096+jh*512}")


vE = vRING + 8
vE2 = vRING + 24
vLD, vSL, vAD = vRING + 12, vRING + 16, vRING + 20
masks = [sM0, sM1, sM2, sM3]


def poll_loads():
    a(f"""buffer_load_dwordx4 {vr(vE,4)}, v{vPA}, {srd(rWS)}, s{sFT} offen sc1
    buffer_load_dwordx4 {vr(vE2,4)}, v{vPA}, {srd(rWS)}, s{sFT} offen offset:32 sc1""")


def poll_check_and_insert():
    a(f"""s_mov_b32 s{sPC}, 0
    s_mov_b32 s{sT2}, 0x100000
    v_mov_b32 v{vT4}, 1
    s_mov_b64 exec, {sp(sPM)}
    s_waitcnt vmcnt({younger('p')})""")
    a.label("L_pchk")
    for i in range(4):
        a(f"v_xor_b32 v{vE+i}, s{sTAG+i}, v{vE+i}\nv_xor_b32 v{vE2+i}, s{sTAG+i}, v{vE2+i}")
    a(f"""v_or3_b32 v{vT1}, v{vE}, v{vE+1}, v{vE+2}
    v_or3_b32 v{vT2}, v{vE2}, v{vE2+1}, v{vE2+2}
    v_or3_b32 v{vT1}, v{vT1}, v{vE+3}, v{vE2+3}
    v_or_b32 v{vT1}, v{vT1}, v{vT2}
    v_cmp_le_u32 vcc, s{sT2}, v{vT1}
    s_and_b64 exec, exec, vcc
    s_cbranch_execnz L_pmiss
    """)
    a.label("L_polled")
    a(f"""s_mov_b64 exec, -1
    v_cmp_eq_u32 vcc, {OVFM}, v{vE}
    s_cbranch_vccnz L_setovf
    """)
    a.label("L_noovf")
    stamp("polled")
    a.label("L_ins")
    for i in range(4):
        a(f"""v_bfe_u32 v{vLD+i}, v{vE+i}, 14, 6
        v_cmp_gt_u32 {sp(masks[i])}, {R}, v{vLD+i}
        v_lshlrev_b32 v{vAD+i}, 2, v{vLD+i}""")
    for i in range(4):
        a(f"""s_mov_b64 exec, {sp(masks[i])}
        ds_add_rtn_u32 v{vSL+i}, v{vAD+i}, v{vT4} offset:{CNT_OFF}""")
    a("s_mov_b64 exec, -1")
    for i in range(4):
        a(f"""v_and_b32 v{vE+i}, 0x3fff, v{vE+i}
        v_lshlrev_b32 v{vE+i}, 9, v{vE+i}
        v_lshlrev_b32 v{vAD+i}, 8, v{vLD+i}""")
    a("s_waitcnt lgkmcnt(0)")
    for i in range(4):
        a(f"""v_min_u32 v{vSL+i}, 63, v{vSL+i}
        v_lshl_add_u32 v{vAD+i}, v{vSL+i}, 2, v{vAD+i}""")
    for i in range(4):
        a(f"""s_mov_b64 exec, {sp(masks[i])}
        ds_write_b32 v{vAD+i}, v{vE+i} offset:{BK_OFF}""")
    a(f"""s_mov_b64 exec, -1
    v_cmp_ne_u32 vcc, {EMPTY}, v{vE2}
    s_cbranch_vccnz L_ins2
    """)


for ks in range(NSL):
    dma_w1(ks)
for i in range(4):
    a(f"v_mov_b32 v{vE+i}, {EMPTY}\nv_mov_b32 v{vE2+i}, {EMPTY}")
for ks in range(8 - NSL):
    a(f"s_waitcnt vmcnt({younger(f'd{ks}')})")
    tr_w1(ks)
    if ks == 0:
        if OWNPOS < 2:
            own_store()
        a(f"""s_sub_u32 s{sT2}, s{sWAVE}, 1
        s_cmp_ge_u32 s{sT2}, 2
        s_cbranch_scc1 L_nbias
        s_lshl_b32 s{sT0}, s{sT2}, 11
        v_lshlrev_b32 v{vT1}, 5, v{vLANE}
        v_add_u32 v{vT1}, s{sT0}, v{vT1}
        """)
        for i in range(4):
            a(f"""v_lshlrev_b32 v{64+2*i}, 16, v{vBL+i}
            v_and_b32 v{64+2*i+1}, 0xffff0000, v{vBL+i}""")
        a(f"""s_cmp_eq_u32 s{sT2}, 0
        s_cselect_b32 exec_hi, -1, 0
        ds_write_b128 v{vT1}, {vr(64,4)} offset:{B1F_OFF}
        ds_write_b128 v{vT1}, {vr(68,4)} offset:{B1F_OFF+16}
        s_mov_b64 exec, -1
        """)
        a.label("L_nbias")
    if ks in (0, 2, 4):
        a(f"s_setprio {2 - ks//2}")
    a("s_waitcnt lgkmcnt(0)")
    dma_w1(ks + NSL)
    if ks == 0:
        a(f"""s_sub_u32 s{sT0}, s2, {HB}
        s_cmp_ge_u32 s{sT0}, {NH}
        s_cbranch_scc1 L_nohelp""")
        frag_finish(63)
        a.label("L_nohelp")
    if ks + 1 == POLLK:
        if OWNPOS == 2:
            own_loads()
            ops.extend(["o"] * 3)
        a(f"s_mov_b64 exec, {sp(sPM)}")
        poll_loads()
        a("s_mov_b64 exec, -1")
        ops.extend(["p", "p"])
        stamp("pollissued")
    if ks + 1 == CHKK:
        poll_check_and_insert()
        if OWNPOS == 2:
            own_store()
stamp("w1issued")

a(f"""s_lshl_b32 s{sEPSF}, s{sEPSF}, 16
v_add_f32 v{vT0}, s{sEPSF}, 1.0
v_cvt_pk_bf16_f32 v{vT0}, v{vT0}, v{vT0}
v_lshlrev_b32 v{vT0}, 16, v{vT0}
v_add_u32 v{vT3}, s{sBASE}, v{vN}
v_readfirstlane_b32 s{sEPSF}, v{vT0}
v_lshlrev_b32 v{vT3}, 9, v{vT3}
v_lshl_add_u32 v{vT3}, v{vG}, 4, v{vT3}
s_lshl_b32 s{sT0}, s{sWAVE}, 6
v_add_u32 v{vOUTA}, s{sT0}, v{vT3}
v_lshlrev_b32 v{vT0}, 2, v{vLANE}
v_mov_b32 v{vT2}, 0
s_lshl_b32 s{sFT}, s2, 8
s_add_u32 s{sFT}, s{sFT}, {FLG_OFF}
s_mov_b32 s{sI}, 0
s_lshl_b32 s{sRW}, s{sWAVE}, 2
s_add_u32 s{sRW+1}, s{sRW}, 1
s_add_u32 s{sRW+2}, s{sRW}, 2
s_add_u32 s{sRW+3}, s{sRW}, 3
s_lshl_b32 s{sRW+4}, s{sWAVE}, 1
s_add_u32 s{sRW+4}, s{sRW+4}, 32
s_add_u32 s{sRW+5}, s{sRW+4}, 1
s_cmp_lt_u32 s{sWAVE}, 4
s_cselect_b32 s{sNODE}, 6, 4
s_mov_b64 {sp(sROWT)}, 0
""")
for k in range(5, -1, -1):
    a(f"""s_lshl_b64 {sp(sROWT)}, {sp(sROWT)}, 8
    s_or_b32 s{sROWT}, s{sROWT}, s{sRW+k}""")
a(f"""s_mul_i32 s{sT0}, s{sRW}, {H_STR}
v_add_u32 v{vT4}, s{sT0}, v{vHW}
s_mov_b64 {sp(sMASK)}, 0
s_mov_b64 {sp(sMASK2)}, 0
s_lshl_b32 s{sT0}, s{sWAVE}, 15
s_add_u32 s{sW2T}, s{sW2T}, s{sT0}
s_cmp_lt_u32 s{sWAVE}, 4
s_cbranch_scc1 L_prO
s_setprio 1
s_branch L_prD
""")
a.label("L_prO")
a("s_setprio 2")
a.label("L_prD")
a("""s_waitcnt lgkmcnt(0)
s_barrier
""")
stamp("buckets")
a(f"""ds_read_b32 v{vT1}, v{vT0} offset:{CNT_OFF}
ds_read_b32 v{vT3}, v{vT2} offset:{FLAG_OFF}
ds_read_b64 {vr(vOWN,2)}, v{vT4} offset:{H_OFF}
s_sub_u32 s{sT1}, s2, {HB}
s_cmp_lt_u32 s{sT1}, {NH}
s_cbranch_scc1 L_pub
""")
a.label("L_pubdone")
a(f"""v_cmp_gt_u32 {sp(sM1)}, {R}, v{vLANE}
s_waitcnt lgkmcnt(0)
v_cmp_lt_u32 vcc, 64, v{vT1}
v_add_u32 v{vT1}, 1, v{vT1}
v_lshrrev_b32 v{vT1}, 1, v{vT1}
v_max_u32 v{vT1}, 1, v{vT1}
v_cndmask_b32 v{vT1}, 0, v{vT1}, {sp(sM1)}
v_readfirstlane_b32 s{sTMO}, v{vT3}
""")
for k in range(6):
    a(f"v_readlane_b32 s{sE+k}, v{vT1}, s{sRW+k}")
a(f"""s_cmp_lg_u64 vcc, 0
s_cbranch_scc1 L_slow
s_cmp_lg_u32 s{sTMO}, 0
s_cbranch_scc1 L_slow
""")
for k in range(1, 6):
    a(f"s_add_u32 s{sE+k}, s{sE+k}, s{sE+k-1}")
a(f"""s_cmp_gt_u32 s{sE+5}, 64
s_cbranch_scc1 L_big
v_mov_b32 v{vT0}, v{vLANE}
""")


def build_list():
    a(f"v_mov_b32 v{vT2}, s{sSB}")
    for k in range(1, 6):
        a(f"""v_cmp_le_u32 vcc, s{sE+k-1}, v{vT0}
        v_mov_b32 v{vT3}, s{sSB+k}
        s_nop 0
        v_cndmask_b32 v{vT2}, v{vT2}, v{vT3}, vcc""")
    a(f"""v_lshl_add_u32 v{vT2}, v{vT0}, 3, v{vT2}
    v_mov_b32 v{vENT}, {OOB}
    v_mov_b32 v{vENT+1}, {OOB}
    v_cmp_gt_u32 vcc, s{sE+5}, v{vT0}
    s_mov_b64 exec, vcc
    ds_read_b64 {vr(vENT,2)}, v{vT2} offset:{BK_OFF}
    s_mov_b64 exec, -1
    v_lshrrev_b32 v{vT3}, 2, v{vT0}
    v_lshlrev_b32 v{vT3}, 5, v{vT3}
    v_and_b32 v{vT1}, 3, v{vT0}
    v_lshl_add_u32 v{vT3}, v{vT1}, 2, v{vT3}
    s_lshl_b32 s{sKS}, s{sWAVE}, 10
    v_add_u32 v{vT3}, s{sKS}, v{vT3}
    v_add_u32 v{vT3}, {LIST_OFF}, v{vT3}
    """)


def bases():
    a(f"s_lshl_b32 s{sSB}, s{sRW}, 8")
    for k in range(1, 6):
        a(f"""s_lshl_b32 s{sSB+k}, s{sRW+k}, 5
        s_sub_u32 s{sSB+k}, s{sSB+k}, s{sE+k-1}
        s_lshl_b32 s{sSB+k}, s{sSB+k}, 3""")


bases()
build_list()
for k in range(6):
    a(f"s_sub_u32 s{sKS}, s{sE+k}, 1\ns_bitset1_b64 {sp(sMASK)}, s{sKS}")
a(f"""s_waitcnt lgkmcnt(0)
ds_write2_b32 v{vT3}, v{vENT}, v{vENT+1} offset0:0 offset1:4
""")
a.label("L_listdone")
a(f"""s_add_u32 s{sREM}, s{sE+5}, 3
s_lshr_b32 s{sREM}, s{sREM}, 2
s_max_u32 s{sREM}, s{sREM}, {RD}
""")
vPE = 96
for s in range(RD):
    a(f"ds_read_b128 {vr(vPE+4*s,4)}, v{vLADDR} offset:{LIST_OFF+32*s}")
a(f"ds_read_b128 {vr(vENT,4)}, v{vLADDR} offset:{LIST_OFF+32*RD}")


def issue_group(ent, r):
    for j in range(4):
        a(f"v_add_u32 v{ent+j}, v{ent+j}, v{vGOFF}")
    for j in range(4):
        a(f"buffer_load_dwordx4 {vr(vRING+r*16+j*4,4)}, v{ent+j}, {srd(rX)}, 0 offen")


def w1_tail(cnt):
    a(f"s_waitcnt vmcnt({cnt})")
    for ks in range(8 - NSL, 8):
        tr_w1(ks)


for s in range(RD):
    a(f"s_waitcnt lgkmcnt({RD-s})" if s < 2 else "s_waitcnt lgkmcnt(0)")
    issue_group(vPE + 4 * s, s)
    if s == 1:
        w1_tail(8)
stamp("gstart")


def mfma_sum(b):
    a(f"v_mfma_f32_16x16x32_bf16 {vr(vGACC,4)}, {vr(vASUM,4)}, {vr(b,4)}, {vr(vGACC,4)}")


stubs = []
drains = []
a.label("L_gloop")
for s in range(RD):
    lgo, ldr, lni = a.newlabel("L_go"), a.newlabel("L_dr"), a.newlabel("L_ni")
    drains.append((ldr, lgo))
    b = vRING + s * 16
    a(f"""s_cmp_lt_u32 s{sREM}, {RD}
    s_cbranch_scc1 {ldr}
    s_waitcnt vmcnt({4*(RD-1)})""")
    a.label(lgo)
    for j in range(4):
        ls, lb = a.newlabel("L_st"), a.newlabel("L_bk")
        stubs.append((ls, lb))
        mfma_sum(b + 4 * j)
        a(f"""s_bitcmp1_b32 s{sMASK}, {4*s+j}
        s_cbranch_scc1 {ls}""")
        a.label(lb)
    a(f"""s_cmp_lt_u32 s{sREM}, {RD+1}
    s_cbranch_scc1 {lni}
    s_waitcnt lgkmcnt(0)""")
    issue_group(vENT, s)
    a(f"ds_read_b128 {vr(vENT,4)}, v{vLADDR} offset:{LIST_OFF+32*(RD+1+s)}")
    a.label(lni)
    a(f"s_sub_u32 s{sREM}, s{sREM}, 1")
a(f"""v_add_u32 v{vLADDR}, 128, v{vLADDR}
s_lshr_b64 {sp(sMASK)}, {sp(sMASK)}, 16
s_add_u32 s{sI}, s{sI}, 1
s_cmp_eq_u32 s{sI}, 4
s_cselect_b64 {sp(sMASK)}, {sp(sMASK2)}, {sp(sMASK)}
s_cmp_lt_u32 s{sI}, 8
s_cbranch_scc1 L_gloop
s_endpgm
""")
for ls, lb in stubs:
    a.label(ls)
    a(f"s_call_b64 {sp(sRET)}, L_fin\ns_branch {lb}")
for ldr, lgo in drains:
    a.label(ldr)
    for k in range(RD - 1, 1, -1):
        ln = a.newlabel("L_dr")
        a(f"""s_cmp_lt_u32 s{sREM}, {k}
        s_cbranch_scc1 {ln}
        s_waitcnt vmcnt({4*(k-1)})
        s_branch {lgo}""")
        a.label(ln)
    a(f"s_waitcnt vmcnt(0)\ns_branch {lgo}")

a.label("L_fin")
a(f"""s_and_b32 s{sT1}, s{sROWT}, 0xff
s_lshr_b64 {sp(sROWT)}, {sp(sROWT)}, 8
s_and_b32 s{sT2}, s{sROWT}, 0xff
s_mul_i32 s{sT1}, s{sT1}, {H_STR}
s_mul_i32 s{sT2}, s{sT2}, {H_STR}
s_waitcnt lgkmcnt(0)
v_lshlrev_b32 v{vT0}, 16, v{vOWN}
v_and_b32 v{vT1}, 0xffff0000, v{vOWN}
v_lshlrev_b32 v{vT2}, 16, v{vOWN+1}
v_and_b32 v{vT3}, 0xffff0000, v{vOWN+1}
v_add_u32 v{vT4}, s{sT2}, v{vHW}
ds_read_b64 {vr(vOWN,2)}, v{vT4} offset:{H_OFF}
v_fma_f32 v{vT0}, v{vT0}, s{sEPSF}, v{vGACC}
v_fma_f32 v{vT1}, v{vT1}, s{sEPSF}, v{vGACC+1}
v_fma_f32 v{vT2}, v{vT2}, s{sEPSF}, v{vGACC+2}
v_fma_f32 v{vT3}, v{vT3}, s{sEPSF}, v{vGACC+3}
v_add_u32 v{vT4}, s{sT1}, v{vHW}
v_cvt_pk_bf16_f32 v{vT0}, v{vT0}, v{vT1}
v_cvt_pk_bf16_f32 v{vT1}, v{vT2}, v{vT3}
v_mov_b32 v{vGACC}, 0
v_mov_b32 v{vGACC+1}, 0
ds_write_b64 v{vT4}, {vr(vT0,2)} offset:{H_OFF}
v_mov_b32 v{vGACC+2}, 0
v_mov_b32 v{vGACC+3}, 0
s_sub_u32 s{sNODE}, s{sNODE}, 1
s_cmp_eq_u32 s{sNODE}, 1
s_cbranch_scc1 L_finflag
s_cmp_eq_u32 s{sNODE}, 0
s_cbranch_scc1 L_gdone
s_setpc_b64 {sp(sRET)}
""")
a.label("L_finflag")
a(f"""v_lshrrev_b32 v{vT1}, 1, v{vGOFF}
buffer_load_dwordx2 {vr(vFLG,2)}, v{vT1}, {srd(rWS)}, s{sFT} offen sc1
s_setpc_b64 {sp(sRET)}
""")

vACC1 = 32
vBB = 64
vW2E = 88


def acc1(t, T):
    return vACC1 + (t * 4 + T) * 4


w2n = [0]


def w2reg(q):
    if q < 10:
        return vW2E + 4 * q
    return vW + 4 * (q - 10)


def ldw2(n):
    for _ in range(n):
        q = w2n[0]
        if q >= 32:
            return
        if (q & 1) == 0:
            a(f"""s_add_u32 s{sW2K}, s{sROT}, {q>>1}
            s_and_b32 s{sW2K}, s{sW2K}, 15
            s_lshl_b32 s{sW2K}, s{sW2K}, 11
            s_add_u32 s{sW2K}, s{sW2K}, s{sW2T}""")
        a(f"buffer_load_dwordx4 {vr(w2reg(q),4)}, v{vL16}, {srd(rWS)}, s{sW2K} offen offset:{(q&1)*1024} sc1")
        w2n[0] += 1


def g1(tiles, last):
    nt = len(tiles)

    def buf(ks, i):
        return vBB + ((ks % 3) * 2 + i) * 4

    def rd(ks):
        a(f"""s_add_u32 s{sKS}, s{sROT}, {ks}
        s_and_b32 s{sKS}, s{sKS}, 7
        s_lshl_b32 s{sKS}, s{sKS}, 5
        v_add_u32 v{vT0+(ks%3)}, s{sKS}, v{vG1B}""")
        for i, t in enumerate(tiles):
            a(f"ds_read_b128 {vr(buf(ks,i),4)}, v{vT0+(ks%3)} offset:{H_OFF+t*16*H_STR}")
    for ks in range(3):
        rd(ks)
    for ks in range(8):
        a(f"s_waitcnt lgkmcnt({nt*min(2, 7-ks)})")
        for i in range(nt):
            for T in range(4):
                fr = vW + ks * 16 + T * 4
                c = acc1(nt - 1, T) if ks == 0 else acc1(i, T)
                a(f"v_mfma_f32_16x16x32_bf16 {vr(acc1(i,T),4)}, {vr(fr,4)}, {vr(buf(ks,i),4)}, {vr(c,4)}")
            if not last and w2n[0] < E1:
                ldw2(1)
        if ks + 3 < 8:
            rd(ks + 3)
        if last:
            ldw2(max(0, min(G1LD, 10 + 4 * (ks + 1) - w2n[0])))
    a("s_nop 6")
    for i, t in enumerate(tiles):
        if t == 2:
            a("s_mov_b32 exec_lo, 0x00ff00ff\ns_mov_b32 exec_hi, 0x00ff00ff")
        for aa in range(2):
            o = vBB + (i * 2 + aa) * 4
            for hT in range(2):
                for hh in range(2):
                    s0 = acc1(i, 2 * aa + hT) + 2 * hh
                    a(f"""v_cvt_pk_bf16_f32 v{o+2*hT+hh}, v{s0}, v{s0+1}
                    v_pk_max_i16 v{o+2*hT+hh}, v{o+2*hT+hh}, 0""")
            a(f"ds_write_b128 v{vH1W}, {vr(o,4)} offset:{t*16*H1_STR+aa*64}")
        if t == 2:
            a("s_mov_b64 exec, -1")


a.label("L_gdone")
stamp("gdone")
a(f"""v_mov_b32 v{vT2}, 0
v_mov_b32 v{vT3}, 1
s_cmp_ge_u32 s{sWAVE}, 4
s_cbranch_scc1 L_noarr
s_mov_b64 exec, 1
ds_add_u32 v{vT2}, v{vT3} offset:{DONE_OFF}
s_mov_b64 exec, -1
s_setprio 0
""")
a.label("L_noarr")
a(f"""s_mov_b32 s{sT3}, 0
s_mul_i32 s{sT0}, s{sEP}, {FLGM[0]}
s_mul_i32 s{sT1}, s{sEP}, {FLGM[1]}
""")
a.label("L_chk2")
a(f"""s_waitcnt vmcnt(0)
v_xor_b32 v{vFLG}, s{sT0}, v{vFLG}
v_xor_b32 v{vFLG+1}, s{sT1}, v{vFLG+1}
v_or_b32 v{vT1}, v{vFLG}, v{vFLG+1}
v_cmp_ne_u32 vcc, 0, v{vT1}
s_cbranch_vccnz L_w2miss
""")
a.label("L_w2ok")
for T in range(4):
    a(f"ds_read_b128 {vr(acc1(1,T),4)}, v{vBIA} offset:{B1F_OFF+64*T}")
a(f"s_mov_b32 s{sT3}, 0\nv_mov_b32 v{vT2}, 0")
a.label("L_dspin")
a(f"""ds_read_b32 v{vT3}, v{vT2} offset:{DONE_OFF}
s_add_u32 s{sT3}, s{sT3}, 1
s_waitcnt lgkmcnt(0)
v_readfirstlane_b32 s{sT1}, v{vT3}
s_cmp_lt_u32 s{sT3}, 0x4000000
s_cselect_b32 s{sT2}, 4, 0
s_cmp_lt_u32 s{sT1}, s{sT2}
s_cbranch_scc1 L_dspin
""")
stamp("g02start")
g1([0, 2], False)
for T in range(4):
    a(f"ds_read_b128 {vr(acc1(0,T),4)}, v{vBIA} offset:{B1F_OFF+64*T}")
stamp("g02end")
a("""s_waitcnt lgkmcnt(0)
s_barrier
s_setprio 0""")
stamp("bar2")
g1([1], True)

vACC2 = 32
vB2B = 56


def acc2(t, T):
    return vACC2 + (t * 2 + T) * 4


a(f"""s_lshl_b32 s{sT0}, s{sWAVE}, 8
v_subrev_u32 v{vT0}, s{sT0}, v{vBIA}
v_lshlrev_b32 v{vT0}, 1, v{vT0}
s_lshl_b32 s{sT0}, s{sWAVE}, 7
v_add_u32 v{vT0}, s{sT0}, v{vT0}
ds_read_b128 {vr(acc2(2,0),4)}, v{vT0} offset:{B2F_OFF}
ds_read_b128 {vr(acc2(2,1),4)}, v{vT0} offset:{B2F_OFF+16}
s_mov_b32 s{sT2}, 8192
s_mov_b32 s{sT3}, 16384
""")
ldw2(2)
a("""s_waitcnt lgkmcnt(0)
s_barrier
""")
stamp("bar3")


def rd2(ks):
    a(f"""s_add_u32 s{sKS}, s{sROT}, {ks}
    s_and_b32 s{sT0}, s{sKS}, 7
    s_lshl_b32 s{sT0}, s{sT0}, 5
    s_and_b32 s{sKS}, s{sKS}, 8
    s_lshl_b32 s{sKS}, s{sKS}, 6
    s_add_u32 s{sKS}, s{sKS}, s{sT0}
    v_add_u32 v{vT1+(ks&1)}, s{sKS}, v{vG2B}""")
    for t in range(3):
        a(f"ds_read_b128 {vr(vB2B+(ks&1)*12+t*4,4)}, v{vT1+(ks&1)} offset:{t*16*H1_STR}")


rd2(0)
rd2(1)
for ks in range(16):
    assert w2n[0] >= 2 * ks + 2
    a(f"s_waitcnt vmcnt({w2n[0]-2*ks-2}) lgkmcnt({3 if ks < 15 else 0})")
    for t in range(3):
        for T in range(2):
            fr = w2reg(2 * ks + T)
            c = acc2(2, T) if ks == 0 else acc2(t, T)
            a(f"v_mfma_f32_16x16x32_bf16 {vr(acc2(t,T),4)}, {vr(fr,4)}, {vr(vB2B+(ks&1)*12+t*4,4)}, {vr(c,4)}")
        if t < 2:
            ldw2(1)
    if ks + 2 < 16:
        rd2(ks + 2)
a("s_nop 3")
vO = 88
for t in range(3):
    for T in range(2):
        for hh in range(2):
            s0 = acc2(t, T) + 2 * hh
            a(f"v_cvt_pk_bf16_f32 v{vO+t*4+2*T+hh}, v{s0}, v{s0+1}")
    if t == 2:
        a("s_mov_b32 exec_lo, 0x00ff00ff\ns_mov_b32 exec_hi, 0x00ff00ff")
    so = ["0", f"s{sT2}", f"s{sT3}"][t]
    a(f"buffer_store_dwordx4 {vr(vO+t*4,4)}, v{vOUTA}, {srd(rOUT)}, {so} offen")
a(f"""s_mov_b64 exec, 1
v_mov_b32 v{vT1}, s{sEP}
v_mov_b32 v{vT2}, {EPOCH_OFF}
s_lshr_b32 s{sT0}, s{sTMO}, 1
s_or_b32 s{sT0}, s{sT0}, s{sWAVE}
s_cmp_lg_u32 s{sT0}, 0
s_cbranch_scc1 L_noep
buffer_store_dword v{vT1}, v{vT2}, {srd(rWS)}, 0 offen
""")
a.label("L_noep")
if STAMPS:
    a("s_mov_b64 exec, -1")
    stamp("end")
    a(f"""v_writelane_b32 v{vSTV}, s{sST0}, 0
    s_lshl_b32 s{sT0}, s2, 10
    s_lshl_b32 s{sT1}, s{sWAVE}, 7
    s_add_u32 s{sT0}, s{sT0}, s{sT1}
    s_add_u32 s{sT0}, s{sT0}, 0x800000
    v_lshlrev_b32 v{vT1}, 2, v{vLANE}
    s_mov_b32 exec_hi, 0
    buffer_store_dword v{vSTV}, v{vT1}, {srd(rWS)}, s{sT0} offen""")
a.label("L_end")
a("s_endpgm")

a.label("L_pmiss")
a(f"""s_add_u32 s{sPC}, s{sPC}, 1
s_cmp_ge_u32 s{sPC}, {SPIN_MAX}
s_cbranch_scc1 L_ptimeout
s_sleep {PSLEEP}
""")
poll_loads()
a("s_waitcnt vmcnt(0)\ns_branch L_pchk")
a.label("L_ptimeout")
a(f"""s_mov_b64 exec, -1
v_mov_b32 v{vT1}, 0
v_mov_b32 v{vT2}, 3
ds_or_b32 v{vT1}, v{vT2} offset:{FLAG_OFF}
""")
for i in range(4):
    a(f"v_mov_b32 v{vE+i}, {EMPTY}\nv_mov_b32 v{vE2+i}, {EMPTY}")
a("s_branch L_polled")
a.label("L_ins2")
for i in range(4):
    a(f"v_mov_b32 v{vE+i}, v{vE2+i}\nv_mov_b32 v{vE2+i}, {EMPTY}")
a("s_branch L_ins")
a.label("L_setovf")
a(f"""v_mov_b32 v{vT1}, 0
ds_or_b32 v{vT1}, v{vT4} offset:{FLAG_OFF}
s_branch L_noovf
""")
a.label("L_pub")
a(f"""s_cmp_lg_u32 s{sWAVE}, 6
s_cbranch_scc1 L_pubdone
s_lshl_b32 s{sT1}, s{sT1}, 3
s_add_u32 s{sT1}, s{sT1}, {FLG_OFF}
""")
for i in range(2):
    a(f"s_mul_i32 s{sT2}, s{sEP}, {FLGM[i]}\nv_mov_b32 v{vFLG+i}, s{sT2}")
a(f"v_lshlrev_b32 v{vT4}, 8, v{vLANE}\ns_setprio 3")
for k in range(4):
    a(f"""buffer_store_dwordx2 {vr(vFLG,2)}, v{vT4}, {srd(rWS)}, s{sT1} offen sc1
    s_add_u32 s{sT1}, s{sT1}, {64*256}""")
a("s_setprio 1\ns_branch L_pubdone")
a.label("L_big")
a(f"""s_cmp_gt_u32 s{sE+5}, 104
s_cbranch_scc1 L_slow
""")
bases()
for rnd in range(2):
    a(f"v_add_u32 v{vT0}, {64*rnd}, v{vLANE}")
    build_list()
    a(f"""s_waitcnt lgkmcnt(0)
    ds_write2_b32 v{vT3}, v{vENT}, v{vENT+1} offset0:0 offset1:4""")
for k in range(6):
    l0, l1 = a.newlabel("L_bm"), a.newlabel("L_bm")
    a(f"""s_sub_u32 s{sKS}, s{sE+k}, 1
    s_cmp_ge_u32 s{sKS}, 64
    s_cbranch_scc1 {l0}
    s_bitset1_b64 {sp(sMASK)}, s{sKS}
    s_branch {l1}""")
    a.label(l0)
    a(f"s_bitset1_b64 {sp(sMASK2)}, s{sKS}")
    a.label(l1)
a("s_branch L_listdone")
a.label("L_w2miss")
a(f"""s_add_u32 s{sT3}, s{sT3}, 1
s_cmp_ge_u32 s{sT3}, {SPIN_MAX}
s_cbranch_scc1 L_w2self
s_sleep 2
v_lshrrev_b32 v{vT1}, 1, v{vGOFF}
buffer_load_dwordx2 {vr(vFLG,2)}, v{vT1}, {srd(rWS)}, s{sFT} offen sc1
s_branch L_chk2
""")
a.label("L_w2self")
a(f"""s_lshl_b32 s{sW2T}, s2, 18
s_add_u32 s{sW2T}, s{sW2T}, {PRIV_OFF}
s_lshl_b32 s{sF}, s{sWAVE}, 5
""")
a.label("L_selfw2")
frag_issue()
frag_finish(0)
a(f"""s_add_u32 s{sF}, s{sF}, 1
s_and_b32 s{sT0}, s{sF}, 31
s_cmp_lg_u32 s{sT0}, 0
s_cbranch_scc1 L_selfw2
s_waitcnt vmcnt(0)
s_lshl_b32 s{sT0}, s{sWAVE}, 15
s_add_u32 s{sW2T}, s{sW2T}, s{sT0}
s_branch L_w2ok
""")

a.label("L_slow")
w1_tail(0)
vSA = vRING
vSD, vSS, vSB = vRING + 24, vRING + 25, vRING + 28
vHOFF, vLO = vRING + 26, vRING + 27
a(f"""v_mov_b32 v{vT0}, {OOB}
v_cmp_gt_u32 vcc, 32, v{vLANE}
s_mov_b32 s{sI}, 0
v_lshlrev_b32 v{vLO}, 2, v{vLANE}
v_cndmask_b32 v{vHOFF}, v{vT0}, v{vGOFF}, vcc
""")
for k in range(6):
    a(f"s_add_u32 s{sE+k}, s{sRW+k}, s{sBASE}")
a(f"""s_cmp_lt_u32 s{sWAVE}, 4
s_cselect_b32 s{sE+4}, s{sE+4}, -1
s_cselect_b32 s{sE+5}, s{sE+5}, -1""")
for r in range(24):
    a(f"v_mov_b32 v{vSA+r}, 0")
a.label("L_sloop")
a(f"""buffer_load_dword v{vSD}, v{vLO}, {srd(rDST)}, s{sI} offen
buffer_load_dword v{vSS}, v{vLO}, {srd(rSRC)}, s{sI} offen
s_waitcnt vmcnt(0)
v_lshlrev_b32 v{vSS}, 9, v{vSS}
""")
for n in range(6):
    l0, l1 = a.newlabel("L_s"), a.newlabel("L_s")
    a(f"v_cmp_eq_u32 {sp(sM0)}, s{sE+n}, v{vSD}")
    a.label(l0)
    a(f"""s_nop 3
    s_cmp_eq_u64 {sp(sM0)}, 0
    s_cbranch_scc1 {l1}
    s_ff1_i32_b64 s{sT1}, {sp(sM0)}
    s_bitset0_b64 {sp(sM0)}, s{sT1}
    v_readlane_b32 s{sT2}, v{vSS}, s{sT1}
    s_nop 4
    buffer_load_dwordx4 {vr(vSB,4)}, v{vHOFF}, {srd(rX)}, s{sT2} offen
    s_waitcnt vmcnt(0)
    v_mfma_f32_16x16x32_bf16 {vr(vSA+4*n,4)}, {vr(vASUM,4)}, {vr(vSB,4)}, {vr(vSA+4*n,4)}
    s_nop 7
    s_branch {l0}""")
    a.label(l1)
a(f"""s_add_u32 s{sI}, s{sI}, 256
s_cmp_lt_u32 s{sI}, 640000
s_cbranch_scc1 L_sloop
s_nop 7
""")
for n in range(6):
    for r in range(4):
        a(f"v_mov_b32 v{vGACC+r}, v{vSA+4*n+r}")
    a(f"s_call_b64 {sp(sRET)}, L_fin")
a("s_endpgm")

hdr = open("cdna_kernels/%s.s.ref" % NAME).read().split("; Override launch")[0]
out = hdr + f"""; @launch grid=({NB},1,1) block=(512,1,1) lds={LDS_BYTES}
.amdgcn_target "amdgcn-amd-amdhsa--gfx950"
.text
.globl {NAME}_kernel
.p2align 8
.type {NAME}_kernel,@function
{NAME}_kernel:
""" + "\n".join(a.lines) + f"""
.section .rodata,"a"
.p2align 6
.amdhsa_kernel {NAME}_kernel
  .amdhsa_next_free_vgpr {NVGPR}
  .amdhsa_next_free_sgpr 102
  .amdhsa_accum_offset {NVGPR}
  .amdhsa_group_segment_fixed_size 0
  .amdhsa_kernarg_size 88
  .amdhsa_user_sgpr_count 2
  .amdhsa_user_sgpr_kernarg_segment_ptr 1
  .amdhsa_system_sgpr_workgroup_id_x 1
.end_amdhsa_kernel
"""
dst = [x for x in sys.argv[1:] if not x.startswith("--")]
open(dst[0] if dst else f"cdna_kernels/{NAME}.s", "w").write(out)
print("stamps:", stamp_idx[0], " ".join(f"{i}:{n}" for i, n in enumerate(stamp_names)))
```

```python
import sys

NAME = "gather_scatter__isomorphism_gin_2__graph"
NB = 250
R = 40
EPP = 1280
NP = 125
CAP = 16
TBL_BLOCK = 8192
NH = 128
HWV = 3
HB = 8
EPOCH_OFF = 0
W2T_OFF = 0x10000
FLG_OFF = 0x1000
TBL_OFF = 0x100000
PRIV_OFF = 0x1000000
WS_BYTES = PRIV_OFF + NB * 524288
TAGC = [0x000, 0x555, 0xAAA, 0x3C3]
FLGM = [0x9E3779B1, 0x85EBCA77]
EMPTY = 0xfc000
OVFM = 0xf8000

CNT_OFF = 0
FLAG_OFF = 256
DONE_OFF = 264
B1F_OFF = 512
B2F_OFF = 2560
BK_OFF = 3584
H_OFF = BK_OFF + 10240
H_STR = 528
LIST_OFF = H_OFF + 40 * H_STR
H1_OFF = LIST_OFF + 8192
H1_STR = 1040
BT_OFF = H1_OFF
BC_OFF = BT_OFF + 16384
NSL = 3
H1T = {0: 0, 2: 16 * H1_STR, 1: 24 * H1_STR}
ST_OFF = BC_OFF + 1024
LDS_BYTES = ST_OFF + 8 * NSL * 4096
assert H1_OFF + 48 * H1_STR <= LDS_BYTES <= 163840 and ST_OFF % 128 == 0

OOB = 0x7F000000
STAMPS = "--stamps" in sys.argv
SPIN_MAX = 100000
RD = 4


def opt(name, default):
    for x in sys.argv:
        if x.startswith("--" + name + "="):
            return int(x.split("=")[1])
    return default


PSLEEP = opt("psleep", 4)
OWNPOS = opt("ownpos", 0)
POLLK = opt("pollk", 2)
CHKK = opt("chkk", 3)
W1T = opt("w1t", 1)
E1 = opt("e1", 10)
G1LD = opt("g1ld", 1)
HINT = opt("hint", 1)
YPH = 0
PREY = opt("prey", 4)
TPRIO = opt("tprio", 1)
CPF = opt("cpf", 0)
W1TAIL = opt("w1tail", 1)
OPOL = opt("opol", 2)
TT = opt("tt", 0)
KE = opt("ke", 6)
STW = opt("stw", 8)
MID = opt("mid", 0)
YG0 = opt("yg0", 0)
YPRE = opt("ypre", 3)


class Asm:
    def __init__(self):
        self.lines = []
        self.n = 0

    def __call__(self, s):
        for l in s.strip().split("\n"):
            self.lines.append("    " + l.strip())

    def label(self, l):
        self.lines.append(l + ":")

    def newlabel(self, p="L"):
        self.n += 1
        return f"{p}_{self.n}"


a = Asm()

sTMO = 3
sTAG = 4
sX, sSRC, sDST, sEPS, sW1, sB1, sW2, sB2 = 8, 10, 12, 14, 16, 18, 20, 22
sOUT, sDBG, sWS = 24, 26, 28
sEP, sKS = 30, 31
rX, rSRC, rDST, rW1, rW2, rOUT, rWS = 32, 36, 40, 44, 48, 52, 56
sWAVE = 60
sROT = 61
sSTG = 62
sT0, sT1, sT2, sT3 = 63, 64, 65, 66
sW2T = 67
sM0, sM1, sM2, sM3 = 68, 70, 72, 74
sMASK, sMASK2 = 76, 78
sREM, sI, sNODE, sPC, sEPSF, sF = 80, 81, 82, 83, 86, 87
sRET = 88
sPM = 90
sEXM = 92
sSTAMP = 94
vST0 = 31
sBASE = 96
sW2K = 97
sST0 = 94
sFT = 100
sCTR = 101
sG0 = 84
sPR = 84
sHLP = 93
sRS = 92
sPH = 98
sNGT = 29
sTSEL = 28
sRET2 = 92
sSELLO, sSELHI = 85, 99
sE = 8
sSB = 14
sROWT = 20
sRW = 22


def srd(r):
    return f"s[{r}:{r+3}]"


def sp(r):
    return f"s[{r}:{r+1}]"


def vr(r, n):
    return f"v[{r}:{r+n-1}]"


vLANE, vG, vN = 1, 2, 3
vOUTA, vFLG = 0, 124
vT0, vT1, vT2, vT3 = 4, 5, 6, 7
vASUM, vGACC, vENT = 8, 12, 16
vGOFF, vLADDR, vHW, vG1B, vH1W, vG2B, vSTV, vT4, vL16, vBIA, vOWN = 20, 21, 22, 23, 24, 25, 26, 27, 28, 29, 30
vRING = 32
vW = 128
NVGPR = 256
vOA, vOB = 122, 123
vTR = 124
vT16 = 120
vU = 121
vOR = 96
vBL = 108
vQ = 80
vPA = 119

stamp_idx = [1]
stamp_names = ["entry"]


def stamp(name="s", idx=None):
    if not STAMPS:
        return None
    if idx is None:
        idx = stamp_idx[0]
        stamp_idx[0] += 1
        stamp_names.append(name)
    a(f"""{'s_memtime' if '--cyc' in sys.argv else 's_memrealtime'} {sp(sSTAMP)}
    s_waitcnt lgkmcnt(0)
    v_writelane_b32 v{vSTV}, s{sSTAMP}, {idx}""")
    return idx


def mksrd(r, p, size):
    a(f"""s_mov_b32 s{r}, s{p}
    s_and_b32 s{r+1}, s{p+1}, 0xffff
    s_mov_b32 s{r+2}, {size}
    s_mov_b32 s{r+3}, 0x00020000""")


a(f"""s_cmp_ge_u32 s2, {NB}
s_cbranch_scc1 L_end""")
if STAMPS:
    a(f"s_memrealtime {sp(sST0)}\nv_mov_b32 v{vSTV}, 0")
a(f"""s_load_dwordx16 s[8:23], s[0:1], 0
s_load_dwordx4 s[24:27], s[0:1], 64
s_load_dwordx2 s[28:29], s[0:1], 80
v_and_b32 v{vLANE}, 63, v0
v_lshrrev_b32 v{vT0}, 6, v0
v_lshrrev_b32 v{vG}, 4, v{vLANE}
v_readfirstlane_b32 s{sWAVE}, v{vT0}
v_and_b32 v{vN}, 15, v0
s_mul_i32 s{sBASE}, s2, {R}
v_lshlrev_b32 v{vL16}, 4, v{vLANE}
v_lshlrev_b32 v{vT16}, 4, v0
v_mov_b32 v{vRING}, {EMPTY}
v_mov_b32 v{vRING+1}, {EMPTY}
v_mov_b32 v{vRING+2}, {EMPTY}
v_mov_b32 v{vRING+3}, {EMPTY}
ds_write_b128 v{vT16}, {vr(vRING,4)} offset:{BT_OFF}
ds_write_b128 v{vT16}, {vr(vRING,4)} offset:{BT_OFF+8192}
v_mov_b32 v{vENT}, {OOB}
v_mov_b32 v{vENT+1}, {OOB}
v_mov_b32 v{vENT+2}, {OOB}
v_mov_b32 v{vENT+3}, {OOB}
ds_write_b128 v{vT16}, {vr(vENT,4)} offset:{BK_OFF}
v_mov_b32 v{vT1}, 0
v_lshlrev_b32 v{vT2}, 2, v0
v_cmp_gt_u32 vcc, 256, v0
s_and_saveexec_b64 {sp(sM0)}, vcc
ds_write_b32 v{vT2}, v{vT1} offset:{BC_OFF}
v_cmp_gt_u32 vcc, 128, v0
s_and_b64 exec, exec, vcc
ds_write_b128 v{vT16}, {vr(vENT,4)} offset:{BK_OFF+8192}
ds_write_b32 v{vT2}, v{vT1} offset:{CNT_OFF}
s_mov_b64 exec, {sp(sM0)}
s_lshr_b32 s{sPR}, s2, 4
s_lshl_b32 s{sPR}, s{sPR}, 3
s_and_b32 s{sT0}, s2, 7
s_add_u32 s{sPR}, s{sPR}, s{sT0}
s_lshl_b32 s{sF}, s{sPR}, 1
s_lshr_b32 s{sT0}, s{sWAVE}, 2
s_add_u32 s{sF}, s{sF}, s{sT0}
s_and_b32 s{sT0}, s{sWAVE}, 3
s_cmp_eq_u32 s{sT0}, 3
s_cselect_b32 s{sHLP}, 1, 0
s_cmp_lt_u32 s{sF}, 128
s_cselect_b32 s{sHLP}, s{sHLP}, 0
s_bitcmp1_b32 s2, 3
s_cselect_b32 s{sHLP}, s{sHLP}, 0
s_cselect_b32 s{sPR}, 255, s{sPR}
s_mul_i32 s{sT0}, s{sPR}, {EPP*4}
s_mul_i32 s{sT1}, s{sWAVE}, 640
s_add_u32 s{sT0}, s{sT0}, s{sT1}
v_lshlrev_b32 v{vT2}, 2, v{vLANE}
s_lshr_b32 s{sROT}, s2, 3
s_mov_b32 s{rSRC+2}, 640000
s_mov_b32 s{rSRC+3}, 0x00020000
s_mov_b32 s{rDST+2}, 640000
s_mov_b32 s{rDST+3}, 0x00020000
s_waitcnt lgkmcnt(0)
s_mov_b32 s{rDST}, s{sDST}
s_and_b32 s{rDST+1}, s{sDST+1}, 0xffff
s_mov_b32 s{rSRC}, s{sSRC}
s_and_b32 s{rSRC+1}, s{sSRC+1}, 0xffff
""")
if STAMPS:
    a(f"v_writelane_b32 v{vSTV}, s{sST0}, 0")
vD, vS, vBI, vSL = 32, 36, 40, 44
a(f"""s_cmp_ge_u32 s{sPR}, {NP}
s_cbranch_scc1 L_noedge
buffer_load_dword v{vD}, v{vT2}, {srd(rDST)}, s{sT0} offen
buffer_load_dword v{vD+1}, v{vT2}, {srd(rDST)}, s{sT0} offen offset:256
buffer_load_dword v{vS}, v{vT2}, {srd(rSRC)}, s{sT0} offen
buffer_load_dword v{vS+1}, v{vT2}, {srd(rSRC)}, s{sT0} offen offset:256
s_mov_b32 exec_hi, 0
buffer_load_dword v{vD+2}, v{vT2}, {srd(rDST)}, s{sT0} offen offset:512
buffer_load_dword v{vS+2}, v{vT2}, {srd(rSRC)}, s{sT0} offen offset:512
s_mov_b64 exec, -1
""")
a.label("L_noedge")
a(f"""s_load_dword s{sEP}, {sp(sWS)}, {EPOCH_OFF}
s_load_dword s{sEPSF}, {sp(sEPS)}, 0
""")
mksrd(rW1, sW1, 262144)
mksrd(rX, sX, 5120000)
a("s_barrier")
if CPF:
    a(f"""s_cmp_lg_u32 s{sWAVE}, 7
    s_cbranch_scc1 L_nocpf
    s_getpc_b64 {sp(sM1)}""")
    a.label("L_cpf")
    a(f"""v_lshlrev_b32 v{vT1}, 7, v{vLANE}
    global_load_dword v{vOWN+1}, v{vT1}, {sp(sM1)}
    v_add_u32 v{vT1}, 8192, v{vT1}
    v_min_u32 v{vT1}, L_end-L_cpf, v{vT1}
    s_mov_b32 exec_hi, 0
    global_load_dword v{vOWN+1}, v{vT1}, {sp(sM1)}
    s_mov_b64 exec, -1""")
    a.label("L_nocpf")
NEARLY = 0
if TT:
    a(f"""s_lshl_b32 s{sT0}, s2, 14
    s_lshl_b32 s{sT1}, s{sWAVE}, 11
    s_add_u32 s{sT0}, s{sT0}, s{sT1}
    s_add_u32 s{sT0}, s{sT0}, {TBL_OFF}
    v_lshlrev_b32 v{vT1}, 7, v{vLANE}
    v_add_u32 v{vT1}, s{sT0}, v{vT1}
    s_mov_b64 exec, 0xffff
    global_load_dword v{vOWN}, v{vT1}, {sp(sWS)} sc1
    s_mov_b64 exec, -1""")
    NEARLY += 1
if W1T:
    a(f"""s_lshl_b32 s{sT0}, s{sROT}, 3
    s_add_u32 s{sT0}, s{sT0}, s{sWAVE}
    s_lshl_b32 s{sT0}, s{sT0}, 10
    v_lshlrev_b32 v{vT1}, 7, v{vLANE}
    s_mov_b64 exec, 0xff
    buffer_load_dword v{vOWN}, v{vT1}, {srd(rW1)}, s{sT0} offen
    s_mov_b64 exec, -1""")
    NEARLY += 1


def own_loads():
    a(f"""s_mul_i32 s{sT0}, s{sWAVE}, 5
    s_add_u32 s{sT0}, s{sT0}, s{sBASE}
    s_lshl_b32 s{sT0}, s{sT0}, 9
    buffer_load_dwordx4 {vr(vOR,4)}, v{vL16}, {srd(rX)}, s{sT0} offen
    buffer_load_dwordx4 {vr(vOR+4,4)}, v{vL16}, {srd(rX)}, s{sT0} offen offset:1024
    s_mov_b32 exec_hi, 0
    buffer_load_dwordx4 {vr(vOR+8,4)}, v{vL16}, {srd(rX)}, s{sT0} offen offset:2048
    s_mov_b64 exec, -1
    """)


def own_store():
    a(f"""v_lshrrev_b32 v{vT1}, 5, v{vLANE}
    s_mul_i32 s{sT0}, s{sWAVE}, 5
    v_add_u32 v{vT1}, s{sT0}, v{vT1}
    v_mul_u32_u24 v{vT1}, {H_STR}, v{vT1}
    v_add_u32 v{vT1}, v{vT1}, v{vGOFF}
    ds_write_b128 v{vT1}, {vr(vOR,4)} offset:{H_OFF}
    ds_write_b128 v{vT1}, {vr(vOR+4,4)} offset:{H_OFF+2*H_STR}
    s_mov_b32 exec_hi, 0
    ds_write_b128 v{vT1}, {vr(vOR+8,4)} offset:{H_OFF+4*H_STR}
    s_mov_b64 exec, -1""")


if OWNPOS == 0:
    own_loads()
    NEARLY += 3
a(f"""s_sub_u32 s{sT2}, s{sWAVE}, 1
s_cmp_ge_u32 s{sT2}, 2
s_cbranch_scc1 L_nbl
s_cmp_eq_u32 s{sT2}, 0
s_cselect_b32 s{sM0}, s{sB1}, s{sB2}
s_cselect_b32 s{sM0+1}, s{sB1+1}, s{sB2+1}
s_cselect_b32 exec_hi, -1, 0
global_load_dwordx4 {vr(vBL,4)}, v{vL16}, {sp(sM0)}
s_mov_b64 exec, -1
""")

def frag_issue():
    a(f"""v_lshrrev_b32 v{vT2}, 5, v{vLANE}
    v_bfe_u32 v{vT3}, v{vLANE}, 4, 1
    v_lshl_add_u32 v{vT1}, v{vT3}, 4, v{vT2}
    s_and_b32 s{sT1}, s{sF}, 7
    s_lshl_b32 s{sT1}, s{sT1}, 1
    s_and_b32 s{sT0}, s{sF}, 8
    s_lshl_b32 s{sT0}, s{sT0}, 2
    s_add_u32 s{sT1}, s{sT1}, s{sT0}
    v_add_u32 v{vT1}, s{sT1}, v{vT1}
    v_lshrrev_b32 v{vT2}, 2, v{vT1}
    v_and_b32 v{vT1}, 3, v{vT1}
    v_lshlrev_b32 v{vT2}, 14, v{vT2}
    v_lshl_add_u32 v{vT2}, v{vT1}, 11, v{vT2}
    v_and_b32 v{vT1}, 15, v{vLANE}
    v_lshl_add_u32 v{vT2}, v{vT1}, 2, v{vT2}
    s_lshr_b32 s{sT0}, s{sF}, 4
    s_lshl_b32 s{sT0}, s{sT0}, 6
    s_add_u32 s{sT1}, s{sT0}, 8192
    """)
    for e in range(8):
        a(f"buffer_load_dword v{vQ+e}, v{vT2}, {srd(rW2)}, s{sT0 if e<4 else sT1} offen offset:{(e&3)*512}")


def frag_finish(cnt):
    a(f"""s_lshl_b32 s{sT0}, s{sF}, 11
    s_add_u32 s{sT0}, s{sT0}, s{sW2T}
    s_mov_b32 s{sSELLO}, 0x05040100
    s_mov_b32 s{sSELHI}, 0x07060302
    s_waitcnt vmcnt({cnt})
    """)
    for e in range(4):
        a(f"""v_perm_b32 v{vQ+8+e}, v{vQ+2*e+1}, v{vQ+2*e}, s{sSELLO}
        v_perm_b32 v{vQ+12+e}, v{vQ+2*e+1}, v{vQ+2*e}, s{sSELHI}""")
    a(f"""buffer_store_dwordx4 {vr(vQ+8,4)}, v{vL16}, {srd(rWS)}, s{sT0} offen sc1
    buffer_store_dwordx4 {vr(vQ+12,4)}, v{vL16}, {srd(rWS)}, s{sT0} offen offset:1024 sc1
    s_nop 1""")


a.label("L_nbl")
mksrd(rW2, sW2, 262144)
a(f"""s_cmp_eq_u32 s{sHLP}, 0
s_cbranch_scc1 L_nohelp0
""")
frag_issue()
a.label("L_nohelp0")
mksrd(rWS, sWS, WS_BYTES)
mksrd(rOUT, sOUT, 5120000)
a(f"""s_mov_b32 s{sW2T}, {W2T_OFF}
v_lshrrev_b32 v{vT1}, 1, v{vG}
v_and_b32 v{vT2}, 1, v{vG}
v_lshl_add_u32 v{vU}, v{vT2}, 4, v{vT1}
s_lshl_b32 s{sT0}, s{sWAVE}, 7
s_mul_i32 s{sSTG}, s{sWAVE}, {NSL*4096}
s_add_u32 s{sSTG}, s{sSTG}, {ST_OFF}
v_lshrrev_b32 v{vT1}, 3, v{vLANE}
v_and_b32 v{vT3}, 2, v{vT1}
v_and_b32 v{vT4}, 7, v{vLANE}
v_xor_b32 v{vT4}, v{vT4}, v{vT3}
v_lshlrev_b32 v{vOA}, 10, v{vT1}
v_add_u32 v{vOA}, s{sT0}, v{vOA}
v_xor_b32 v{vT3}, 4, v{vT4}
v_lshl_add_u32 v{vOB}, v{vT3}, 4, v{vOA}
v_add_u32 v{vOB}, 0x20000, v{vOB}
v_lshl_add_u32 v{vOA}, v{vT4}, 4, v{vOA}
v_and_b32 v{vGOFF}, 31, v{vLANE}
v_lshlrev_b32 v{vGOFF}, 4, v{vGOFF}
""")
a(f"""v_lshrrev_b32 v{vT1}, 1, v{vG}
v_lshrrev_b32 v{vLADDR}, 5, v{vLANE}
v_lshlrev_b32 v{vLADDR}, 4, v{vLADDR}
s_lshl_b32 s{sT0}, s{sWAVE}, 10
v_add_u32 v{vLADDR}, s{sT0}, v{vLADDR}
v_lshl_add_u32 v{vHW}, v{vT1}, 4, v{vN}
v_lshlrev_b32 v{vHW}, 4, v{vHW}
v_lshl_add_u32 v{vHW}, v{vT2}, 3, v{vHW}
v_mul_u32_u24 v{vG1B}, {H_STR}, v{vN}
v_lshl_add_u32 v{vG1B}, v{vU}, 4, v{vG1B}
v_mul_u32_u24 v{vT3}, {H1_STR}, v{vN}
v_add_u32 v{vT3}, {H1_OFF}, v{vT3}
v_lshl_add_u32 v{vG2B}, v{vU}, 4, v{vT3}
s_lshl_b32 s{sT0}, s{sWAVE}, 7
v_lshl_add_u32 v{vH1W}, v{vG}, 4, v{vT3}
v_add_u32 v{vH1W}, s{sT0}, v{vH1W}
s_lshl_b32 s{sT0}, s{sWAVE}, 8
v_lshlrev_b32 v{vBIA}, 4, v{vG}
v_add_u32 v{vBIA}, s{sT0}, v{vBIA}
v_lshrrev_b32 v{vT1}, 2, v{vN}
v_and_b32 v{vT3}, 2, v{vT1}
v_lshl_add_u32 v{vT3}, v{vT2}, 2, v{vT3}
v_lshlrev_b32 v{vT4}, 10, v{vG}
v_lshl_add_u32 v{vT4}, v{vT1}, 7, v{vT4}
v_and_b32 v{vT1}, 3, v{vN}
v_lshl_add_u32 v{vT4}, v{vT1}, 3, v{vT4}
v_add_u32 v{vT4}, s{sSTG}, v{vT4}
""")
for T in range(4):
    a(f"""v_xor_b32 v{vT1}, {2*T}, v{vT3}
    v_lshl_add_u32 v{vTR+T}, v{vT1}, 4, v{vT4}""")
a(f"""v_mov_b32 v{vT3}, 0x3f80
v_and_b32 v{vT0}, 1, v{vN}
v_lshlrev_b32 v{vT0}, 4, v{vT0}
v_lshlrev_b32 v{vT3}, v{vT0}, v{vT3}
v_lshlrev_b32 v{vT1}, 2, v{vT2}
v_lshrrev_b32 v{vT0}, 1, v{vN}
v_sub_u32 v{vT0}, v{vT0}, v{vT1}
""")
for r in range(4):
    a(f"""v_cmp_eq_u32 vcc, {r}, v{vT0}
    v_mov_b32 v{vGACC+r}, 0
    s_nop 0
    v_cndmask_b32 v{vASUM+r}, 0, v{vT3}, vcc""")
a(f"""v_cmp_gt_u32 vcc, 500, v0
s_mov_b64 {sp(sPM)}, vcc
s_lshl_b32 s{sFT}, s2, 13
s_add_u32 s{sFT}, s{sFT}, {TBL_OFF}
s_cmp_ge_u32 s{sPR}, {NP}
s_cbranch_scc1 L_stream
s_lshl_b32 s{sT0}, s{sPR}, 6
s_add_u32 s{sT0}, s{sT0}, {TBL_OFF}
v_lshrrev_b32 v{vT2}, 2, v0
v_lshlrev_b32 v{vT3}, 2, v{vT2}
v_and_b32 v{vT1}, 3, v0
v_lshlrev_b32 v{vT1}, 4, v{vT1}
v_lshl_add_u32 v{vT2}, v{vT2}, 13, v{vT1}
v_mov_b32 v{vT4}, 1
s_setprio 3
s_sub_u32 s{sT2}, s{sWAVE}, 1
s_cmp_lt_u32 s{sT2}, 2
s_cbranch_scc1 L_ew1
s_waitcnt vmcnt({NEARLY})
""")
a.label("L_ew1")
a(f"s_waitcnt vmcnt({NEARLY+1})")
stamp("edges")


def mktags():
    a(f"s_add_u32 s{sEP}, s{sEP}, 1")
    for i in range(4):
        a(f"s_add_u32 s{sTAG+i}, s{sEP}, {TAGC[i]}\ns_lshl_b32 s{sTAG+i}, s{sTAG+i}, 20")


for i in range(3):
    if i == 2:
        a("s_mov_b32 exec_hi, 0")
    a(f"""v_mul_u32_u24 v{vBI+i}, 0xcccd, v{vD+i}
    v_lshrrev_b32 v{vBI+i}, 21, v{vBI+i}
    v_lshlrev_b32 v{vT1}, 2, v{vBI+i}
    ds_add_rtn_u32 v{vSL+i}, v{vT1}, v{vT4} offset:{BC_OFF}""")
a("s_mov_b64 exec, -1")
for i in range(3):
    a(f"""v_mul_u32_u24 v{vT1}, {R}, v{vBI+i}
    v_sub_u32 v{vT1}, v{vD+i}, v{vT1}
    v_lshl_or_b32 v{vS+i}, v{vT1}, 14, v{vS+i}
    v_lshlrev_b32 v{vBI+i}, 6, v{vBI+i}""")
a("s_waitcnt lgkmcnt(0)")
for i in range(3):
    if i == 2:
        a("s_mov_b32 exec_hi, 0")
    a(f"""v_min_u32 v{vT1}, {CAP-1}, v{vSL+i}
    v_lshl_add_u32 v{vT1}, v{vT1}, 2, v{vBI+i}
    ds_write_b32 v{vT1}, v{vS+i} offset:{BT_OFF}""")
a("s_mov_b64 exec, -1")
mktags()
a(f"""v_mov_b32 v{vT1}, {OVFM}
s_waitcnt lgkmcnt(0)
s_barrier""")
NT = 64 * STW
NK = 1024 // NT
WO = 64
if STW < 8:
    a(f"s_cmp_ge_u32 s{sWAVE}, {STW}\ns_cbranch_scc1 L_nostore")
for k in range(NK):
    a(f"""ds_read_b128 {vr((32 if NK <= 4 else 48)+4*k,4)}, v{vT16} offset:{BT_OFF+NT*16*k}""")
    if NK > 4 and k == 3:
        pass
for k in range(NK):
    a(f"ds_read_b32 v{(112 if NK <= 4 else 40)+k}, v{vT3} offset:{BC_OFF+NT*k}")
a("s_waitcnt lgkmcnt(0)")
for k in range(NK):
    vE = (32 if NK <= 4 else 48) + 4 * k
    vC = (112 if NK <= 4 else 40) + k
    a(f"""v_cmp_lt_u32 vcc, {CAP}, v{vC}
    v_or_b32 v{vE+1}, s{sTAG+1}, v{vE+1}
    v_or_b32 v{vE+2}, s{sTAG+2}, v{vE+2}
    v_cndmask_b32 v{vE}, v{vE}, v{vT1}, vcc
    v_or_b32 v{vE+3}, s{sTAG+3}, v{vE+3}
    v_or_b32 v{vE}, s{sTAG}, v{vE}""")
    if k == NK - 1:
        a(f"""v_cmp_gt_u32 vcc, {1000 - NT*(NK-1)}, v0
        s_mov_b64 exec, vcc""")
    a(f"""buffer_store_dwordx4 {vr(vE,4)}, v{vT2}, {srd(rWS)}, s{sT0} offen sc1
    s_add_u32 s{sT0}, s{sT0}, {(NT//4)*TBL_BLOCK}""")
a("s_nop 1")
a.label("L_nostore")
a("s_mov_b64 exec, -1\ns_setprio 0")
stamp("published")
a.label("L_stream")


ops = []


def younger(tag):
    i = len(ops) - 1 - ops[::-1].index(tag)
    return len(ops) - 1 - i


def dma_w1(ks):
    a(f"""s_add_u32 s{sKS}, s{sROT}, {ks}
    s_and_b32 s{sKS}, s{sKS}, 7
    s_lshl_b32 s{sKS}, s{sKS}, 14
    s_add_u32 s{sT3}, s{sKS}, 8192""")
    for g in range(4):
        a(f"""s_add_u32 m0, s{sSTG}, {(ks%NSL)*4096+g*1024}
        s_nop 0
        buffer_load_dwordx4 v{vOB if g&1 else vOA}, {srd(rW1)}, s{sT3 if g>>1 else sKS} offen lds""")
        ops.append(f"d{ks}")


def tr_w1(ks):
    for T in range(4):
        for jh in range(2):
            d = vW + ks * 16 + T * 4 + jh * 2
            a(f"ds_read_b64_tr_b16 {vr(d,2)}, v{vTR+T} offset:{(ks%NSL)*4096+jh*512}")


vE = vRING + 8
vE2 = vRING + 24
vLD, vSL, vAD = vRING + 12, vRING + 16, vRING + 20
masks = [sM0, sM1, sM2, sM3]


def poll_loads():
    a(f"buffer_load_dwordx4 {vr(vE,4)}, v{vT16}, {srd(rWS)}, s{sFT} offen sc1")


def poll_check_and_insert():
    a(f"""s_cmp_lt_u32 s{sPR}, {NP}
    s_cbranch_scc1 L_hastag""")
    mktags()
    a.label("L_hastag")
    a(f"""s_mov_b32 s{sPC}, 0
    s_mov_b32 s{sT2}, 0x100000
    v_mov_b32 v{vT4}, 1
    s_mov_b64 {sp(sMASK)}, 0
    s_mov_b32 s{sRS}, 0
    s_mov_b64 exec, {sp(sPM)}
    s_waitcnt vmcnt({younger('p')})""")
    a.label("L_pchk")
    for i in range(4):
        a(f"v_xor_b32 v{vE+i}, s{sTAG+i}, v{vE+i}")
    a(f"""v_or3_b32 v{vT1}, v{vE}, v{vE+1}, v{vE+2}
    v_or_b32 v{vT1}, v{vT1}, v{vE+3}
    v_cmp_le_u32 vcc, s{sT2}, v{vT1}
    s_and_b64 exec, exec, vcc
    s_cbranch_execnz L_pmiss
    """)
    a.label("L_polled")
    a(f"""s_mov_b64 exec, -1
    v_cmp_eq_u32 vcc, {OVFM}, v{vE}
    s_cbranch_vccnz L_setovf
    """)
    a.label("L_noovf")
    stamp("polled")
    a.label("L_ins")
    for i in range(4):
        a(f"""v_bfe_u32 v{vLD+i}, v{vE+i}, 14, 6
        v_cmp_gt_u32 {sp(masks[i])}, {R}, v{vLD+i}
        v_lshlrev_b32 v{vAD+i}, 2, v{vLD+i}""")
    for i in range(4):
        a(f"""s_mov_b64 exec, {sp(masks[i])}
        ds_add_rtn_u32 v{vSL+i}, v{vAD+i}, v{vT4} offset:{CNT_OFF}""")
    a("s_mov_b64 exec, -1")
    for i in range(4):
        a(f"""v_and_b32 v{vE+i}, 0x3fff, v{vE+i}
        v_lshlrev_b32 v{vE+i}, 9, v{vE+i}
        v_lshlrev_b32 v{vAD+i}, 8, v{vLD+i}""")
    a("s_waitcnt lgkmcnt(0)")
    for i in range(4):
        a(f"""v_min_u32 v{vSL+i}, 63, v{vSL+i}
        v_lshl_add_u32 v{vAD+i}, v{vSL+i}, 2, v{vAD+i}""")
    for i in range(4):
        a(f"""s_mov_b64 exec, {sp(masks[i])}
        ds_write_b32 v{vAD+i}, v{vE+i} offset:{BK_OFF}""")
    a(f"""s_mov_b64 exec, -1
    s_cmp_lg_u64 {sp(sMASK)}, 0
    s_cbranch_scc1 L_rescan
    """)


def is_helper(lab):
    a(f"""s_mov_b32 s{sT0}, s{sF}
    s_cmp_eq_u32 s{sHLP}, 0
    s_cbranch_scc1 {lab}""")


a("s_setprio 2")
for ks in range(NSL):
    dma_w1(ks)
for i in range(4):
    a(f"v_mov_b32 v{vE+i}, {EMPTY}")
for ks in range(KE - NSL):
    a(f"s_waitcnt vmcnt({younger(f'd{ks}')})")
    tr_w1(ks)
    if ks == 0:
        own_store()
        a(f"""s_sub_u32 s{sT2}, s{sWAVE}, 1
        s_cmp_ge_u32 s{sT2}, 2
        s_cbranch_scc1 L_nbias
        v_lshlrev_b32 v{vT1}, 5, v{vLANE}
        s_cmp_eq_u32 s{sT2}, 1
        s_cbranch_scc1 L_bias2
        """)
        for i in range(4):
            a(f"""v_lshlrev_b32 v{64+2*i}, 16, v{vBL+i}
            v_and_b32 v{64+2*i+1}, 0xffff0000, v{vBL+i}""")
        a(f"""ds_write_b128 v{vT1}, {vr(64,4)} offset:{B1F_OFF}
        ds_write_b128 v{vT1}, {vr(68,4)} offset:{B1F_OFF+16}
        s_branch L_nbias
        """)
        a.label("L_bias2")
        for i in range(4):
            a(f"""v_lshlrev_b32 v{64+i}, 16, v{vBL+i}
            v_and_b32 v{68+i}, 0xffff0000, v{vBL+i}""")
        a(f"""s_mov_b32 exec_hi, 0
        ds_write_b128 v{vT1}, {vr(64,4)} offset:{B2F_OFF}
        ds_write_b128 v{vT1}, {vr(68,4)} offset:{B2F_OFF+16}
        s_mov_b64 exec, -1
        """)
        a.label("L_nbias")
    if ks in (1, 3):
        a(f"s_setprio {1 - ks//2}")
    a("s_waitcnt lgkmcnt(0)")
    dma_w1(ks + NSL)
    if ks == 0:
        is_helper("L_nohelp")
        frag_finish(63)
        a.label("L_nohelp")
        if KE < 8:
            a(f"""s_sub_u32 s{sT0}, s2, 136
            s_and_b32 s{sT1}, s{sT0}, 0xffffffc7
            s_cbranch_scc1 L_nodump
            s_and_b32 s{sT0}, s{sROT}, 7
            s_lshl_b32 s{sT0}, s{sT0}, 12
            s_lshl_b32 s{sT1}, s{sWAVE}, 15
            s_add_u32 s{sT0}, s{sT0}, s{sT1}
            s_add_u32 s{sT0}, s{sT0}, {W2T_OFF + 262144}""")
            for f in range(4):
                a(f"buffer_store_dwordx4 {vr(vW+4*f,4)}, v{vL16}, {srd(rWS)}, s{sT0} offen offset:{f*1024} sc1")
            a.label("L_nodump")
    if ks + 1 == POLLK:
        a(f"s_mov_b64 exec, {sp(sPM)}")
        poll_loads()
        a("s_mov_b64 exec, -1")
        ops.extend(["p"])
        stamp("pollissued")
    if ks + 1 == CHKK:
        poll_check_and_insert()
        a(f"""s_sub_u32 s{sT0}, s2, 136
        s_and_b32 s{sT1}, s{sT0}, 0xffffffc7
        s_cbranch_scc1 L_nodf
        s_and_b32 s{sT0}, s{sROT}, 7
        s_lshl_b32 s{sT0}, s{sT0}, 3
        s_add_u32 s{sT0}, s{sT0}, s{sWAVE}
        s_add_u32 s{sT0}, s{sT0}, 128
        s_branch L_doflag""")
        a.label("L_nodf")
        is_helper("L_noflag")
        a.label("L_doflag")
        a(f"""s_mul_i32 s{sT1}, s{sEP}, {FLGM[0]}
        v_mov_b32 v{vT2}, s{sT1}
        s_lshl_b32 s{sT0}, s{sT0}, 2
        s_add_u32 s{sT0}, s{sT0}, {FLG_OFF}
        v_mov_b32 v{vT1}, 0
        s_mov_b64 exec, 1
        buffer_store_dword v{vT2}, v{vT1}, {srd(rWS)}, s{sT0} offen sc1
        s_mov_b64 exec, -1
        """)
        a.label("L_noflag")
if not W1TAIL:
    for ks in range(KE - NSL, KE):
        a(f"s_waitcnt vmcnt({younger(f'd{ks}')})")
        tr_w1(ks)
stamp("w1done")

a(f"""s_lshl_b32 s{sEPSF}, s{sEPSF}, 16
v_add_f32 v{vT0}, s{sEPSF}, 1.0
v_cvt_pk_bf16_f32 v{vT0}, v{vT0}, v{vT0}
v_lshlrev_b32 v{vT0}, 16, v{vT0}
v_add_u32 v{vT3}, s{sBASE}, v{vN}
v_readfirstlane_b32 s{sEPSF}, v{vT0}
v_lshlrev_b32 v{vT3}, 9, v{vT3}
v_lshl_add_u32 v{vT3}, v{vG}, 4, v{vT3}
s_lshl_b32 s{sT0}, s{sWAVE}, 6
v_add_u32 v{vOUTA}, s{sT0}, v{vT3}
v_lshlrev_b32 v{vT0}, 2, v{vLANE}
v_mov_b32 v{vT2}, 0
s_mov_b32 s{sFT}, {FLG_OFF}
s_mov_b32 s{sI}, 0
s_lshl_b32 s{sT0}, s{sWAVE}, 2
s_lshl_b32 s{sT1}, s{sWAVE}, 1
s_add_u32 s{sT1}, s{sT1}, 32
s_add_u32 s{sT2}, s{sT0}, 2
s_cmp_lt_u32 s{sWAVE}, 4
s_cselect_b32 s{sNODE}, 6, 4
s_cselect_b32 s{sRW}, s{sT1}, s{sT0}
s_cselect_b32 s{sRW+2}, s{sT0}, s{sT2}
s_cselect_b32 s{sRW+4}, s{sT2}, 46
s_cselect_b32 s{sPH}, 0, {1 if YPH else 0}
s_add_u32 s{sRW+1}, s{sRW}, 1
s_add_u32 s{sRW+3}, s{sRW+2}, 1
s_add_u32 s{sRW+5}, s{sRW+4}, 1
s_mov_b64 {sp(sROWT)}, 0
""")
for k in range(5, -1, -1):
    a(f"""s_lshl_b64 {sp(sROWT)}, {sp(sROWT)}, 8
    s_or_b32 s{sROWT}, s{sROWT}, s{sRW+k}""")
a(f"""s_mul_i32 s{sT0}, s{sRW}, {H_STR}
v_add_u32 v{vT4}, s{sT0}, v{vHW}
s_mov_b64 {sp(sMASK)}, 0
s_mov_b64 {sp(sMASK2)}, 0
s_lshl_b32 s{sT0}, s{sWAVE}, 15
s_add_u32 s{sW2T}, s{sW2T}, s{sT0}
s_mov_b32 s{sG0}, 0
s_cmp_lt_u32 s{sWAVE}, 4
s_cselect_b32 s{sCTR}, 0, 4
s_setprio {3 if YPH else 1}
s_cbranch_scc0 L_prD
s_setprio 2
""")
a.label("L_prD")
a("""s_waitcnt lgkmcnt(0)
s_barrier
""")
stamp("buckets")
a.label("L_gsetup")
a(f"""ds_read_b32 v{vT1}, v{vT0} offset:{CNT_OFF}
ds_read_b32 v{vT3}, v{vT2} offset:{FLAG_OFF}
ds_read_b64 {vr(vOWN,2)}, v{vT4} offset:{H_OFF}
""")
a(f"""v_cmp_gt_u32 {sp(sM1)}, {R}, v{vLANE}
s_waitcnt lgkmcnt(0)
v_cmp_lt_u32 vcc, 64, v{vT1}
v_add_u32 v{vT1}, 1, v{vT1}
v_lshrrev_b32 v{vT1}, 1, v{vT1}
v_max_u32 v{vT1}, 1, v{vT1}
v_cndmask_b32 v{vT1}, 0, v{vT1}, {sp(sM1)}
v_readfirstlane_b32 s{sTMO}, v{vT3}
""")
for k in range(6):
    a(f"v_readlane_b32 s{sE+k}, v{vT1}, s{sRW+k}")
a(f"""s_cmp_lg_u64 vcc, 0
s_cbranch_scc1 L_slow
s_cmp_lg_u32 s{sTMO}, 0
s_cbranch_scc1 L_slow
""")
for k in range(1, 6):
    a(f"s_add_u32 s{sE+k}, s{sE+k}, s{sE+k-1}")
a(f"""s_cmp_gt_u32 s{sE+5}, 64
s_cbranch_scc1 L_big
v_mov_b32 v{vT0}, v{vLANE}
""")


def build_list():
    a(f"v_mov_b32 v{vT2}, s{sSB}")
    for k in range(1, 6):
        a(f"""v_cmp_le_u32 vcc, s{sE+k-1}, v{vT0}
        v_mov_b32 v{vT3}, s{sSB+k}
        s_nop 0
        v_cndmask_b32 v{vT2}, v{vT2}, v{vT3}, vcc""")
    a(f"""v_lshl_add_u32 v{vT2}, v{vT0}, 3, v{vT2}
    v_mov_b32 v{vENT}, {OOB}
    v_mov_b32 v{vENT+1}, {OOB}
    v_cmp_gt_u32 vcc, s{sE+5}, v{vT0}
    s_mov_b64 exec, vcc
    ds_read_b64 {vr(vENT,2)}, v{vT2} offset:{BK_OFF}
    s_mov_b64 exec, -1
    v_lshrrev_b32 v{vT3}, 2, v{vT0}
    v_lshlrev_b32 v{vT3}, 5, v{vT3}
    v_and_b32 v{vT1}, 3, v{vT0}
    v_lshl_add_u32 v{vT3}, v{vT1}, 2, v{vT3}
    s_lshl_b32 s{sKS}, s{sWAVE}, 10
    v_add_u32 v{vT3}, s{sKS}, v{vT3}
    v_add_u32 v{vT3}, {LIST_OFF}, v{vT3}
    """)


def bases():
    a(f"s_lshl_b32 s{sSB}, s{sRW}, 8")
    for k in range(1, 6):
        a(f"""s_lshl_b32 s{sSB+k}, s{sRW+k}, 5
        s_sub_u32 s{sSB+k}, s{sSB+k}, s{sE+k-1}
        s_lshl_b32 s{sSB+k}, s{sSB+k}, 3""")


bases()
build_list()
for k in range(6):
    a(f"s_sub_u32 s{sKS}, s{sE+k}, 1\ns_bitset1_b64 {sp(sMASK)}, s{sKS}")
a(f"""s_waitcnt lgkmcnt(0)
ds_write2_b32 v{vT3}, v{vENT}, v{vENT+1} offset0:0 offset1:4
""")
a.label("L_listdone")
a(f"""s_add_u32 s{sNGT}, s{sE+5}, 3
s_lshr_b32 s{sNGT}, s{sNGT}, 2
s_max_u32 s{sREM}, s{sNGT}, {RD}
""")
a.label("L_prol")
vPE = 96
for s in range(RD):
    a(f"ds_read_b128 {vr(vPE+4*s,4)}, v{vLADDR} offset:{LIST_OFF+32*s}")
a(f"ds_read_b128 {vr(vENT,4)}, v{vLADDR} offset:{LIST_OFF+32*RD}")


def issue_group(ent, r):
    for j in range(4):
        a(f"v_add_u32 v{ent+j}, v{ent+j}, v{vGOFF}")
    for j in range(4):
        a(f"buffer_load_dwordx4 {vr(vRING+r*16+j*4,4)}, v{ent+j}, {srd(rX)}, 0 offen")


def w1_tail(cnt):
    if W1TAIL:
        a(f"s_waitcnt vmcnt({cnt})")
        for ks in range(KE - NSL, KE):
            tr_w1(ks)


for s in range(RD):
    a(f"s_waitcnt lgkmcnt({RD-s})" if (s < 1 or not W1TAIL) else "s_waitcnt lgkmcnt(0)")
    issue_group(vPE + 4 * s, s)
    if s == 0:
        w1_tail(4)
stamp("gstart")


def mfma_sum(b):
    a(f"v_mfma_f32_16x16x32_bf16 {vr(vGACC,4)}, {vr(vASUM,4)}, {vr(b,4)}, {vr(vGACC,4)}")


stubs = []
drains = []
a.label("L_gloop")
for s in range(RD):
    lgo, ldr, lni = a.newlabel("L_go"), a.newlabel("L_dr"), a.newlabel("L_ni")
    drains.append((ldr, lgo))
    b = vRING + s * 16
    a(f"""s_cmp_lt_u32 s{sREM}, {RD}
    s_cbranch_scc1 {ldr}
    s_waitcnt vmcnt({4*(RD-1)})""")
    a.label(lgo)
    for j in range(4):
        ls, lb = a.newlabel("L_st"), a.newlabel("L_bk")
        stubs.append((ls, lb))
        mfma_sum(b + 4 * j)
        a(f"""s_bitcmp1_b32 s{sMASK}, {4*s+j}
        s_cbranch_scc1 {ls}""")
        a.label(lb)
    a(f"""s_cmp_lt_u32 s{sREM}, {RD+1}
    s_cbranch_scc1 {lni}
    s_waitcnt lgkmcnt(0)""")
    issue_group(vENT, s)
    a(f"ds_read_b128 {vr(vENT,4)}, v{vLADDR} offset:{LIST_OFF+32*(RD+1+s)}")
    a.label(lni)
    a(f"s_sub_u32 s{sREM}, s{sREM}, 1")
a(f"""v_add_u32 v{vLADDR}, 128, v{vLADDR}
s_lshr_b64 {sp(sMASK)}, {sp(sMASK)}, 16
s_add_u32 s{sI}, s{sI}, 1
s_cmp_eq_u32 s{sI}, 4
s_cselect_b64 {sp(sMASK)}, {sp(sMASK2)}, {sp(sMASK)}
s_cmp_lt_u32 s{sI}, 8
s_cbranch_scc1 L_gloop
s_endpgm
""")
for ls, lb in stubs:
    a.label(ls)
    a(f"s_call_b64 {sp(sRET)}, L_fin\ns_branch {lb}")
for ldr, lgo in drains:
    a.label(ldr)
    for k in range(RD - 1, 1, -1):
        ln = a.newlabel("L_dr")
        a(f"""s_cmp_lt_u32 s{sREM}, {k}
        s_cbranch_scc1 {ln}
        s_waitcnt vmcnt({4*(k-1)})
        s_branch {lgo}""")
        a.label(ln)
    a(f"s_waitcnt vmcnt(0)\ns_branch {lgo}")

a.label("L_fin")
a(f"""s_and_b32 s{sT1}, s{sROWT}, 0xff
s_lshr_b64 {sp(sROWT)}, {sp(sROWT)}, 8
s_and_b32 s{sT2}, s{sROWT}, 0xff
s_mul_i32 s{sT1}, s{sT1}, {H_STR}
s_mul_i32 s{sT2}, s{sT2}, {H_STR}
s_waitcnt lgkmcnt(0)
v_lshlrev_b32 v{vT0}, 16, v{vOWN}
v_and_b32 v{vT1}, 0xffff0000, v{vOWN}
v_lshlrev_b32 v{vT2}, 16, v{vOWN+1}
v_and_b32 v{vT3}, 0xffff0000, v{vOWN+1}
v_add_u32 v{vT4}, s{sT2}, v{vHW}
ds_read_b64 {vr(vOWN,2)}, v{vT4} offset:{H_OFF}
v_fma_f32 v{vT0}, v{vT0}, s{sEPSF}, v{vGACC}
v_fma_f32 v{vT1}, v{vT1}, s{sEPSF}, v{vGACC+1}
v_fma_f32 v{vT2}, v{vT2}, s{sEPSF}, v{vGACC+2}
v_fma_f32 v{vT3}, v{vT3}, s{sEPSF}, v{vGACC+3}
v_add_u32 v{vT4}, s{sT1}, v{vHW}
v_cvt_pk_bf16_f32 v{vT0}, v{vT0}, v{vT1}
v_cvt_pk_bf16_f32 v{vT1}, v{vT2}, v{vT3}
v_mov_b32 v{vGACC}, 0
v_mov_b32 v{vGACC+1}, 0
ds_write_b64 v{vT4}, {vr(vT0,2)} offset:{H_OFF}
v_mov_b32 v{vGACC+2}, 0
v_mov_b32 v{vGACC+3}, 0
s_sub_u32 s{sNODE}, s{sNODE}, 1
s_cmp_eq_u32 s{sNODE}, 2
s_cbranch_scc1 L_finflag
s_cmp_eq_u32 s{sNODE}, 0
s_cbranch_scc1 L_gdone
s_setpc_b64 {sp(sRET)}
""")
a.label("L_finflag")
a(f"""buffer_load_dwordx4 {vr(vFLG,4)}, v{vL16}, {srd(rWS)}, s{sFT} offen sc1
s_setpc_b64 {sp(sRET)}
""")

vACC1 = 32
vBB = 64
vW2E = 88
NE = 10


def acc1(t, T):
    return vACC1 + (t * 4 + T) * 4


w2n = [0]
tops = []


def tyounger(tag):
    i = len(tops) - 1 - tops[::-1].index(tag)
    return len(tops) - 1 - i


def w2reg(q):
    if q < NE:
        return vW2E + 4 * q
    return vW + 4 * (q - NE)


def ldw2(n):
    for _ in range(n):
        q = w2n[0]
        if q >= 32:
            return
        if (q & 1) == 0:
            a(f"""s_add_u32 s{sW2K}, s{sROT}, {q>>1}
            s_and_b32 s{sW2K}, s{sW2K}, 7
            s_lshl_b32 s{sW2K}, s{sW2K}, 11
            s_add_u32 s{sW2K}, s{sW2K}, s{sW2T}""")
        a(f"buffer_load_dwordx4 {vr(w2reg(q),4)}, v{vL16}, {srd(rWS)}, s{sW2K} offen offset:{(q&1)*1024} sc1")
        w2n[0] += 1
        tops.append("b")
        if q == 15:
            a(f"s_add_u32 s{sW2T}, s{sW2T}, 16384")


def g1(tiles, last):
    nt = len(tiles)

    def buf(ks, i):
        return vBB + ((ks % 3) * 2 + i) * 4

    def rd(ks):
        a(f"""s_add_u32 s{sKS}, s{sROT}, {ks}
        s_and_b32 s{sKS}, s{sKS}, 7
        s_lshl_b32 s{sKS}, s{sKS}, 5
        v_add_u32 v{vT0+(ks%3)}, s{sKS}, v{vG1B}""")
        for i, t in enumerate(tiles):
            a(f"ds_read_b128 {vr(buf(ks,i),4)}, v{vT0+(ks%3)} offset:{H_OFF+t*16*H_STR}")
    for ks in range(3):
        rd(ks)
    for ks in range(8):
        vm = f"vmcnt({tyounger(f'a{ks}')}) " if (not last and ks >= KE) else ""
        a(f"s_waitcnt {vm}lgkmcnt({nt*min(2, 7-ks)})")
        for i in range(nt):
            for T in range(4):
                fr = vW + ks * 16 + T * 4
                c = acc1(nt - 1, T) if ks == 0 else acc1(i, T)
                a(f"v_mfma_f32_16x16x32_bf16 {vr(acc1(i,T),4)}, {vr(fr,4)}, {vr(buf(ks,i),4)}, {vr(c,4)}")
            if not last and w2n[0] < E1:
                ldw2(1)
        if ks + 3 < 8:
            rd(ks + 3)
        if last:
            ldw2(max(0, min(G1LD, NE + 4 * (ks + 1) - w2n[0])))
    a("s_nop 6")
    for i, t in enumerate(tiles):
        if t == 2:
            a("s_mov_b32 exec_lo, 0x00ff00ff\ns_mov_b32 exec_hi, 0x00ff00ff")
        for aa in range(2):
            o = vBB + (i * 2 + aa) * 4
            for hT in range(2):
                for hh in range(2):
                    s0 = acc1(i, 2 * aa + hT) + 2 * hh
                    a(f"""v_cvt_pk_bf16_f32 v{o+2*hT+hh}, v{s0}, v{s0+1}
                    v_pk_max_i16 v{o+2*hT+hh}, v{o+2*hT+hh}, 0""")
            a(f"ds_write_b128 v{vH1W}, {vr(o,4)} offset:{H1T[t]+aa*64}")
        if t == 2:
            a("s_mov_b64 exec, -1")


def arrive(off):
    a(f"""v_mov_b32 v{vT3}, s{sCTR}
    v_mov_b32 v{vT4}, 1
    s_mov_b64 exec, 1
    ds_add_u32 v{vT3}, v{vT4} offset:{off}
    s_mov_b64 exec, -1""")


def wait_ctr(off, lab):
    a(f"s_mov_b32 s{sT3}, 0\nv_mov_b32 v{vT4}, 0\ns_branch {lab}_in")
    a.label(lab)
    a("s_sleep 1")
    a.label(lab + "_in")
    a(f"""ds_read_b32 v{vT3}, v{vT4} offset:{off}
    s_add_u32 s{sT3}, s{sT3}, 1
    s_waitcnt lgkmcnt(0)
    v_readfirstlane_b32 s{sT1}, v{vT3}
    s_cmp_lt_u32 s{sT3}, 0x4000000
    s_cselect_b32 s{sT2}, 4, 0
    s_cmp_lt_u32 s{sT1}, s{sT2}
    s_cbranch_scc1 {lab}
    """)


a.label("L_gdone")
stamp("gdone")
arrive(DONE_OFF)
a(f"""s_cmp_ge_u32 s{sWAVE}, 4
s_cbranch_scc1 L_noarr
s_setprio 0
""")
a.label("L_noarr")
a(f"""s_mov_b32 s{sT3}, 0
s_mul_i32 s{sT0}, s{sEP}, {FLGM[0]}
s_mul_i32 s{sT1}, s{sEP}, {FLGM[1]}
""")
a.label("L_chk2")
a(f"""s_waitcnt vmcnt(0)
v_xor_b32 v{vFLG}, s{sT0}, v{vFLG}
v_xor_b32 v{vFLG+1}, s{sT0}, v{vFLG+1}
v_xor_b32 v{vFLG+2}, s{sT0}, v{vFLG+2}
v_xor_b32 v{vFLG+3}, s{sT0}, v{vFLG+3}
v_or3_b32 v{vT1}, v{vFLG}, v{vFLG+1}, v{vFLG+2}
v_or_b32 v{vT1}, v{vT1}, v{vFLG+3}
s_mov_b32 exec_hi, 0xffff
v_cmp_ne_u32 vcc, 0, v{vT1}
s_mov_b64 exec, -1
s_cbranch_vccnz L_w2miss
""")
a.label("L_w2ok")
tops.clear()
for ks in range(KE, 8):
    a(f"""s_add_u32 s{sW2K}, s{sROT}, {ks}
    s_and_b32 s{sW2K}, s{sW2K}, 7
    s_lshl_b32 s{sW2K}, s{sW2K}, 12
    s_add_u32 s{sW2K}, s{sW2K}, s{sW2T}
    s_add_u32 s{sW2K}, s{sW2K}, 262144""")
    for f in range(4):
        a(f"buffer_load_dwordx4 {vr(vW+ks*16+f*4,4)}, v{vL16}, {srd(rWS)}, s{sW2K} offen offset:{f*1024} sc1")
        tops.append(f"a{ks}")
for T in range(4):
    a(f"ds_read_b128 {vr(acc1(1,T),4)}, v{vBIA} offset:{B1F_OFF+64*T}")
wait_ctr(DONE_OFF, "L_spA")
stamp("g02start")
g1([0, 2], False)
for T in range(4):
    a(f"ds_read_b128 {vr(acc1(0,T),4)}, v{vBIA} offset:{B1F_OFF+64*T}")
stamp("g02end")
wait_ctr(DONE_OFF + 4, "L_spB")
stamp("g1start")
g1([1], True)
arrive(DONE_OFF + 8)

vACC2 = 32
vB2B = 56


def acc2(t, T):
    return vACC2 + (t * 2 + T) * 4


a(f"""s_lshl_b32 s{sT0}, s{sWAVE}, 8
v_subrev_u32 v{vT0}, s{sT0}, v{vBIA}
v_lshlrev_b32 v{vT0}, 1, v{vT0}
s_lshl_b32 s{sT0}, s{sWAVE}, 7
v_add_u32 v{vT0}, s{sT0}, v{vT0}
ds_read_b128 {vr(acc2(2,0),4)}, v{vT0} offset:{B2F_OFF}
ds_read_b128 {vr(acc2(2,1),4)}, v{vT0} offset:{B2F_OFF+16}
""")
ldw2(2)
stamp("g1end")


def rd2(ks):
    a(f"""s_add_u32 s{sKS}, s{sROT}, {ks}
    s_and_b32 s{sKS}, s{sKS}, 7
    s_lshl_b32 s{sKS}, s{sKS}, 5
    v_add_u32 v{vT1+(ks&1)}, s{sKS}, v{vG2B}""")
    for t in range(3):
        a(f"ds_read_b128 {vr(vB2B+(ks&1)*12+t*4,4)}, v{vT1+(ks&1)} offset:{H1T[t]+(ks>>3)*512}")


for half in range(2):
    wait_ctr(DONE_OFF + 8 + 4 * half, f"L_spG{half}")
    stamp(f"g2h{half}")
    if half == 1 and TPRIO:
        a("s_setprio 0")
    rd2(8 * half)
    rd2(8 * half + 1)
    for ks in range(8 * half, 8 * half + 8):
        assert w2n[0] >= 2 * ks + 2
        a(f"s_waitcnt vmcnt({w2n[0]-2*ks-2}) lgkmcnt({3 if (ks & 7) < 7 else 0})")
        for t in range(3):
            for T in range(2):
                fr = w2reg(2 * ks + T)
                c = acc2(2, T) if ks == 0 else acc2(t, T)
                a(f"v_mfma_f32_16x16x32_bf16 {vr(acc2(t,T),4)}, {vr(fr,4)}, {vr(vB2B+(ks&1)*12+t*4,4)}, {vr(c,4)}")
            if t < 2:
                ldw2(1)
        if (ks & 7) + 2 < 8:
            rd2(ks + 2)
a(f"s_mov_b32 s{sT2}, 8192\ns_mov_b32 s{sT3}, 16384")
a("s_nop 3")
vO = 88
for t in range(3):
    for r in range(4):
        a(f"v_cvt_pk_bf16_f32 v{vO+t*4+r}, v{acc2(t,0)+r}, v{acc2(t,1)+r}")
    if t == 2:
        a("s_mov_b32 exec_lo, 0x00ff00ff\ns_mov_b32 exec_hi, 0x00ff00ff")
    so = ["0", f"s{sT2}", f"s{sT3}"][t]
    a(f"buffer_store_dwordx4 {vr(vO+t*4,4)}, v{vOUTA}, {srd(rOUT)}, {so} offen {['', 'nt', 'sc1', 'sc0 sc1', 'sc1 nt'][OPOL]}")
a(f"""s_mov_b64 exec, 1
v_mov_b32 v{vT1}, s{sEP}
v_mov_b32 v{vT2}, {EPOCH_OFF}
s_lshr_b32 s{sT0}, s{sTMO}, 1
s_or_b32 s{sT0}, s{sT0}, s{sWAVE}
s_cmp_lg_u32 s{sT0}, 0
s_cbranch_scc1 L_noep
buffer_store_dword v{vT1}, v{vT2}, {srd(rWS)}, 0 offen
""")
a.label("L_noep")
if STAMPS:
    a("s_mov_b64 exec, -1")
    stamp("end")
    a(f"""s_lshl_b32 s{sT0}, s2, 10
    s_lshl_b32 s{sT1}, s{sWAVE}, 7
    s_add_u32 s{sT0}, s{sT0}, s{sT1}
    s_add_u32 s{sT0}, s{sT0}, 0x800000
    v_lshlrev_b32 v{vT1}, 2, v{vLANE}
    s_mov_b32 exec_hi, 0
    buffer_store_dword v{vSTV}, v{vT1}, {srd(rWS)}, s{sT0} offen""")
a.label("L_end")
a("s_endpgm")

a.label("L_pmiss")
a(f"""s_add_u32 s{sPC}, s{sPC}, 1
s_cmp_ge_u32 s{sPC}, {SPIN_MAX}
s_cbranch_scc1 L_ptimeout
s_sleep {PSLEEP}
""")
poll_loads()
a("s_waitcnt vmcnt(0)\ns_branch L_pchk")
a.label("L_ptimeout")
a(f"""s_mov_b64 exec, -1
v_mov_b32 v{vT1}, 0
v_mov_b32 v{vT2}, 3
ds_or_b32 v{vT1}, v{vT2} offset:{FLAG_OFF}
""")
for i in range(4):
    a(f"v_mov_b32 v{vE+i}, {EMPTY}\nv_mov_b32 v{vE2+i}, {EMPTY}")
a("s_branch L_polled")
a.label("L_setovf")
a(f"""s_and_b32 s{sMASK}, vcc_lo, 0x11111111
s_and_b32 s{sMASK+1}, vcc_hi, 0x11111111
s_mov_b64 exec, vcc""")
for i in range(4):
    a(f"v_mov_b32 v{vE+i}, {EMPTY}")
a("s_mov_b64 exec, -1\ns_branch L_noovf")
a.label("L_rescan")
a(f"""s_ff1_i32_b64 s{sT0}, {sp(sMASK)}
s_lshr_b32 s{sT1}, s{sT0}, 2
s_lshl_b32 s{sT3}, s{sWAVE}, 4
s_add_u32 s{sT1}, s{sT1}, s{sT3}
s_mul_i32 s{sT1}, s{sT1}, {EPP*4}
s_lshl_b32 s{sT3}, s{sRS}, 10
s_add_u32 s{sT1}, s{sT1}, s{sT3}
buffer_load_dwordx4 {vr(vE2,4)}, v{vL16}, {srd(rDST)}, s{sT1} offen
buffer_load_dwordx4 {vr(vE,4)}, v{vL16}, {srd(rSRC)}, s{sT1} offen
s_add_u32 s{sRS}, s{sRS}, 1
s_cmp_lt_u32 s{sRS}, 5
s_cbranch_scc1 L_rs1
s_mov_b32 s{sRS}, 0
s_bitset0_b64 {sp(sMASK)}, s{sT0}
""")
a.label("L_rs1")
a("s_waitcnt vmcnt(0)")
for i in range(4):
    a(f"""v_subrev_u32 v{vE2+i}, s{sBASE}, v{vE2+i}
    v_min_u32 v{vE2+i}, 63, v{vE2+i}
    v_lshl_or_b32 v{vE+i}, v{vE2+i}, 14, v{vE+i}""")
a("s_branch L_ins")
a.label("L_big")
a(f"""s_cmp_gt_u32 s{sE+5}, 104
s_cbranch_scc1 L_slow
""")
bases()
for rnd in range(2):
    a(f"v_add_u32 v{vT0}, {64*rnd}, v{vLANE}")
    build_list()
    a(f"""s_waitcnt lgkmcnt(0)
    ds_write2_b32 v{vT3}, v{vENT}, v{vENT+1} offset0:0 offset1:4""")
for k in range(6):
    l0, l1 = a.newlabel("L_bm"), a.newlabel("L_bm")
    a(f"""s_sub_u32 s{sKS}, s{sE+k}, 1
    s_cmp_ge_u32 s{sKS}, 64
    s_cbranch_scc1 {l0}
    s_bitset1_b64 {sp(sMASK)}, s{sKS}
    s_branch {l1}""")
    a.label(l0)
    a(f"s_bitset1_b64 {sp(sMASK2)}, s{sKS}")
    a.label(l1)
a("s_branch L_listdone")
a.label("L_w2miss")
a(f"""s_add_u32 s{sT3}, s{sT3}, 1
s_cmp_ge_u32 s{sT3}, {SPIN_MAX}
s_cbranch_scc1 L_w2self
s_sleep 2
buffer_load_dwordx4 {vr(vFLG,4)}, v{vL16}, {srd(rWS)}, s{sFT} offen sc1
s_branch L_chk2
""")
a.label("L_w2self")
a(f"""s_or_b32 s{sTMO}, s{sTMO}, 2
s_lshl_b32 s{sW2T}, s2, 19
s_add_u32 s{sW2T}, s{sW2T}, {PRIV_OFF}
s_lshl_b32 s{sF}, s{sWAVE}, 4
""")
a.label("L_selfw2")
frag_issue()
frag_finish(0)
a(f"""s_add_u32 s{sF}, s{sF}, 1
s_and_b32 s{sT0}, s{sF}, 15
s_cmp_lg_u32 s{sT0}, 0
s_cbranch_scc1 L_selfw2
s_lshl_b32 s{sT0}, s{sWAVE}, 15
s_add_u32 s{sW2T}, s{sW2T}, s{sT0}
s_mov_b32 s{sF}, 0
v_lshrrev_b32 v{vT2}, 5, v{vLANE}
v_bfe_u32 v{vT3}, v{vLANE}, 4, 1
v_lshl_add_u32 v{vT1}, v{vT3}, 4, v{vT2}
v_and_b32 v{vT3}, 15, v{vLANE}
v_lshlrev_b32 v{vT3}, 1, v{vT3}
v_lshl_add_u32 v{vT2}, v{vT1}, 13, v{vT3}
""")
a.label("L_selfw1")
a(f"""s_lshr_b32 s{sT0}, s{sF}, 2
s_lshl_b32 s{sT0}, s{sT0}, 14
s_and_b32 s{sT1}, s{sF}, 3
s_lshl_b32 s{sT1}, s{sT1}, 5
s_add_u32 s{sT0}, s{sT0}, s{sT1}
s_lshl_b32 s{sT1}, s{sWAVE}, 7
s_add_u32 s{sT0}, s{sT0}, s{sT1}
s_add_u32 s{sT1}, s{sT0}, 4096""")
for e in range(8):
    a(f"buffer_load_ushort v{vQ+e}, v{vT2}, {srd(rW1)}, s{sT0 if e<4 else sT1} offen offset:{(e&3)*1024}")
a(f"""s_lshl_b32 s{sT0}, s{sF}, 10
s_add_u32 s{sT0}, s{sT0}, s{sW2T}
s_add_u32 s{sT0}, s{sT0}, 262144
s_waitcnt vmcnt(0)""")
for e in range(4):
    a(f"v_lshl_or_b32 v{vQ+8+e}, v{vQ+2*e+1}, 16, v{vQ+2*e}")
a(f"""buffer_store_dwordx4 {vr(vQ+8,4)}, v{vL16}, {srd(rWS)}, s{sT0} offen sc1
s_add_u32 s{sF}, s{sF}, 1
s_cmp_lt_u32 s{sF}, 32
s_cbranch_scc1 L_selfw1
s_waitcnt vmcnt(0)
s_branch L_w2ok
""")

a.label("L_slow")
w1_tail(0)
vSA = vRING
vSD, vSS, vSB = vRING + 24, vRING + 25, vRING + 28
vHOFF, vLO = vRING + 26, vRING + 27
a(f"""v_mov_b32 v{vT0}, {OOB}
v_cmp_gt_u32 vcc, 32, v{vLANE}
s_mov_b32 s{sI}, 0
v_lshlrev_b32 v{vLO}, 2, v{vLANE}
v_cndmask_b32 v{vHOFF}, v{vT0}, v{vGOFF}, vcc
""")
for k in range(6):
    a(f"s_add_u32 s{sE+k}, s{sRW+k}, s{sBASE}")
a(f"""s_cmp_lt_u32 s{sWAVE}, 4
s_cselect_b32 s{sE+4}, s{sE+4}, -1
s_cselect_b32 s{sE+5}, s{sE+5}, -1""")
for r in range(24):
    a(f"v_mov_b32 v{vSA+r}, 0")
a.label("L_sloop")
a(f"""buffer_load_dword v{vSD}, v{vLO}, {srd(rDST)}, s{sI} offen
buffer_load_dword v{vSS}, v{vLO}, {srd(rSRC)}, s{sI} offen
s_waitcnt vmcnt(0)
v_lshlrev_b32 v{vSS}, 9, v{vSS}
""")
for n in range(6):
    l0, l1 = a.newlabel("L_s"), a.newlabel("L_s")
    a(f"v_cmp_eq_u32 {sp(sM0)}, s{sE+n}, v{vSD}")
    a.label(l0)
    a(f"""s_nop 3
    s_cmp_eq_u64 {sp(sM0)}, 0
    s_cbranch_scc1 {l1}
    s_ff1_i32_b64 s{sT1}, {sp(sM0)}
    s_bitset0_b64 {sp(sM0)}, s{sT1}
    v_readlane_b32 s{sT2}, v{vSS}, s{sT1}
    s_nop 4
    buffer_load_dwordx4 {vr(vSB,4)}, v{vHOFF}, {srd(rX)}, s{sT2} offen
    s_waitcnt vmcnt(0)
    v_mfma_f32_16x16x32_bf16 {vr(vSA+4*n,4)}, {vr(vASUM,4)}, {vr(vSB,4)}, {vr(vSA+4*n,4)}
    s_nop 7
    s_branch {l0}""")
    a.label(l1)
a(f"""s_add_u32 s{sI}, s{sI}, 256
s_cmp_lt_u32 s{sI}, 640000
s_cbranch_scc1 L_sloop
s_nop 7
""")
for n in range(6):
    for r in range(4):
        a(f"v_mov_b32 v{vGACC+r}, v{vSA+4*n+r}")
    a(f"s_call_b64 {sp(sRET)}, L_fin")
a("s_endpgm")

hdr = open("cdna_kernels/%s.s.ref" % NAME).read().split("; Override launch")[0]
out = hdr + f"""; @launch grid=({NB},1,1) block=(512,1,1) lds={LDS_BYTES}
.amdgcn_target "amdgcn-amd-amdhsa--gfx950"
.text
.globl {NAME}_kernel
.p2align 8
.type {NAME}_kernel,@function
{NAME}_kernel:
""" + "\n".join(a.lines) + f"""
.section .rodata,"a"
.p2align 6
.amdhsa_kernel {NAME}_kernel
  .amdhsa_next_free_vgpr {NVGPR}
  .amdhsa_next_free_sgpr 102
  .amdhsa_accum_offset {NVGPR}
  .amdhsa_group_segment_fixed_size 0
  .amdhsa_kernarg_size 88
  .amdhsa_user_sgpr_count 2
  .amdhsa_user_sgpr_kernarg_segment_ptr 1
  .amdhsa_system_sgpr_workgroup_id_x 1
.end_amdhsa_kernel
"""
dst = [x for x in sys.argv[1:] if not x.startswith("--")]
open(dst[0] if dst else f"cdna_kernels/{NAME}.s", "w").write(out)
print("stamps:", stamp_idx[0], " ".join(f"{i}:{n}" for i, n in enumerate(stamp_names)))
```

```python
import sys

NAME = "gather_scatter__isomorphism_gin_2__graph"
NB = 250
R = 40
EPP = 1280
NP = 125
CAP = 16
TBL_BLOCK = 8192
NH = 128
HWV = 3
HB = 8
EPOCH_OFF = 0
W2T_OFF = 0x10000
FLG_OFF = 0x1000
TBL_OFF = 0x100000
PRIV_OFF = 0x1000000
WS_BYTES = PRIV_OFF + NB * 524288
TAGC = [0x000, 0x555, 0xAAA, 0x3C3]
FLGM = [0x9E3779B1, 0x85EBCA77]
EMPTY = 0xfc000
OVFM = 0xf8000

CNT_OFF = 0
FLAG_OFF = 256
DONE_OFF = 264
B1F_OFF = 512
B2F_OFF = 2560
BK_OFF = 3584
H_OFF = BK_OFF + 10240
H_STR = 528
LIST_OFF = H_OFF + 40 * H_STR
H1_OFF = LIST_OFF + 8192
H1_STR = 1040
BT_OFF = H1_OFF
BC_OFF = BT_OFF + 16384
NSL = 3
H1T = {0: 0, 2: 16 * H1_STR, 1: 24 * H1_STR}
ST_OFF = BC_OFF + 1024
LDS_BYTES = ST_OFF + 8 * NSL * 4096
assert H1_OFF + 48 * H1_STR <= LDS_BYTES <= 163840 and ST_OFF % 128 == 0

OOB = 0x7F000000
STAMPS = "--stamps" in sys.argv
SPIN_MAX = 100000
RD = 4


def opt(name, default):
    for x in sys.argv:
        if x.startswith("--" + name + "="):
            return int(x.split("=")[1])
    return default


PSLEEP = opt("psleep", 4)
OWNPOS = opt("ownpos", 0)
POLLK = opt("pollk", 2)
CHKK = opt("chkk", 3)
W1T = opt("w1t", 1)
E1 = opt("e1", 10)
G1LD = opt("g1ld", 1)
HINT = opt("hint", 1)
YPH = 0
PREY = opt("prey", 4)
TPRIO = opt("tprio", 1)
CPF = opt("cpf", 0)
W1TAIL = opt("w1tail", 1)
OPOL = opt("opol", 2)
TT = opt("tt", 0)
KE = opt("ke", 6)
STW = opt("stw", 8)
MID = opt("mid", 0)
YG0 = opt("yg0", 0)
YPRE = opt("ypre", 3)


class Asm:
    def __init__(self):
        self.lines = []
        self.n = 0

    def __call__(self, s):
        for l in s.strip().split("\n"):
            self.lines.append("    " + l.strip())

    def label(self, l):
        self.lines.append(l + ":")

    def newlabel(self, p="L"):
        self.n += 1
        return f"{p}_{self.n}"


a = Asm()

sTMO = 3
sTAG = 4
sX, sSRC, sDST, sEPS, sW1, sB1, sW2, sB2 = 8, 10, 12, 14, 16, 18, 20, 22
sOUT, sDBG, sWS = 24, 26, 28
sEP, sKS = 30, 31
rX, rSRC, rDST, rW1, rW2, rOUT, rWS = 32, 36, 40, 44, 48, 52, 56
sWAVE = 60
sROT = 61
sSTG = 62
sT0, sT1, sT2, sT3 = 63, 64, 65, 66
sW2T = 67
sM0, sM1, sM2, sM3 = 68, 70, 72, 74
sMASK, sMASK2 = 76, 78
sREM, sI, sNODE, sPC, sEPSF, sF = 80, 81, 82, 83, 86, 87
sRET = 88
sPM = 90
sEXM = 92
sSTAMP = 94
vST0 = 31
sBASE = 96
sW2K = 97
sST0 = 94
sFT = 100
sCTR = 101
sG0 = 84
sPR = 84
sHLP = 93
sRS = 92
sPH = 98
sNGT = 29
sTSEL = 28
sRET2 = 92
sSELLO, sSELHI = 85, 99
sE = 8
sSB = 14
sROWT = 20
sRW = 22


def srd(r):
    return f"s[{r}:{r+3}]"


def sp(r):
    return f"s[{r}:{r+1}]"


def vr(r, n):
    return f"v[{r}:{r+n-1}]"


vLANE, vG, vN = 1, 2, 3
vOUTA, vFLG = 0, 124
vT0, vT1, vT2, vT3 = 4, 5, 6, 7
vASUM, vGACC, vENT = 8, 12, 16
vGOFF, vLADDR, vHW, vG1B, vH1W, vG2B, vSTV, vT4, vL16, vBIA, vOWN = 20, 21, 22, 23, 24, 25, 26, 27, 28, 29, 30
vRING = 32
vW = 128
NVGPR = 256
vOA, vOB = 122, 123
vTR = 124
vT16 = 120
vU = 121
vOR = 96
vBL = 108
vQ = 80
vPA = 119

stamp_idx = [1]
stamp_names = ["entry"]


def stamp(name="s", idx=None):
    if not STAMPS:
        return None
    if idx is None:
        idx = stamp_idx[0]
        stamp_idx[0] += 1
        stamp_names.append(name)
    a(f"""{'s_memtime' if '--cyc' in sys.argv else 's_memrealtime'} {sp(sSTAMP)}
    s_waitcnt lgkmcnt(0)
    v_writelane_b32 v{vSTV}, s{sSTAMP}, {idx}""")
    return idx


def mksrd(r, p, size):
    a(f"""s_mov_b32 s{r}, s{p}
    s_and_b32 s{r+1}, s{p+1}, 0xffff
    s_mov_b32 s{r+2}, {size}
    s_mov_b32 s{r+3}, 0x00020000""")


a(f"""s_cmp_ge_u32 s2, {NB}
s_cbranch_scc1 L_end""")
if STAMPS:
    a(f"s_memrealtime {sp(sST0)}\nv_mov_b32 v{vSTV}, 0")
a(f"""s_load_dwordx16 s[8:23], s[0:1], 0
s_load_dwordx4 s[24:27], s[0:1], 64
s_load_dwordx2 s[28:29], s[0:1], 80
v_and_b32 v{vLANE}, 63, v0
v_lshrrev_b32 v{vT0}, 6, v0
v_lshrrev_b32 v{vG}, 4, v{vLANE}
v_readfirstlane_b32 s{sWAVE}, v{vT0}
v_and_b32 v{vN}, 15, v0
s_mul_i32 s{sBASE}, s2, {R}
v_lshlrev_b32 v{vL16}, 4, v{vLANE}
v_lshlrev_b32 v{vT16}, 4, v0
v_mov_b32 v{vRING}, {EMPTY}
v_mov_b32 v{vRING+1}, {EMPTY}
v_mov_b32 v{vRING+2}, {EMPTY}
v_mov_b32 v{vRING+3}, {EMPTY}
ds_write_b128 v{vT16}, {vr(vRING,4)} offset:{BT_OFF}
ds_write_b128 v{vT16}, {vr(vRING,4)} offset:{BT_OFF+8192}
v_mov_b32 v{vENT}, {OOB}
v_mov_b32 v{vENT+1}, {OOB}
v_mov_b32 v{vENT+2}, {OOB}
v_mov_b32 v{vENT+3}, {OOB}
ds_write_b128 v{vT16}, {vr(vENT,4)} offset:{BK_OFF}
v_mov_b32 v{vT1}, 0
v_lshlrev_b32 v{vT2}, 2, v0
v_cmp_gt_u32 vcc, 256, v0
s_and_saveexec_b64 {sp(sM0)}, vcc
ds_write_b32 v{vT2}, v{vT1} offset:{BC_OFF}
v_cmp_gt_u32 vcc, 128, v0
s_and_b64 exec, exec, vcc
ds_write_b128 v{vT16}, {vr(vENT,4)} offset:{BK_OFF+8192}
ds_write_b32 v{vT2}, v{vT1} offset:{CNT_OFF}
s_mov_b64 exec, {sp(sM0)}
s_lshr_b32 s{sPR}, s2, 4
s_lshl_b32 s{sPR}, s{sPR}, 3
s_and_b32 s{sT0}, s2, 7
s_add_u32 s{sPR}, s{sPR}, s{sT0}
s_lshl_b32 s{sF}, s{sPR}, 1
s_lshr_b32 s{sT0}, s{sWAVE}, 2
s_add_u32 s{sF}, s{sF}, s{sT0}
s_and_b32 s{sT0}, s{sWAVE}, 3
s_cmp_eq_u32 s{sT0}, 3
s_cselect_b32 s{sHLP}, 1, 0
s_cmp_lt_u32 s{sF}, 128
s_cselect_b32 s{sHLP}, s{sHLP}, 0
s_bitcmp1_b32 s2, 3
s_cselect_b32 s{sHLP}, s{sHLP}, 0
s_cselect_b32 s{sPR}, 255, s{sPR}
s_mul_i32 s{sT0}, s{sPR}, {EPP*4}
s_mul_i32 s{sT1}, s{sWAVE}, 640
s_add_u32 s{sT0}, s{sT0}, s{sT1}
v_lshlrev_b32 v{vT2}, 2, v{vLANE}
s_lshr_b32 s{sROT}, s2, 3
s_mov_b32 s{rSRC+2}, 640000
s_mov_b32 s{rSRC+3}, 0x00020000
s_mov_b32 s{rDST+2}, 640000
s_mov_b32 s{rDST+3}, 0x00020000
s_waitcnt lgkmcnt(0)
s_mov_b32 s{rDST}, s{sDST}
s_and_b32 s{rDST+1}, s{sDST+1}, 0xffff
s_mov_b32 s{rSRC}, s{sSRC}
s_and_b32 s{rSRC+1}, s{sSRC+1}, 0xffff
""")
if STAMPS:
    a(f"v_writelane_b32 v{vSTV}, s{sST0}, 0")
vD, vS, vBI, vSL = 32, 36, 40, 44
a(f"""s_cmp_ge_u32 s{sPR}, {NP}
s_cbranch_scc1 L_noedge
buffer_load_dword v{vD}, v{vT2}, {srd(rDST)}, s{sT0} offen
buffer_load_dword v{vD+1}, v{vT2}, {srd(rDST)}, s{sT0} offen offset:256
buffer_load_dword v{vS}, v{vT2}, {srd(rSRC)}, s{sT0} offen
buffer_load_dword v{vS+1}, v{vT2}, {srd(rSRC)}, s{sT0} offen offset:256
s_mov_b32 exec_hi, 0
buffer_load_dword v{vD+2}, v{vT2}, {srd(rDST)}, s{sT0} offen offset:512
buffer_load_dword v{vS+2}, v{vT2}, {srd(rSRC)}, s{sT0} offen offset:512
s_mov_b64 exec, -1
""")
a.label("L_noedge")
a(f"""s_load_dword s{sEP}, {sp(sWS)}, {EPOCH_OFF}
s_load_dword s{sEPSF}, {sp(sEPS)}, 0
""")
mksrd(rW1, sW1, 262144)
mksrd(rX, sX, 5120000)
a("s_barrier")
if CPF:
    a(f"""s_cmp_lg_u32 s{sWAVE}, 7
    s_cbranch_scc1 L_nocpf
    s_getpc_b64 {sp(sM1)}""")
    a.label("L_cpf")
    a(f"""v_lshlrev_b32 v{vT1}, 7, v{vLANE}
    global_load_dword v{vOWN+1}, v{vT1}, {sp(sM1)}
    v_add_u32 v{vT1}, 8192, v{vT1}
    v_min_u32 v{vT1}, L_end-L_cpf, v{vT1}
    s_mov_b32 exec_hi, 0
    global_load_dword v{vOWN+1}, v{vT1}, {sp(sM1)}
    s_mov_b64 exec, -1""")
    a.label("L_nocpf")
NEARLY = 0
if TT:
    a(f"""s_lshl_b32 s{sT0}, s2, 14
    s_lshl_b32 s{sT1}, s{sWAVE}, 11
    s_add_u32 s{sT0}, s{sT0}, s{sT1}
    s_add_u32 s{sT0}, s{sT0}, {TBL_OFF}
    v_lshlrev_b32 v{vT1}, 7, v{vLANE}
    v_add_u32 v{vT1}, s{sT0}, v{vT1}
    s_mov_b64 exec, 0xffff
    global_load_dword v{vOWN}, v{vT1}, {sp(sWS)} sc1
    s_mov_b64 exec, -1""")
    NEARLY += 1
if W1T:
    a(f"""s_lshl_b32 s{sT0}, s{sROT}, 3
    s_add_u32 s{sT0}, s{sT0}, s{sWAVE}
    s_lshl_b32 s{sT0}, s{sT0}, 10
    v_lshlrev_b32 v{vT1}, 7, v{vLANE}
    s_mov_b64 exec, 0xff
    buffer_load_dword v{vOWN}, v{vT1}, {srd(rW1)}, s{sT0} offen
    s_mov_b64 exec, -1""")
    NEARLY += 1


def own_loads():
    a(f"""s_mul_i32 s{sT0}, s{sWAVE}, 5
    s_add_u32 s{sT0}, s{sT0}, s{sBASE}
    s_lshl_b32 s{sT0}, s{sT0}, 9
    buffer_load_dwordx4 {vr(vOR,4)}, v{vL16}, {srd(rX)}, s{sT0} offen
    buffer_load_dwordx4 {vr(vOR+4,4)}, v{vL16}, {srd(rX)}, s{sT0} offen offset:1024
    s_mov_b32 exec_hi, 0
    buffer_load_dwordx4 {vr(vOR+8,4)}, v{vL16}, {srd(rX)}, s{sT0} offen offset:2048
    s_mov_b64 exec, -1
    """)


def own_store():
    a(f"""v_lshrrev_b32 v{vT1}, 5, v{vLANE}
    s_mul_i32 s{sT0}, s{sWAVE}, 5
    v_add_u32 v{vT1}, s{sT0}, v{vT1}
    v_mul_u32_u24 v{vT1}, {H_STR}, v{vT1}
    v_add_u32 v{vT1}, v{vT1}, v{vGOFF}
    ds_write_b128 v{vT1}, {vr(vOR,4)} offset:{H_OFF}
    ds_write_b128 v{vT1}, {vr(vOR+4,4)} offset:{H_OFF+2*H_STR}
    s_mov_b32 exec_hi, 0
    ds_write_b128 v{vT1}, {vr(vOR+8,4)} offset:{H_OFF+4*H_STR}
    s_mov_b64 exec, -1""")


if OWNPOS == 0:
    own_loads()
    NEARLY += 3
a(f"""s_sub_u32 s{sT2}, s{sWAVE}, 1
s_cmp_ge_u32 s{sT2}, 2
s_cbranch_scc1 L_nbl
s_cmp_eq_u32 s{sT2}, 0
s_cselect_b32 s{sM0}, s{sB1}, s{sB2}
s_cselect_b32 s{sM0+1}, s{sB1+1}, s{sB2+1}
s_cselect_b32 exec_hi, -1, 0
global_load_dwordx4 {vr(vBL,4)}, v{vL16}, {sp(sM0)}
s_mov_b64 exec, -1
""")

def frag_issue():
    a(f"""v_lshrrev_b32 v{vT2}, 5, v{vLANE}
    v_bfe_u32 v{vT3}, v{vLANE}, 4, 1
    v_lshl_add_u32 v{vT1}, v{vT3}, 4, v{vT2}
    s_and_b32 s{sT1}, s{sF}, 7
    s_lshl_b32 s{sT1}, s{sT1}, 1
    s_and_b32 s{sT0}, s{sF}, 8
    s_lshl_b32 s{sT0}, s{sT0}, 2
    s_add_u32 s{sT1}, s{sT1}, s{sT0}
    v_add_u32 v{vT1}, s{sT1}, v{vT1}
    v_lshrrev_b32 v{vT2}, 2, v{vT1}
    v_and_b32 v{vT1}, 3, v{vT1}
    v_lshlrev_b32 v{vT2}, 14, v{vT2}
    v_lshl_add_u32 v{vT2}, v{vT1}, 11, v{vT2}
    v_and_b32 v{vT1}, 15, v{vLANE}
    v_lshl_add_u32 v{vT2}, v{vT1}, 2, v{vT2}
    s_lshr_b32 s{sT0}, s{sF}, 4
    s_lshl_b32 s{sT0}, s{sT0}, 6
    s_add_u32 s{sT1}, s{sT0}, 8192
    """)
    for e in range(8):
        a(f"buffer_load_dword v{vQ+e}, v{vT2}, {srd(rW2)}, s{sT0 if e<4 else sT1} offen offset:{(e&3)*512}")


def frag_finish(cnt):
    a(f"""s_lshl_b32 s{sT0}, s{sF}, 11
    s_add_u32 s{sT0}, s{sT0}, s{sW2T}
    s_mov_b32 s{sSELLO}, 0x05040100
    s_mov_b32 s{sSELHI}, 0x07060302
    s_waitcnt vmcnt({cnt})
    """)
    for e in range(4):
        a(f"""v_perm_b32 v{vQ+8+e}, v{vQ+2*e+1}, v{vQ+2*e}, s{sSELLO}
        v_perm_b32 v{vQ+12+e}, v{vQ+2*e+1}, v{vQ+2*e}, s{sSELHI}""")
    a(f"""buffer_store_dwordx4 {vr(vQ+8,4)}, v{vL16}, {srd(rWS)}, s{sT0} offen sc1
    buffer_store_dwordx4 {vr(vQ+12,4)}, v{vL16}, {srd(rWS)}, s{sT0} offen offset:1024 sc1
    s_nop 1""")


a.label("L_nbl")
mksrd(rW2, sW2, 262144)
a(f"""s_cmp_eq_u32 s{sHLP}, 0
s_cbranch_scc1 L_nohelp0
""")
frag_issue()
a.label("L_nohelp0")
mksrd(rWS, sWS, WS_BYTES)
mksrd(rOUT, sOUT, 5120000)
a(f"""s_mov_b32 s{sW2T}, {W2T_OFF}
v_lshrrev_b32 v{vT1}, 1, v{vG}
v_and_b32 v{vT2}, 1, v{vG}
v_lshl_add_u32 v{vU}, v{vT2}, 4, v{vT1}
s_lshl_b32 s{sT0}, s{sWAVE}, 7
s_mul_i32 s{sSTG}, s{sWAVE}, {NSL*4096}
s_add_u32 s{sSTG}, s{sSTG}, {ST_OFF}
v_lshrrev_b32 v{vT1}, 3, v{vLANE}
v_and_b32 v{vT3}, 2, v{vT1}
v_and_b32 v{vT4}, 7, v{vLANE}
v_xor_b32 v{vT4}, v{vT4}, v{vT3}
v_lshlrev_b32 v{vOA}, 10, v{vT1}
v_add_u32 v{vOA}, s{sT0}, v{vOA}
v_xor_b32 v{vT3}, 4, v{vT4}
v_lshl_add_u32 v{vOB}, v{vT3}, 4, v{vOA}
v_add_u32 v{vOB}, 0x20000, v{vOB}
v_lshl_add_u32 v{vOA}, v{vT4}, 4, v{vOA}
v_and_b32 v{vGOFF}, 31, v{vLANE}
v_lshlrev_b32 v{vGOFF}, 4, v{vGOFF}
""")
a(f"""v_lshrrev_b32 v{vT1}, 1, v{vG}
v_lshrrev_b32 v{vLADDR}, 5, v{vLANE}
v_lshlrev_b32 v{vLADDR}, 4, v{vLADDR}
s_lshl_b32 s{sT0}, s{sWAVE}, 10
v_add_u32 v{vLADDR}, s{sT0}, v{vLADDR}
v_lshl_add_u32 v{vHW}, v{vT1}, 4, v{vN}
v_lshlrev_b32 v{vHW}, 4, v{vHW}
v_lshl_add_u32 v{vHW}, v{vT2}, 3, v{vHW}
v_mul_u32_u24 v{vG1B}, {H_STR}, v{vN}
v_lshl_add_u32 v{vG1B}, v{vU}, 4, v{vG1B}
v_mul_u32_u24 v{vT3}, {H1_STR}, v{vN}
v_add_u32 v{vT3}, {H1_OFF}, v{vT3}
v_lshl_add_u32 v{vG2B}, v{vU}, 4, v{vT3}
s_lshl_b32 s{sT0}, s{sWAVE}, 7
v_lshl_add_u32 v{vH1W}, v{vG}, 4, v{vT3}
v_add_u32 v{vH1W}, s{sT0}, v{vH1W}
s_lshl_b32 s{sT0}, s{sWAVE}, 8
v_lshlrev_b32 v{vBIA}, 4, v{vG}
v_add_u32 v{vBIA}, s{sT0}, v{vBIA}
v_lshrrev_b32 v{vT1}, 2, v{vN}
v_and_b32 v{vT3}, 2, v{vT1}
v_lshl_add_u32 v{vT3}, v{vT2}, 2, v{vT3}
v_lshlrev_b32 v{vT4}, 10, v{vG}
v_lshl_add_u32 v{vT4}, v{vT1}, 7, v{vT4}
v_and_b32 v{vT1}, 3, v{vN}
v_lshl_add_u32 v{vT4}, v{vT1}, 3, v{vT4}
v_add_u32 v{vT4}, s{sSTG}, v{vT4}
""")
for T in range(4):
    a(f"""v_xor_b32 v{vT1}, {2*T}, v{vT3}
    v_lshl_add_u32 v{vTR+T}, v{vT1}, 4, v{vT4}""")
a(f"""v_mov_b32 v{vT3}, 0x3f80
v_and_b32 v{vT0}, 1, v{vN}
v_lshlrev_b32 v{vT0}, 4, v{vT0}
v_lshlrev_b32 v{vT3}, v{vT0}, v{vT3}
v_lshlrev_b32 v{vT1}, 2, v{vT2}
v_lshrrev_b32 v{vT0}, 1, v{vN}
v_sub_u32 v{vT0}, v{vT0}, v{vT1}
""")
for r in range(4):
    a(f"""v_cmp_eq_u32 vcc, {r}, v{vT0}
    v_mov_b32 v{vGACC+r}, 0
    s_nop 0
    v_cndmask_b32 v{vASUM+r}, 0, v{vT3}, vcc""")
a(f"""v_cmp_gt_u32 vcc, 500, v0
s_mov_b64 {sp(sPM)}, vcc
s_lshl_b32 s{sFT}, s2, 13
s_add_u32 s{sFT}, s{sFT}, {TBL_OFF}
s_cmp_ge_u32 s{sPR}, {NP}
s_cbranch_scc1 L_stream
s_lshl_b32 s{sT0}, s{sPR}, 6
s_add_u32 s{sT0}, s{sT0}, {TBL_OFF}
v_lshrrev_b32 v{vT2}, 2, v0
v_lshlrev_b32 v{vT3}, 2, v{vT2}
v_and_b32 v{vT1}, 3, v0
v_lshlrev_b32 v{vT1}, 4, v{vT1}
v_lshl_add_u32 v{vT2}, v{vT2}, 13, v{vT1}
v_mov_b32 v{vT4}, 1
s_setprio 3
s_sub_u32 s{sT2}, s{sWAVE}, 1
s_cmp_lt_u32 s{sT2}, 2
s_cbranch_scc1 L_ew1
s_waitcnt vmcnt({NEARLY})
""")
a.label("L_ew1")
a(f"s_waitcnt vmcnt({NEARLY+1})")
stamp("edges")


def mktags():
    a(f"s_add_u32 s{sEP}, s{sEP}, 1")
    for i in range(4):
        a(f"s_add_u32 s{sTAG+i}, s{sEP}, {TAGC[i]}\ns_lshl_b32 s{sTAG+i}, s{sTAG+i}, 20")


for i in range(3):
    if i == 2:
        a("s_mov_b32 exec_hi, 0")
    a(f"""v_mul_u32_u24 v{vBI+i}, 0xcccd, v{vD+i}
    v_lshrrev_b32 v{vBI+i}, 21, v{vBI+i}
    v_lshlrev_b32 v{vT1}, 2, v{vBI+i}
    ds_add_rtn_u32 v{vSL+i}, v{vT1}, v{vT4} offset:{BC_OFF}""")
a("s_mov_b64 exec, -1")
for i in range(3):
    a(f"""v_mul_u32_u24 v{vT1}, {R}, v{vBI+i}
    v_sub_u32 v{vT1}, v{vD+i}, v{vT1}
    v_lshl_or_b32 v{vS+i}, v{vT1}, 14, v{vS+i}
    v_lshlrev_b32 v{vBI+i}, 6, v{vBI+i}""")
a("s_waitcnt lgkmcnt(0)")
for i in range(3):
    if i == 2:
        a("s_mov_b32 exec_hi, 0")
    a(f"""v_min_u32 v{vT1}, {CAP-1}, v{vSL+i}
    v_lshl_add_u32 v{vT1}, v{vT1}, 2, v{vBI+i}
    ds_write_b32 v{vT1}, v{vS+i} offset:{BT_OFF}""")
a("s_mov_b64 exec, -1")
mktags()
a(f"""v_mov_b32 v{vT1}, {OVFM}
s_waitcnt lgkmcnt(0)
s_barrier""")
NT = 64 * STW
NK = 1024 // NT
WO = 64
if STW < 8:
    a(f"s_cmp_ge_u32 s{sWAVE}, {STW}\ns_cbranch_scc1 L_nostore")
for k in range(NK):
    a(f"""ds_read_b128 {vr((32 if NK <= 4 else 48)+4*k,4)}, v{vT16} offset:{BT_OFF+NT*16*k}""")
    if NK > 4 and k == 3:
        pass
for k in range(NK):
    a(f"ds_read_b32 v{(112 if NK <= 4 else 40)+k}, v{vT3} offset:{BC_OFF+NT*k}")
a("s_waitcnt lgkmcnt(0)")
for k in range(NK):
    vE = (32 if NK <= 4 else 48) + 4 * k
    vC = (112 if NK <= 4 else 40) + k
    a(f"""v_cmp_lt_u32 vcc, {CAP}, v{vC}
    v_or_b32 v{vE+1}, s{sTAG+1}, v{vE+1}
    v_or_b32 v{vE+2}, s{sTAG+2}, v{vE+2}
    v_cndmask_b32 v{vE}, v{vE}, v{vT1}, vcc
    v_or_b32 v{vE+3}, s{sTAG+3}, v{vE+3}
    v_or_b32 v{vE}, s{sTAG}, v{vE}""")
    if k == NK - 1:
        a(f"""v_cmp_gt_u32 vcc, {1000 - NT*(NK-1)}, v0
        s_mov_b64 exec, vcc""")
    a(f"""buffer_store_dwordx4 {vr(vE,4)}, v{vT2}, {srd(rWS)}, s{sT0} offen sc1
    s_add_u32 s{sT0}, s{sT0}, {(NT//4)*TBL_BLOCK}""")
a("s_nop 1")
a.label("L_nostore")
a("s_mov_b64 exec, -1\ns_setprio 0")
stamp("published")
a.label("L_stream")


ops = []


def younger(tag):
    i = len(ops) - 1 - ops[::-1].index(tag)
    return len(ops) - 1 - i


def dma_w1(ks):
    a(f"""s_add_u32 s{sKS}, s{sROT}, {ks}
    s_and_b32 s{sKS}, s{sKS}, 7
    s_lshl_b32 s{sKS}, s{sKS}, 14
    s_add_u32 s{sT3}, s{sKS}, 8192""")
    for g in range(4):
        a(f"""s_add_u32 m0, s{sSTG}, {(ks%NSL)*4096+g*1024}
        s_nop 0
        buffer_load_dwordx4 v{vOB if g&1 else vOA}, {srd(rW1)}, s{sT3 if g>>1 else sKS} offen lds""")
        ops.append(f"d{ks}")


def tr_w1(ks):
    for T in range(4):
        for jh in range(2):
            d = vW + ks * 16 + T * 4 + jh * 2
            a(f"ds_read_b64_tr_b16 {vr(d,2)}, v{vTR+T} offset:{(ks%NSL)*4096+jh*512}")


vE = vRING + 8
vE2 = vRING + 24
vLD, vSL, vAD = vRING + 12, vRING + 16, vRING + 20
masks = [sM0, sM1, sM2, sM3]


def poll_loads():
    a(f"buffer_load_dwordx4 {vr(vE,4)}, v{vT16}, {srd(rWS)}, s{sFT} offen sc1")


def poll_check_and_insert():
    a(f"""s_cmp_lt_u32 s{sPR}, {NP}
    s_cbranch_scc1 L_hastag""")
    mktags()
    a.label("L_hastag")
    a(f"""s_mov_b32 s{sPC}, 0
    s_mov_b32 s{sT2}, 0x100000
    v_mov_b32 v{vT4}, 1
    s_mov_b64 {sp(sMASK)}, 0
    s_mov_b32 s{sRS}, 0
    s_mov_b64 exec, {sp(sPM)}
    s_waitcnt vmcnt({younger('p')})""")
    a.label("L_pchk")
    for i in range(4):
        a(f"v_xor_b32 v{vE+i}, s{sTAG+i}, v{vE+i}")
    a(f"""v_or3_b32 v{vT1}, v{vE}, v{vE+1}, v{vE+2}
    v_or_b32 v{vT1}, v{vT1}, v{vE+3}
    v_cmp_le_u32 vcc, s{sT2}, v{vT1}
    s_and_b64 exec, exec, vcc
    s_cbranch_execnz L_pmiss
    """)
    a.label("L_polled")
    a(f"""s_mov_b64 exec, -1
    v_cmp_eq_u32 vcc, {OVFM}, v{vE}
    s_cbranch_vccnz L_setovf
    """)
    a.label("L_noovf")
    stamp("polled")
    a.label("L_ins")
    for i in range(4):
        a(f"""v_bfe_u32 v{vLD+i}, v{vE+i}, 14, 6
        v_cmp_gt_u32 {sp(masks[i])}, {R}, v{vLD+i}
        v_lshlrev_b32 v{vAD+i}, 2, v{vLD+i}""")
    for i in range(4):
        a(f"""s_mov_b64 exec, {sp(masks[i])}
        ds_add_rtn_u32 v{vSL+i}, v{vAD+i}, v{vT4} offset:{CNT_OFF}""")
    a("s_mov_b64 exec, -1")
    for i in range(4):
        a(f"""v_and_b32 v{vE+i}, 0x3fff, v{vE+i}
        v_lshlrev_b32 v{vE+i}, 9, v{vE+i}
        v_lshlrev_b32 v{vAD+i}, 8, v{vLD+i}""")
    a("s_waitcnt lgkmcnt(0)")
    for i in range(4):
        a(f"""v_min_u32 v{vSL+i}, 63, v{vSL+i}
        v_lshl_add_u32 v{vAD+i}, v{vSL+i}, 2, v{vAD+i}""")
    for i in range(4):
        a(f"""s_mov_b64 exec, {sp(masks[i])}
        ds_write_b32 v{vAD+i}, v{vE+i} offset:{BK_OFF}""")
    a(f"""s_mov_b64 exec, -1
    s_cmp_lg_u64 {sp(sMASK)}, 0
    s_cbranch_scc1 L_rescan
    """)


def is_helper(lab):
    a(f"""s_mov_b32 s{sT0}, s{sF}
    s_cmp_eq_u32 s{sHLP}, 0
    s_cbranch_scc1 {lab}""")


a("s_setprio 2")
for ks in range(NSL):
    dma_w1(ks)
    if OWNPOS >= 3 and ks == OWNPOS - 3:
        own_loads()
        ops.extend(["o"] * 3)
for i in range(4):
    a(f"v_mov_b32 v{vE+i}, {EMPTY}")
for ks in range(KE - NSL):
    a(f"s_waitcnt vmcnt({younger(f'd{ks}')})")
    tr_w1(ks)
    if ks == 0:
        if OWNPOS < 3:
            own_store()
        a(f"""s_sub_u32 s{sT2}, s{sWAVE}, 1
        s_cmp_ge_u32 s{sT2}, 2
        s_cbranch_scc1 L_nbias
        v_lshlrev_b32 v{vT1}, 5, v{vLANE}
        s_cmp_eq_u32 s{sT2}, 1
        s_cbranch_scc1 L_bias2
        """)
        for i in range(4):
            a(f"""v_lshlrev_b32 v{64+2*i}, 16, v{vBL+i}
            v_and_b32 v{64+2*i+1}, 0xffff0000, v{vBL+i}""")
        a(f"""ds_write_b128 v{vT1}, {vr(64,4)} offset:{B1F_OFF}
        ds_write_b128 v{vT1}, {vr(68,4)} offset:{B1F_OFF+16}
        s_branch L_nbias
        """)
        a.label("L_bias2")
        for i in range(4):
            a(f"""v_lshlrev_b32 v{64+i}, 16, v{vBL+i}
            v_and_b32 v{68+i}, 0xffff0000, v{vBL+i}""")
        a(f"""s_mov_b32 exec_hi, 0
        ds_write_b128 v{vT1}, {vr(64,4)} offset:{B2F_OFF}
        ds_write_b128 v{vT1}, {vr(68,4)} offset:{B2F_OFF+16}
        s_mov_b64 exec, -1
        """)
        a.label("L_nbias")
    if ks in (1, 3):
        a(f"s_setprio {1 - ks//2}")
    a("s_waitcnt lgkmcnt(0)")
    dma_w1(ks + NSL)
    if ks == 0:
        is_helper("L_nohelp")
        frag_finish(63)
        a.label("L_nohelp")
        if KE < 8:
            a(f"""s_sub_u32 s{sT0}, s2, 136
            s_and_b32 s{sT1}, s{sT0}, 0xffffffc7
            s_cbranch_scc1 L_nodump
            s_and_b32 s{sT0}, s{sROT}, 7
            s_lshl_b32 s{sT0}, s{sT0}, 12
            s_lshl_b32 s{sT1}, s{sWAVE}, 15
            s_add_u32 s{sT0}, s{sT0}, s{sT1}
            s_add_u32 s{sT0}, s{sT0}, {W2T_OFF + 262144}""")
            for f in range(4):
                a(f"buffer_store_dwordx4 {vr(vW+4*f,4)}, v{vL16}, {srd(rWS)}, s{sT0} offen offset:{f*1024} sc1")
            a.label("L_nodump")
    if ks + 1 == POLLK:
        a(f"s_mov_b64 exec, {sp(sPM)}")
        poll_loads()
        a("s_mov_b64 exec, -1")
        ops.extend(["p"])
        stamp("pollissued")
    if ks + 1 == CHKK:
        poll_check_and_insert()
        if OWNPOS >= 3:
            own_store()
        a(f"""s_sub_u32 s{sT0}, s2, 136
        s_and_b32 s{sT1}, s{sT0}, 0xffffffc7
        s_cbranch_scc1 L_nodf
        s_and_b32 s{sT0}, s{sROT}, 7
        s_lshl_b32 s{sT0}, s{sT0}, 3
        s_add_u32 s{sT0}, s{sT0}, s{sWAVE}
        s_add_u32 s{sT0}, s{sT0}, 128
        s_branch L_doflag""")
        a.label("L_nodf")
        is_helper("L_noflag")
        a.label("L_doflag")
        a(f"""s_mul_i32 s{sT1}, s{sEP}, {FLGM[0]}
        v_mov_b32 v{vT2}, s{sT1}
        s_lshl_b32 s{sT0}, s{sT0}, 2
        s_add_u32 s{sT0}, s{sT0}, {FLG_OFF}
        v_mov_b32 v{vT1}, 0
        s_mov_b64 exec, 1
        buffer_store_dword v{vT2}, v{vT1}, {srd(rWS)}, s{sT0} offen sc1
        s_mov_b64 exec, -1
        """)
        a.label("L_noflag")
if not W1TAIL:
    for ks in range(KE - NSL, KE):
        a(f"s_waitcnt vmcnt({younger(f'd{ks}')})")
        tr_w1(ks)
stamp("w1done")

a(f"""s_lshl_b32 s{sEPSF}, s{sEPSF}, 16
v_add_f32 v{vT0}, s{sEPSF}, 1.0
v_cvt_pk_bf16_f32 v{vT0}, v{vT0}, v{vT0}
v_lshlrev_b32 v{vT0}, 16, v{vT0}
v_add_u32 v{vT3}, s{sBASE}, v{vN}
v_readfirstlane_b32 s{sEPSF}, v{vT0}
v_lshlrev_b32 v{vT3}, 9, v{vT3}
v_lshl_add_u32 v{vT3}, v{vG}, 4, v{vT3}
s_lshl_b32 s{sT0}, s{sWAVE}, 6
v_add_u32 v{vOUTA}, s{sT0}, v{vT3}
v_lshlrev_b32 v{vT0}, 2, v{vLANE}
v_mov_b32 v{vT2}, 0
s_mov_b32 s{sFT}, {FLG_OFF}
s_mov_b32 s{sI}, 0
s_lshl_b32 s{sT0}, s{sWAVE}, 2
s_lshl_b32 s{sT1}, s{sWAVE}, 1
s_add_u32 s{sT1}, s{sT1}, 32
s_add_u32 s{sT2}, s{sT0}, 2
s_cmp_lt_u32 s{sWAVE}, 4
s_cselect_b32 s{sNODE}, 6, 4
s_cselect_b32 s{sRW}, s{sT1}, s{sT0}
s_cselect_b32 s{sRW+2}, s{sT0}, s{sT2}
s_cselect_b32 s{sRW+4}, s{sT2}, 46
s_cselect_b32 s{sPH}, 0, {1 if YPH else 0}
s_add_u32 s{sRW+1}, s{sRW}, 1
s_add_u32 s{sRW+3}, s{sRW+2}, 1
s_add_u32 s{sRW+5}, s{sRW+4}, 1
s_mov_b64 {sp(sROWT)}, 0
""")
for k in range(5, -1, -1):
    a(f"""s_lshl_b64 {sp(sROWT)}, {sp(sROWT)}, 8
    s_or_b32 s{sROWT}, s{sROWT}, s{sRW+k}""")
a(f"""s_mul_i32 s{sT0}, s{sRW}, {H_STR}
v_add_u32 v{vT4}, s{sT0}, v{vHW}
s_mov_b64 {sp(sMASK)}, 0
s_mov_b64 {sp(sMASK2)}, 0
s_lshl_b32 s{sT0}, s{sWAVE}, 15
s_add_u32 s{sW2T}, s{sW2T}, s{sT0}
s_mov_b32 s{sG0}, 0
s_cmp_lt_u32 s{sWAVE}, 4
s_cselect_b32 s{sCTR}, 0, 4
s_setprio {3 if YPH else 1}
s_cbranch_scc0 L_prD
s_setprio 2
""")
a.label("L_prD")
a("""s_waitcnt lgkmcnt(0)
s_barrier
""")
stamp("buckets")
a.label("L_gsetup")
a(f"""ds_read_b32 v{vT1}, v{vT0} offset:{CNT_OFF}
ds_read_b32 v{vT3}, v{vT2} offset:{FLAG_OFF}
ds_read_b64 {vr(vOWN,2)}, v{vT4} offset:{H_OFF}
""")
a(f"""v_cmp_gt_u32 {sp(sM1)}, {R}, v{vLANE}
s_waitcnt lgkmcnt(0)
v_cmp_lt_u32 vcc, 64, v{vT1}
v_add_u32 v{vT1}, 1, v{vT1}
v_lshrrev_b32 v{vT1}, 1, v{vT1}
v_max_u32 v{vT1}, 1, v{vT1}
v_cndmask_b32 v{vT1}, 0, v{vT1}, {sp(sM1)}
v_readfirstlane_b32 s{sTMO}, v{vT3}
""")
for k in range(6):
    a(f"v_readlane_b32 s{sE+k}, v{vT1}, s{sRW+k}")
a(f"""s_cmp_lg_u64 vcc, 0
s_cbranch_scc1 L_slow
s_cmp_lg_u32 s{sTMO}, 0
s_cbranch_scc1 L_slow
""")
for k in range(1, 6):
    a(f"s_add_u32 s{sE+k}, s{sE+k}, s{sE+k-1}")
a(f"""s_cmp_gt_u32 s{sE+5}, 64
s_cbranch_scc1 L_big
v_mov_b32 v{vT0}, v{vLANE}
""")


def build_list():
    a(f"v_mov_b32 v{vT2}, s{sSB}")
    for k in range(1, 6):
        a(f"""v_cmp_le_u32 vcc, s{sE+k-1}, v{vT0}
        v_mov_b32 v{vT3}, s{sSB+k}
        s_nop 0
        v_cndmask_b32 v{vT2}, v{vT2}, v{vT3}, vcc""")
    a(f"""v_lshl_add_u32 v{vT2}, v{vT0}, 3, v{vT2}
    v_mov_b32 v{vENT}, {OOB}
    v_mov_b32 v{vENT+1}, {OOB}
    v_cmp_gt_u32 vcc, s{sE+5}, v{vT0}
    s_mov_b64 exec, vcc
    ds_read_b64 {vr(vENT,2)}, v{vT2} offset:{BK_OFF}
    s_mov_b64 exec, -1
    v_lshrrev_b32 v{vT3}, 2, v{vT0}
    v_lshlrev_b32 v{vT3}, 5, v{vT3}
    v_and_b32 v{vT1}, 3, v{vT0}
    v_lshl_add_u32 v{vT3}, v{vT1}, 2, v{vT3}
    s_lshl_b32 s{sKS}, s{sWAVE}, 10
    v_add_u32 v{vT3}, s{sKS}, v{vT3}
    v_add_u32 v{vT3}, {LIST_OFF}, v{vT3}
    """)


def bases():
    a(f"s_lshl_b32 s{sSB}, s{sRW}, 8")
    for k in range(1, 6):
        a(f"""s_lshl_b32 s{sSB+k}, s{sRW+k}, 5
        s_sub_u32 s{sSB+k}, s{sSB+k}, s{sE+k-1}
        s_lshl_b32 s{sSB+k}, s{sSB+k}, 3""")


bases()
build_list()
for k in range(6):
    a(f"s_sub_u32 s{sKS}, s{sE+k}, 1\ns_bitset1_b64 {sp(sMASK)}, s{sKS}")
a(f"""s_waitcnt lgkmcnt(0)
ds_write2_b32 v{vT3}, v{vENT}, v{vENT+1} offset0:0 offset1:4
""")
a.label("L_listdone")
a(f"""s_add_u32 s{sNGT}, s{sE+5}, 3
s_lshr_b32 s{sNGT}, s{sNGT}, 2
s_max_u32 s{sREM}, s{sNGT}, {RD}
""")
a.label("L_prol")
vPE = 96
for s in range(RD):
    a(f"ds_read_b128 {vr(vPE+4*s,4)}, v{vLADDR} offset:{LIST_OFF+32*s}")
a(f"ds_read_b128 {vr(vENT,4)}, v{vLADDR} offset:{LIST_OFF+32*RD}")


def issue_group(ent, r):
    for j in range(4):
        a(f"v_add_u32 v{ent+j}, v{ent+j}, v{vGOFF}")
    for j in range(4):
        a(f"buffer_load_dwordx4 {vr(vRING+r*16+j*4,4)}, v{ent+j}, {srd(rX)}, 0 offen")


def w1_tail(cnt):
    if W1TAIL:
        a(f"s_waitcnt vmcnt({cnt})")
        for ks in range(KE - NSL, KE):
            tr_w1(ks)


for s in range(RD):
    a(f"s_waitcnt lgkmcnt({RD-s})" if (s < 1 or not W1TAIL) else "s_waitcnt lgkmcnt(0)")
    issue_group(vPE + 4 * s, s)
    if s == 0:
        w1_tail(4)
stamp("gstart")


def mfma_sum(b):
    a(f"v_mfma_f32_16x16x32_bf16 {vr(vGACC,4)}, {vr(vASUM,4)}, {vr(b,4)}, {vr(vGACC,4)}")


stubs = []
drains = []
a.label("L_gloop")
for s in range(RD):
    lgo, ldr, lni = a.newlabel("L_go"), a.newlabel("L_dr"), a.newlabel("L_ni")
    drains.append((ldr, lgo))
    b = vRING + s * 16
    a(f"""s_cmp_lt_u32 s{sREM}, {RD}
    s_cbranch_scc1 {ldr}
    s_waitcnt vmcnt({4*(RD-1)})""")
    a.label(lgo)
    for j in range(4):
        ls, lb = a.newlabel("L_st"), a.newlabel("L_bk")
        stubs.append((ls, lb))
        mfma_sum(b + 4 * j)
        a(f"""s_bitcmp1_b32 s{sMASK}, {4*s+j}
        s_cbranch_scc1 {ls}""")
        a.label(lb)
    a(f"""s_cmp_lt_u32 s{sREM}, {RD+1}
    s_cbranch_scc1 {lni}
    s_waitcnt lgkmcnt(0)""")
    issue_group(vENT, s)
    a(f"ds_read_b128 {vr(vENT,4)}, v{vLADDR} offset:{LIST_OFF+32*(RD+1+s)}")
    a.label(lni)
    a(f"s_sub_u32 s{sREM}, s{sREM}, 1")
a(f"""v_add_u32 v{vLADDR}, 128, v{vLADDR}
s_lshr_b64 {sp(sMASK)}, {sp(sMASK)}, 16
s_add_u32 s{sI}, s{sI}, 1
s_cmp_eq_u32 s{sI}, 4
s_cselect_b64 {sp(sMASK)}, {sp(sMASK2)}, {sp(sMASK)}
s_cmp_lt_u32 s{sI}, 8
s_cbranch_scc1 L_gloop
s_endpgm
""")
for ls, lb in stubs:
    a.label(ls)
    a(f"s_call_b64 {sp(sRET)}, L_fin\ns_branch {lb}")
for ldr, lgo in drains:
    a.label(ldr)
    for k in range(RD - 1, 1, -1):
        ln = a.newlabel("L_dr")
        a(f"""s_cmp_lt_u32 s{sREM}, {k}
        s_cbranch_scc1 {ln}
        s_waitcnt vmcnt({4*(k-1)})
        s_branch {lgo}""")
        a.label(ln)
    a(f"s_waitcnt vmcnt(0)\ns_branch {lgo}")

a.label("L_fin")
a(f"""s_and_b32 s{sT1}, s{sROWT}, 0xff
s_lshr_b64 {sp(sROWT)}, {sp(sROWT)}, 8
s_and_b32 s{sT2}, s{sROWT}, 0xff
s_mul_i32 s{sT1}, s{sT1}, {H_STR}
s_mul_i32 s{sT2}, s{sT2}, {H_STR}
s_waitcnt lgkmcnt(0)
v_lshlrev_b32 v{vT0}, 16, v{vOWN}
v_and_b32 v{vT1}, 0xffff0000, v{vOWN}
v_lshlrev_b32 v{vT2}, 16, v{vOWN+1}
v_and_b32 v{vT3}, 0xffff0000, v{vOWN+1}
v_add_u32 v{vT4}, s{sT2}, v{vHW}
ds_read_b64 {vr(vOWN,2)}, v{vT4} offset:{H_OFF}
v_fma_f32 v{vT0}, v{vT0}, s{sEPSF}, v{vGACC}
v_fma_f32 v{vT1}, v{vT1}, s{sEPSF}, v{vGACC+1}
v_fma_f32 v{vT2}, v{vT2}, s{sEPSF}, v{vGACC+2}
v_fma_f32 v{vT3}, v{vT3}, s{sEPSF}, v{vGACC+3}
v_add_u32 v{vT4}, s{sT1}, v{vHW}
v_cvt_pk_bf16_f32 v{vT0}, v{vT0}, v{vT1}
v_cvt_pk_bf16_f32 v{vT1}, v{vT2}, v{vT3}
v_mov_b32 v{vGACC}, 0
v_mov_b32 v{vGACC+1}, 0
ds_write_b64 v{vT4}, {vr(vT0,2)} offset:{H_OFF}
v_mov_b32 v{vGACC+2}, 0
v_mov_b32 v{vGACC+3}, 0
s_sub_u32 s{sNODE}, s{sNODE}, 1
s_cmp_eq_u32 s{sNODE}, 2
s_cbranch_scc1 L_finflag
s_cmp_eq_u32 s{sNODE}, 0
s_cbranch_scc1 L_gdone
s_setpc_b64 {sp(sRET)}
""")
a.label("L_finflag")
a(f"""buffer_load_dwordx4 {vr(vFLG,4)}, v{vL16}, {srd(rWS)}, s{sFT} offen sc1
s_setpc_b64 {sp(sRET)}
""")

vACC1 = 32
vBB = 64
vW2E = 88
NE = 10


def acc1(t, T):
    return vACC1 + (t * 4 + T) * 4


w2n = [0]
tops = []


def tyounger(tag):
    i = len(tops) - 1 - tops[::-1].index(tag)
    return len(tops) - 1 - i


def w2reg(q):
    if q < NE:
        return vW2E + 4 * q
    return vW + 4 * (q - NE)


def ldw2(n):
    for _ in range(n):
        q = w2n[0]
        if q >= 32:
            return
        if (q & 1) == 0:
            a(f"""s_add_u32 s{sW2K}, s{sROT}, {q>>1}
            s_and_b32 s{sW2K}, s{sW2K}, 7
            s_lshl_b32 s{sW2K}, s{sW2K}, 11
            s_add_u32 s{sW2K}, s{sW2K}, s{sW2T}""")
        a(f"buffer_load_dwordx4 {vr(w2reg(q),4)}, v{vL16}, {srd(rWS)}, s{sW2K} offen offset:{(q&1)*1024} sc1")
        w2n[0] += 1
        tops.append("b")
        if q == 15:
            a(f"s_add_u32 s{sW2T}, s{sW2T}, 16384")


def g1(tiles, last):
    nt = len(tiles)

    def buf(ks, i):
        return vBB + ((ks % 3) * 2 + i) * 4

    def rd(ks):
        a(f"""s_add_u32 s{sKS}, s{sROT}, {ks}
        s_and_b32 s{sKS}, s{sKS}, 7
        s_lshl_b32 s{sKS}, s{sKS}, 5
        v_add_u32 v{vT0+(ks%3)}, s{sKS}, v{vG1B}""")
        for i, t in enumerate(tiles):
            a(f"ds_read_b128 {vr(buf(ks,i),4)}, v{vT0+(ks%3)} offset:{H_OFF+t*16*H_STR}")
    for ks in range(3):
        rd(ks)
    for ks in range(8):
        vm = f"vmcnt({tyounger(f'a{ks}')}) " if (not last and ks >= KE) else ""
        a(f"s_waitcnt {vm}lgkmcnt({nt*min(2, 7-ks)})")
        for i in range(nt):
            for T in range(4):
                fr = vW + ks * 16 + T * 4
                c = acc1(nt - 1, T) if ks == 0 else acc1(i, T)
                a(f"v_mfma_f32_16x16x32_bf16 {vr(acc1(i,T),4)}, {vr(fr,4)}, {vr(buf(ks,i),4)}, {vr(c,4)}")
            if not last and w2n[0] < E1:
                ldw2(1)
        if ks + 3 < 8:
            rd(ks + 3)
        if last:
            ldw2(max(0, min(G1LD, NE + 4 * (ks + 1) - w2n[0])))
    a("s_nop 6")
    for i, t in enumerate(tiles):
        if t == 2:
            a("s_mov_b32 exec_lo, 0x00ff00ff\ns_mov_b32 exec_hi, 0x00ff00ff")
        for aa in range(2):
            o = vBB + (i * 2 + aa) * 4
            for hT in range(2):
                for hh in range(2):
                    s0 = acc1(i, 2 * aa + hT) + 2 * hh
                    a(f"""v_cvt_pk_bf16_f32 v{o+2*hT+hh}, v{s0}, v{s0+1}
                    v_pk_max_i16 v{o+2*hT+hh}, v{o+2*hT+hh}, 0""")
            a(f"ds_write_b128 v{vH1W}, {vr(o,4)} offset:{H1T[t]+aa*64}")
        if t == 2:
            a("s_mov_b64 exec, -1")


def arrive(off):
    a(f"""v_mov_b32 v{vT3}, s{sCTR}
    v_mov_b32 v{vT4}, 1
    s_mov_b64 exec, 1
    ds_add_u32 v{vT3}, v{vT4} offset:{off}
    s_mov_b64 exec, -1""")


def wait_ctr(off, lab):
    a(f"s_mov_b32 s{sT3}, 0\nv_mov_b32 v{vT4}, 0\ns_branch {lab}_in")
    a.label(lab)
    a("s_sleep 1")
    a.label(lab + "_in")
    a(f"""ds_read_b32 v{vT3}, v{vT4} offset:{off}
    s_add_u32 s{sT3}, s{sT3}, 1
    s_waitcnt lgkmcnt(0)
    v_readfirstlane_b32 s{sT1}, v{vT3}
    s_cmp_lt_u32 s{sT3}, 0x4000000
    s_cselect_b32 s{sT2}, 4, 0
    s_cmp_lt_u32 s{sT1}, s{sT2}
    s_cbranch_scc1 {lab}
    """)


a.label("L_gdone")
stamp("gdone")
arrive(DONE_OFF)
a(f"""s_cmp_ge_u32 s{sWAVE}, 4
s_cbranch_scc1 L_noarr
s_setprio 0
""")
a.label("L_noarr")
a(f"""s_mov_b32 s{sT3}, 0
s_mul_i32 s{sT0}, s{sEP}, {FLGM[0]}
s_mul_i32 s{sT1}, s{sEP}, {FLGM[1]}
""")
a.label("L_chk2")
a(f"""s_waitcnt vmcnt(0)
v_xor_b32 v{vFLG}, s{sT0}, v{vFLG}
v_xor_b32 v{vFLG+1}, s{sT0}, v{vFLG+1}
v_xor_b32 v{vFLG+2}, s{sT0}, v{vFLG+2}
v_xor_b32 v{vFLG+3}, s{sT0}, v{vFLG+3}
v_or3_b32 v{vT1}, v{vFLG}, v{vFLG+1}, v{vFLG+2}
v_or_b32 v{vT1}, v{vT1}, v{vFLG+3}
s_mov_b32 exec_hi, 0xffff
v_cmp_ne_u32 vcc, 0, v{vT1}
s_mov_b64 exec, -1
s_cbranch_vccnz L_w2miss
""")
a.label("L_w2ok")
tops.clear()
for ks in range(KE, 8):
    a(f"""s_add_u32 s{sW2K}, s{sROT}, {ks}
    s_and_b32 s{sW2K}, s{sW2K}, 7
    s_lshl_b32 s{sW2K}, s{sW2K}, 12
    s_add_u32 s{sW2K}, s{sW2K}, s{sW2T}
    s_add_u32 s{sW2K}, s{sW2K}, 262144""")
    for f in range(4):
        a(f"buffer_load_dwordx4 {vr(vW+ks*16+f*4,4)}, v{vL16}, {srd(rWS)}, s{sW2K} offen offset:{f*1024} sc1")
        tops.append(f"a{ks}")
for T in range(4):
    a(f"ds_read_b128 {vr(acc1(1,T),4)}, v{vBIA} offset:{B1F_OFF+64*T}")
wait_ctr(DONE_OFF, "L_spA")
stamp("g02start")
g1([0, 2], False)
for T in range(4):
    a(f"ds_read_b128 {vr(acc1(0,T),4)}, v{vBIA} offset:{B1F_OFF+64*T}")
stamp("g02end")
wait_ctr(DONE_OFF + 4, "L_spB")
stamp("g1start")
g1([1], True)
arrive(DONE_OFF + 8)

vACC2 = 32
vB2B = 56


def acc2(t, T):
    return vACC2 + (t * 2 + T) * 4


a(f"""s_lshl_b32 s{sT0}, s{sWAVE}, 8
v_subrev_u32 v{vT0}, s{sT0}, v{vBIA}
v_lshlrev_b32 v{vT0}, 1, v{vT0}
s_lshl_b32 s{sT0}, s{sWAVE}, 7
v_add_u32 v{vT0}, s{sT0}, v{vT0}
ds_read_b128 {vr(acc2(2,0),4)}, v{vT0} offset:{B2F_OFF}
ds_read_b128 {vr(acc2(2,1),4)}, v{vT0} offset:{B2F_OFF+16}
""")
ldw2(2)
stamp("g1end")


def rd2(ks):
    a(f"""s_add_u32 s{sKS}, s{sROT}, {ks}
    s_and_b32 s{sKS}, s{sKS}, 7
    s_lshl_b32 s{sKS}, s{sKS}, 5
    v_add_u32 v{vT1+(ks&1)}, s{sKS}, v{vG2B}""")
    for t in range(3):
        a(f"ds_read_b128 {vr(vB2B+(ks&1)*12+t*4,4)}, v{vT1+(ks&1)} offset:{H1T[t]+(ks>>3)*512}")


for half in range(2):
    wait_ctr(DONE_OFF + 8 + 4 * half, f"L_spG{half}")
    stamp(f"g2h{half}")
    if half == 1 and TPRIO:
        a("s_setprio 0")
    rd2(8 * half)
    rd2(8 * half + 1)
    for ks in range(8 * half, 8 * half + 8):
        assert w2n[0] >= 2 * ks + 2
        a(f"s_waitcnt vmcnt({w2n[0]-2*ks-2}) lgkmcnt({3 if (ks & 7) < 7 else 0})")
        for t in range(3):
            for T in range(2):
                fr = w2reg(2 * ks + T)
                c = acc2(2, T) if ks == 0 else acc2(t, T)
                a(f"v_mfma_f32_16x16x32_bf16 {vr(acc2(t,T),4)}, {vr(fr,4)}, {vr(vB2B+(ks&1)*12+t*4,4)}, {vr(c,4)}")
            if t < 2:
                ldw2(1)
        if (ks & 7) + 2 < 8:
            rd2(ks + 2)
a(f"s_mov_b32 s{sT2}, 8192\ns_mov_b32 s{sT3}, 16384")
a("s_nop 3")
vO = 88
for t in range(3):
    for r in range(4):
        a(f"v_cvt_pk_bf16_f32 v{vO+t*4+r}, v{acc2(t,0)+r}, v{acc2(t,1)+r}")
    if t == 2:
        a("s_mov_b32 exec_lo, 0x00ff00ff\ns_mov_b32 exec_hi, 0x00ff00ff")
    so = ["0", f"s{sT2}", f"s{sT3}"][t]
    a(f"buffer_store_dwordx4 {vr(vO+t*4,4)}, v{vOUTA}, {srd(rOUT)}, {so} offen {['', 'nt', 'sc1', 'sc0 sc1', 'sc1 nt'][OPOL]}")
a(f"""s_mov_b64 exec, 1
v_mov_b32 v{vT1}, s{sEP}
v_mov_b32 v{vT2}, {EPOCH_OFF}
s_lshr_b32 s{sT0}, s{sTMO}, 1
s_or_b32 s{sT0}, s{sT0}, s{sWAVE}
s_cmp_lg_u32 s{sT0}, 0
s_cbranch_scc1 L_noep
buffer_store_dword v{vT1}, v{vT2}, {srd(rWS)}, 0 offen
""")
a.label("L_noep")
if STAMPS:
    a("s_mov_b64 exec, -1")
    stamp("end")
    a(f"""s_lshl_b32 s{sT0}, s2, 10
    s_lshl_b32 s{sT1}, s{sWAVE}, 7
    s_add_u32 s{sT0}, s{sT0}, s{sT1}
    s_add_u32 s{sT0}, s{sT0}, 0x800000
    v_lshlrev_b32 v{vT1}, 2, v{vLANE}
    s_mov_b32 exec_hi, 0
    buffer_store_dword v{vSTV}, v{vT1}, {srd(rWS)}, s{sT0} offen""")
a.label("L_end")
a("s_endpgm")

a.label("L_pmiss")
a(f"""s_add_u32 s{sPC}, s{sPC}, 1
s_cmp_ge_u32 s{sPC}, {SPIN_MAX}
s_cbranch_scc1 L_ptimeout
s_sleep {PSLEEP}
""")
poll_loads()
a("s_waitcnt vmcnt(0)\ns_branch L_pchk")
a.label("L_ptimeout")
a(f"""s_mov_b64 exec, -1
v_mov_b32 v{vT1}, 0
v_mov_b32 v{vT2}, 3
ds_or_b32 v{vT1}, v{vT2} offset:{FLAG_OFF}
""")
for i in range(4):
    a(f"v_mov_b32 v{vE+i}, {EMPTY}\nv_mov_b32 v{vE2+i}, {EMPTY}")
a("s_branch L_polled")
a.label("L_setovf")
a(f"""s_and_b32 s{sMASK}, vcc_lo, 0x11111111
s_and_b32 s{sMASK+1}, vcc_hi, 0x11111111
s_mov_b64 exec, vcc""")
for i in range(4):
    a(f"v_mov_b32 v{vE+i}, {EMPTY}")
a("s_mov_b64 exec, -1\ns_branch L_noovf")
a.label("L_rescan")
a(f"""s_ff1_i32_b64 s{sT0}, {sp(sMASK)}
s_lshr_b32 s{sT1}, s{sT0}, 2
s_lshl_b32 s{sT3}, s{sWAVE}, 4
s_add_u32 s{sT1}, s{sT1}, s{sT3}
s_mul_i32 s{sT1}, s{sT1}, {EPP*4}
s_lshl_b32 s{sT3}, s{sRS}, 10
s_add_u32 s{sT1}, s{sT1}, s{sT3}
buffer_load_dwordx4 {vr(vE2,4)}, v{vL16}, {srd(rDST)}, s{sT1} offen
buffer_load_dwordx4 {vr(vE,4)}, v{vL16}, {srd(rSRC)}, s{sT1} offen
s_add_u32 s{sRS}, s{sRS}, 1
s_cmp_lt_u32 s{sRS}, 5
s_cbranch_scc1 L_rs1
s_mov_b32 s{sRS}, 0
s_bitset0_b64 {sp(sMASK)}, s{sT0}
""")
a.label("L_rs1")
a("s_waitcnt vmcnt(0)")
for i in range(4):
    a(f"""v_subrev_u32 v{vE2+i}, s{sBASE}, v{vE2+i}
    v_min_u32 v{vE2+i}, 63, v{vE2+i}
    v_lshl_or_b32 v{vE+i}, v{vE2+i}, 14, v{vE+i}""")
a("s_branch L_ins")
a.label("L_big")
a(f"""s_cmp_gt_u32 s{sE+5}, 104
s_cbranch_scc1 L_slow
""")
bases()
for rnd in range(2):
    a(f"v_add_u32 v{vT0}, {64*rnd}, v{vLANE}")
    build_list()
    a(f"""s_waitcnt lgkmcnt(0)
    ds_write2_b32 v{vT3}, v{vENT}, v{vENT+1} offset0:0 offset1:4""")
for k in range(6):
    l0, l1 = a.newlabel("L_bm"), a.newlabel("L_bm")
    a(f"""s_sub_u32 s{sKS}, s{sE+k}, 1
    s_cmp_ge_u32 s{sKS}, 64
    s_cbranch_scc1 {l0}
    s_bitset1_b64 {sp(sMASK)}, s{sKS}
    s_branch {l1}""")
    a.label(l0)
    a(f"s_bitset1_b64 {sp(sMASK2)}, s{sKS}")
    a.label(l1)
a("s_branch L_listdone")
a.label("L_w2miss")
a(f"""s_add_u32 s{sT3}, s{sT3}, 1
s_cmp_ge_u32 s{sT3}, {SPIN_MAX}
s_cbranch_scc1 L_w2self
s_sleep 2
buffer_load_dwordx4 {vr(vFLG,4)}, v{vL16}, {srd(rWS)}, s{sFT} offen sc1
s_branch L_chk2
""")
a.label("L_w2self")
a(f"""s_or_b32 s{sTMO}, s{sTMO}, 2
s_lshl_b32 s{sW2T}, s2, 19
s_add_u32 s{sW2T}, s{sW2T}, {PRIV_OFF}
s_lshl_b32 s{sF}, s{sWAVE}, 4
""")
a.label("L_selfw2")
frag_issue()
frag_finish(0)
a(f"""s_add_u32 s{sF}, s{sF}, 1
s_and_b32 s{sT0}, s{sF}, 15
s_cmp_lg_u32 s{sT0}, 0
s_cbranch_scc1 L_selfw2
s_lshl_b32 s{sT0}, s{sWAVE}, 15
s_add_u32 s{sW2T}, s{sW2T}, s{sT0}
s_mov_b32 s{sF}, 0
v_lshrrev_b32 v{vT2}, 5, v{vLANE}
v_bfe_u32 v{vT3}, v{vLANE}, 4, 1
v_lshl_add_u32 v{vT1}, v{vT3}, 4, v{vT2}
v_and_b32 v{vT3}, 15, v{vLANE}
v_lshlrev_b32 v{vT3}, 1, v{vT3}
v_lshl_add_u32 v{vT2}, v{vT1}, 13, v{vT3}
""")
a.label("L_selfw1")
a(f"""s_lshr_b32 s{sT0}, s{sF}, 2
s_lshl_b32 s{sT0}, s{sT0}, 14
s_and_b32 s{sT1}, s{sF}, 3
s_lshl_b32 s{sT1}, s{sT1}, 5
s_add_u32 s{sT0}, s{sT0}, s{sT1}
s_lshl_b32 s{sT1}, s{sWAVE}, 7
s_add_u32 s{sT0}, s{sT0}, s{sT1}
s_add_u32 s{sT1}, s{sT0}, 4096""")
for e in range(8):
    a(f"buffer_load_ushort v{vQ+e}, v{vT2}, {srd(rW1)}, s{sT0 if e<4 else sT1} offen offset:{(e&3)*1024}")
a(f"""s_lshl_b32 s{sT0}, s{sF}, 10
s_add_u32 s{sT0}, s{sT0}, s{sW2T}
s_add_u32 s{sT0}, s{sT0}, 262144
s_waitcnt vmcnt(0)""")
for e in range(4):
    a(f"v_lshl_or_b32 v{vQ+8+e}, v{vQ+2*e+1}, 16, v{vQ+2*e}")
a(f"""buffer_store_dwordx4 {vr(vQ+8,4)}, v{vL16}, {srd(rWS)}, s{sT0} offen sc1
s_add_u32 s{sF}, s{sF}, 1
s_cmp_lt_u32 s{sF}, 32
s_cbranch_scc1 L_selfw1
s_waitcnt vmcnt(0)
s_branch L_w2ok
""")

a.label("L_slow")
w1_tail(0)
vSA = vRING
vSD, vSS, vSB = vRING + 24, vRING + 25, vRING + 28
vHOFF, vLO = vRING + 26, vRING + 27
a(f"""v_mov_b32 v{vT0}, {OOB}
v_cmp_gt_u32 vcc, 32, v{vLANE}
s_mov_b32 s{sI}, 0
v_lshlrev_b32 v{vLO}, 2, v{vLANE}
v_cndmask_b32 v{vHOFF}, v{vT0}, v{vGOFF}, vcc
""")
for k in range(6):
    a(f"s_add_u32 s{sE+k}, s{sRW+k}, s{sBASE}")
a(f"""s_cmp_lt_u32 s{sWAVE}, 4
s_cselect_b32 s{sE+4}, s{sE+4}, -1
s_cselect_b32 s{sE+5}, s{sE+5}, -1""")
for r in range(24):
    a(f"v_mov_b32 v{vSA+r}, 0")
a.label("L_sloop")
a(f"""buffer_load_dword v{vSD}, v{vLO}, {srd(rDST)}, s{sI} offen
buffer_load_dword v{vSS}, v{vLO}, {srd(rSRC)}, s{sI} offen
s_waitcnt vmcnt(0)
v_lshlrev_b32 v{vSS}, 9, v{vSS}
""")
for n in range(6):
    l0, l1 = a.newlabel("L_s"), a.newlabel("L_s")
    a(f"v_cmp_eq_u32 {sp(sM0)}, s{sE+n}, v{vSD}")
    a.label(l0)
    a(f"""s_nop 3
    s_cmp_eq_u64 {sp(sM0)}, 0
    s_cbranch_scc1 {l1}
    s_ff1_i32_b64 s{sT1}, {sp(sM0)}
    s_bitset0_b64 {sp(sM0)}, s{sT1}
    v_readlane_b32 s{sT2}, v{vSS}, s{sT1}
    s_nop 4
    buffer_load_dwordx4 {vr(vSB,4)}, v{vHOFF}, {srd(rX)}, s{sT2} offen
    s_waitcnt vmcnt(0)
    v_mfma_f32_16x16x32_bf16 {vr(vSA+4*n,4)}, {vr(vASUM,4)}, {vr(vSB,4)}, {vr(vSA+4*n,4)}
    s_nop 7
    s_branch {l0}""")
    a.label(l1)
a(f"""s_add_u32 s{sI}, s{sI}, 256
s_cmp_lt_u32 s{sI}, 640000
s_cbranch_scc1 L_sloop
s_nop 7
""")
for n in range(6):
    for r in range(4):
        a(f"v_mov_b32 v{vGACC+r}, v{vSA+4*n+r}")
    a(f"s_call_b64 {sp(sRET)}, L_fin")
a("s_endpgm")

hdr = open("cdna_kernels/%s.s.ref" % NAME).read().split("; Override launch")[0]
out = hdr + f"""; @launch grid=({NB},1,1) block=(512,1,1) lds={LDS_BYTES}
.amdgcn_target "amdgcn-amd-amdhsa--gfx950"
.text
.globl {NAME}_kernel
.p2align 8
.type {NAME}_kernel,@function
{NAME}_kernel:
""" + "\n".join(a.lines) + f"""
.section .rodata,"a"
.p2align 6
.amdhsa_kernel {NAME}_kernel
  .amdhsa_next_free_vgpr {NVGPR}
  .amdhsa_next_free_sgpr 102
  .amdhsa_accum_offset {NVGPR}
  .amdhsa_group_segment_fixed_size 0
  .amdhsa_kernarg_size 88
  .amdhsa_user_sgpr_count 2
  .amdhsa_user_sgpr_kernarg_segment_ptr 1
  .amdhsa_system_sgpr_workgroup_id_x 1
.end_amdhsa_kernel
"""
dst = [x for x in sys.argv[1:] if not x.startswith("--")]
open(dst[0] if dst else f"cdna_kernels/{NAME}.s", "w").write(out)
print("stamps:", stamp_idx[0], " ".join(f"{i}:{n}" for i, n in enumerate(stamp_names)))
```

```python
import sys

NAME = "gather_scatter__isomorphism_gin_2__graph"
NB = 250
R = 40
EPP = 1280
NP = 125
CAP = 16
TBL_BLOCK = 8192
NH = 128
HWV = 3
HB = 8
EPOCH_OFF = 0
W2T_OFF = 0x10000
FLG_OFF = 0x1000
TBL_OFF = 0x100000
PRIV_OFF = 0x1000000
WS_BYTES = PRIV_OFF + NB * 524288
TAGC = [0x000, 0x555, 0xAAA, 0x3C3]
FLGM = [0x9E3779B1, 0x85EBCA77]
EMPTY = 0xfc000
OVFM = 0xf8000

CNT_OFF = 0
FLAG_OFF = 256
DONE_OFF = 264
B1F_OFF = 512
B2F_OFF = 2560
BK_OFF = 3584
H_OFF = BK_OFF + 10240
H_STR = 528
LIST_OFF = H_OFF + 40 * H_STR
H1_OFF = LIST_OFF + 8192
H1_STR = 1040
BT_OFF = H1_OFF
BC_OFF = BT_OFF + 16384
NSL = 3
H1T = {0: 0, 2: 16 * H1_STR, 1: 24 * H1_STR}
ST_OFF = BC_OFF + 1024
LDS_BYTES = ST_OFF + 8 * NSL * 4096
assert H1_OFF + 48 * H1_STR <= LDS_BYTES <= 163840 and ST_OFF % 128 == 0

OOB = 0x7F000000
STAMPS = "--stamps" in sys.argv
SPIN_MAX = 100000
RD = 4


def opt(name, default):
    for x in sys.argv:
        if x.startswith("--" + name + "="):
            return int(x.split("=")[1])
    return default


PSLEEP = opt("psleep", 4)
OWNPOS = opt("ownpos", 4)
POLLK = opt("pollk", 2)
CHKK = opt("chkk", 3)
W1T = opt("w1t", 1)
E1 = opt("e1", 10)
G1LD = opt("g1ld", 1)
HINT = opt("hint", 1)
YPH = 0
PREY = opt("prey", 4)
TPRIO = opt("tprio", 1)
CPF = opt("cpf", 1)
W1TAIL = opt("w1tail", 1)
FS = opt("fs", 1)
W1IN = opt("w1in", 1)
OPOL = opt("opol", 2)
TT = opt("tt", 0)
KE = opt("ke", 6)
STW = opt("stw", 8)
MID = opt("mid", 0)
YG0 = opt("yg0", 0)
YPRE = opt("ypre", 3)


class Asm:
    def __init__(self):
        self.lines = []
        self.n = 0

    def __call__(self, s):
        for l in s.strip().split("\n"):
            self.lines.append("    " + l.strip())

    def label(self, l):
        self.lines.append(l + ":")

    def newlabel(self, p="L"):
        self.n += 1
        return f"{p}_{self.n}"


a = Asm()

sTMO = 3
sTAG = 4
sX, sSRC, sDST, sEPS, sW1, sB1, sW2, sB2 = 8, 10, 12, 14, 16, 18, 20, 22
sOUT, sDBG, sWS = 24, 26, 28
sEP, sKS = 30, 31
rX, rSRC, rDST, rW1, rW2, rOUT, rWS = 32, 36, 40, 44, 48, 52, 56
sWAVE = 60
sROT = 61
sSTG = 62
sT0, sT1, sT2, sT3 = 63, 64, 65, 66
sW2T = 67
sM0, sM1, sM2, sM3 = 68, 70, 72, 74
sMASK, sMASK2 = 76, 78
sREM, sI, sNODE, sPC, sEPSF, sF = 80, 81, 82, 83, 86, 87
sRET = 88
sPM = 90
sEXM = 92
sSTAMP = 94
vST0 = 31
sBASE = 96
sW2K = 97
sST0 = 94
sFT = 100
sCTR = 101
sG0 = 84
sPR = 84
sHLP = 93
sRS = 92
sPH = 98
sNGT = 29
sTSEL = 28
sRET2 = 92
sSELLO, sSELHI = 85, 99
sE = 8
sSB = 14
sROWT = 20
sRW = 22


def srd(r):
    return f"s[{r}:{r+3}]"


def sp(r):
    return f"s[{r}:{r+1}]"


def vr(r, n):
    return f"v[{r}:{r+n-1}]"


vLANE, vG, vN = 1, 2, 3
vOUTA, vFLG = 0, 124
vT0, vT1, vT2, vT3 = 4, 5, 6, 7
vASUM, vGACC, vENT = 8, 12, 16
vGOFF, vLADDR, vHW, vG1B, vH1W, vG2B, vSTV, vT4, vL16, vBIA, vOWN = 20, 21, 22, 23, 24, 25, 26, 27, 28, 29, 30
vRING = 32
vW = 128
NVGPR = 256
vOA, vOB = 122, 123
vTR = 124
vT16 = 120
vU = 121
vOR = 96
vBL = 108
vQ = 80
vPA = 119

stamp_idx = [1]
stamp_names = ["entry"]


def stamp(name="s", idx=None):
    if not STAMPS:
        return None
    if idx is None:
        idx = stamp_idx[0]
        stamp_idx[0] += 1
        stamp_names.append(name)
    a(f"""{'s_memtime' if '--cyc' in sys.argv else 's_memrealtime'} {sp(sSTAMP)}
    s_waitcnt lgkmcnt(0)
    v_writelane_b32 v{vSTV}, s{sSTAMP}, {idx}""")
    return idx


def mksrd(r, p, size):
    a(f"""s_mov_b32 s{r}, s{p}
    s_and_b32 s{r+1}, s{p+1}, 0xffff
    s_mov_b32 s{r+2}, {size}
    s_mov_b32 s{r+3}, 0x00020000""")


a(f"""s_cmp_ge_u32 s2, {NB}
s_cbranch_scc1 L_end""")
if STAMPS:
    a(f"s_memrealtime {sp(sST0)}\nv_mov_b32 v{vSTV}, 0")
a(f"""s_load_dwordx16 s[8:23], s[0:1], 0
s_load_dwordx4 s[24:27], s[0:1], 64
s_load_dwordx2 s[28:29], s[0:1], 80
v_and_b32 v{vLANE}, 63, v0
v_lshrrev_b32 v{vT0}, 6, v0
v_lshrrev_b32 v{vG}, 4, v{vLANE}
v_readfirstlane_b32 s{sWAVE}, v{vT0}
v_and_b32 v{vN}, 15, v0
s_mul_i32 s{sBASE}, s2, {R}
v_lshlrev_b32 v{vL16}, 4, v{vLANE}
v_lshlrev_b32 v{vT16}, 4, v0
v_mov_b32 v{vRING}, {EMPTY}
v_mov_b32 v{vRING+1}, {EMPTY}
v_mov_b32 v{vRING+2}, {EMPTY}
v_mov_b32 v{vRING+3}, {EMPTY}
ds_write_b128 v{vT16}, {vr(vRING,4)} offset:{BT_OFF}
ds_write_b128 v{vT16}, {vr(vRING,4)} offset:{BT_OFF+8192}
v_mov_b32 v{vENT}, {OOB}
v_mov_b32 v{vENT+1}, {OOB}
v_mov_b32 v{vENT+2}, {OOB}
v_mov_b32 v{vENT+3}, {OOB}
ds_write_b128 v{vT16}, {vr(vENT,4)} offset:{BK_OFF}
v_mov_b32 v{vT1}, 0
v_lshlrev_b32 v{vT2}, 2, v0
v_cmp_gt_u32 vcc, 256, v0
s_and_saveexec_b64 {sp(sM0)}, vcc
ds_write_b32 v{vT2}, v{vT1} offset:{BC_OFF}
v_cmp_gt_u32 vcc, 128, v0
s_and_b64 exec, exec, vcc
ds_write_b128 v{vT16}, {vr(vENT,4)} offset:{BK_OFF+8192}
ds_write_b32 v{vT2}, v{vT1} offset:{CNT_OFF}
s_mov_b64 exec, {sp(sM0)}
s_lshr_b32 s{sPR}, s2, 4
s_lshl_b32 s{sPR}, s{sPR}, 3
s_and_b32 s{sT0}, s2, 7
s_add_u32 s{sPR}, s{sPR}, s{sT0}
s_lshl_b32 s{sF}, s{sPR}, 1
s_lshr_b32 s{sT0}, s{sWAVE}, 2
s_add_u32 s{sF}, s{sF}, s{sT0}
s_and_b32 s{sT0}, s{sWAVE}, 3
s_cmp_eq_u32 s{sT0}, 3
s_cselect_b32 s{sHLP}, 1, 0
s_cmp_lt_u32 s{sF}, 128
s_cselect_b32 s{sHLP}, s{sHLP}, 0
s_bitcmp1_b32 s2, 3
s_cselect_b32 s{sHLP}, s{sHLP}, 0
s_cselect_b32 s{sPR}, 255, s{sPR}
s_mul_i32 s{sT0}, s{sPR}, {EPP*4}
s_mul_i32 s{sT1}, s{sWAVE}, 640
s_add_u32 s{sT0}, s{sT0}, s{sT1}
v_lshlrev_b32 v{vT2}, 2, v{vLANE}
s_lshr_b32 s{sROT}, s2, 3
s_mov_b32 s{rSRC+2}, 640000
s_mov_b32 s{rSRC+3}, 0x00020000
s_mov_b32 s{rDST+2}, 640000
s_mov_b32 s{rDST+3}, 0x00020000
s_waitcnt lgkmcnt(0)
s_mov_b32 s{rDST}, s{sDST}
s_and_b32 s{rDST+1}, s{sDST+1}, 0xffff
s_mov_b32 s{rSRC}, s{sSRC}
s_and_b32 s{rSRC+1}, s{sSRC+1}, 0xffff
""")
if STAMPS:
    a(f"v_writelane_b32 v{vSTV}, s{sST0}, 0")
vD, vS, vBI, vSL = 32, 36, 40, 44
a(f"""s_cmp_ge_u32 s{sPR}, {NP}
s_cbranch_scc1 L_noedge
buffer_load_dword v{vD}, v{vT2}, {srd(rDST)}, s{sT0} offen
buffer_load_dword v{vD+1}, v{vT2}, {srd(rDST)}, s{sT0} offen offset:256
buffer_load_dword v{vS}, v{vT2}, {srd(rSRC)}, s{sT0} offen
buffer_load_dword v{vS+1}, v{vT2}, {srd(rSRC)}, s{sT0} offen offset:256
s_mov_b32 exec_hi, 0
buffer_load_dword v{vD+2}, v{vT2}, {srd(rDST)}, s{sT0} offen offset:512
buffer_load_dword v{vS+2}, v{vT2}, {srd(rSRC)}, s{sT0} offen offset:512
s_mov_b64 exec, -1
""")
a.label("L_noedge")
a(f"""s_load_dword s{sEP}, {sp(sWS)}, {EPOCH_OFF}
s_load_dword s{sEPSF}, {sp(sEPS)}, 0
""")
mksrd(rW1, sW1, 262144)
mksrd(rX, sX, 5120000)
a("s_barrier")
if CPF:
    a(f"""s_cmp_lg_u32 s{sWAVE}, 7
    s_cbranch_scc1 L_nocpf
    s_getpc_b64 {sp(sM1)}""")
    a.label("L_cpf")
    a(f"""v_lshlrev_b32 v{vT1}, 7, v{vLANE}
    global_load_dword v{vOWN+1}, v{vT1}, {sp(sM1)}
    v_add_u32 v{vT1}, 8192, v{vT1}
    v_min_u32 v{vT1}, L_end-L_cpf, v{vT1}
    s_mov_b32 exec_hi, 0
    global_load_dword v{vOWN+1}, v{vT1}, {sp(sM1)}
    s_mov_b64 exec, -1""")
    a.label("L_nocpf")
NEARLY = 0
if TT:
    a(f"""s_lshl_b32 s{sT0}, s2, 14
    s_lshl_b32 s{sT1}, s{sWAVE}, 11
    s_add_u32 s{sT0}, s{sT0}, s{sT1}
    s_add_u32 s{sT0}, s{sT0}, {TBL_OFF}
    v_lshlrev_b32 v{vT1}, 7, v{vLANE}
    v_add_u32 v{vT1}, s{sT0}, v{vT1}
    s_mov_b64 exec, 0xffff
    global_load_dword v{vOWN}, v{vT1}, {sp(sWS)} sc1
    s_mov_b64 exec, -1""")
    NEARLY += 1
if W1T:
    a(f"""s_lshl_b32 s{sT0}, s{sROT}, 3
    s_add_u32 s{sT0}, s{sT0}, s{sWAVE}
    s_lshl_b32 s{sT0}, s{sT0}, 10
    v_lshlrev_b32 v{vT1}, 7, v{vLANE}
    s_mov_b64 exec, 0xff
    buffer_load_dword v{vOWN}, v{vT1}, {srd(rW1)}, s{sT0} offen
    s_mov_b64 exec, -1""")
    NEARLY += 1


def own_loads():
    a(f"""s_mul_i32 s{sT0}, s{sWAVE}, 5
    s_add_u32 s{sT0}, s{sT0}, s{sBASE}
    s_lshl_b32 s{sT0}, s{sT0}, 9
    buffer_load_dwordx4 {vr(vOR,4)}, v{vL16}, {srd(rX)}, s{sT0} offen
    buffer_load_dwordx4 {vr(vOR+4,4)}, v{vL16}, {srd(rX)}, s{sT0} offen offset:1024
    s_mov_b32 exec_hi, 0
    buffer_load_dwordx4 {vr(vOR+8,4)}, v{vL16}, {srd(rX)}, s{sT0} offen offset:2048
    s_mov_b64 exec, -1
    """)


def own_store():
    a(f"""v_lshrrev_b32 v{vT1}, 5, v{vLANE}
    s_mul_i32 s{sT0}, s{sWAVE}, 5
    v_add_u32 v{vT1}, s{sT0}, v{vT1}
    v_mul_u32_u24 v{vT1}, {H_STR}, v{vT1}
    v_add_u32 v{vT1}, v{vT1}, v{vGOFF}
    ds_write_b128 v{vT1}, {vr(vOR,4)} offset:{H_OFF}
    ds_write_b128 v{vT1}, {vr(vOR+4,4)} offset:{H_OFF+2*H_STR}
    s_mov_b32 exec_hi, 0
    ds_write_b128 v{vT1}, {vr(vOR+8,4)} offset:{H_OFF+4*H_STR}
    s_mov_b64 exec, -1""")


if OWNPOS == 0:
    own_loads()
    NEARLY += 3
a(f"""s_sub_u32 s{sT2}, s{sWAVE}, 1
s_cmp_ge_u32 s{sT2}, 2
s_cbranch_scc1 L_nbl
s_cmp_eq_u32 s{sT2}, 0
s_cselect_b32 s{sM0}, s{sB1}, s{sB2}
s_cselect_b32 s{sM0+1}, s{sB1+1}, s{sB2+1}
s_cselect_b32 exec_hi, -1, 0
global_load_dwordx4 {vr(vBL,4)}, v{vL16}, {sp(sM0)}
s_mov_b64 exec, -1
""")

def frag_issue():
    a(f"""v_lshrrev_b32 v{vT2}, 5, v{vLANE}
    v_bfe_u32 v{vT3}, v{vLANE}, 4, 1
    v_lshl_add_u32 v{vT1}, v{vT3}, 4, v{vT2}
    s_and_b32 s{sT1}, s{sF}, 7
    s_lshl_b32 s{sT1}, s{sT1}, 1
    s_and_b32 s{sT0}, s{sF}, 8
    s_lshl_b32 s{sT0}, s{sT0}, 2
    s_add_u32 s{sT1}, s{sT1}, s{sT0}
    v_add_u32 v{vT1}, s{sT1}, v{vT1}
    v_lshrrev_b32 v{vT2}, 2, v{vT1}
    v_and_b32 v{vT1}, 3, v{vT1}
    v_lshlrev_b32 v{vT2}, 14, v{vT2}
    v_lshl_add_u32 v{vT2}, v{vT1}, 11, v{vT2}
    v_and_b32 v{vT1}, 15, v{vLANE}
    v_lshl_add_u32 v{vT2}, v{vT1}, 2, v{vT2}
    s_lshr_b32 s{sT0}, s{sF}, 4
    s_lshl_b32 s{sT0}, s{sT0}, 6
    s_add_u32 s{sT1}, s{sT0}, 8192
    """)
    for e in range(8):
        a(f"buffer_load_dword v{vQ+e}, v{vT2}, {srd(rW2)}, s{sT0 if e<4 else sT1} offen offset:{(e&3)*512}")


def frag_finish(cnt):
    a(f"""s_lshl_b32 s{sT0}, s{sF}, 11
    s_add_u32 s{sT0}, s{sT0}, s{sW2T}
    s_mov_b32 s{sSELLO}, 0x05040100
    s_mov_b32 s{sSELHI}, 0x07060302
    s_waitcnt vmcnt({cnt})
    """)
    for e in range(4):
        a(f"""v_perm_b32 v{vQ+8+e}, v{vQ+2*e+1}, v{vQ+2*e}, s{sSELLO}
        v_perm_b32 v{vQ+12+e}, v{vQ+2*e+1}, v{vQ+2*e}, s{sSELHI}""")
    a(f"""buffer_store_dwordx4 {vr(vQ+8,4)}, v{vL16}, {srd(rWS)}, s{sT0} offen sc1
    buffer_store_dwordx4 {vr(vQ+12,4)}, v{vL16}, {srd(rWS)}, s{sT0} offen offset:1024 sc1
    s_nop 1""")


a.label("L_nbl")
mksrd(rW2, sW2, 262144)
a(f"""s_cmp_eq_u32 s{sHLP}, 0
s_cbranch_scc1 L_nohelp0
""")
frag_issue()
a.label("L_nohelp0")
mksrd(rWS, sWS, WS_BYTES)
mksrd(rOUT, sOUT, 5120000)
a(f"""s_mov_b32 s{sW2T}, {W2T_OFF}
v_lshrrev_b32 v{vT1}, 1, v{vG}
v_and_b32 v{vT2}, 1, v{vG}
v_lshl_add_u32 v{vU}, v{vT2}, 4, v{vT1}
s_lshl_b32 s{sT0}, s{sWAVE}, 7
s_mul_i32 s{sSTG}, s{sWAVE}, {NSL*4096}
s_add_u32 s{sSTG}, s{sSTG}, {ST_OFF}
v_lshrrev_b32 v{vT1}, 3, v{vLANE}
v_and_b32 v{vT3}, 2, v{vT1}
v_and_b32 v{vT4}, 7, v{vLANE}
v_xor_b32 v{vT4}, v{vT4}, v{vT3}
v_lshlrev_b32 v{vOA}, 10, v{vT1}
v_add_u32 v{vOA}, s{sT0}, v{vOA}
v_xor_b32 v{vT3}, 4, v{vT4}
v_lshl_add_u32 v{vOB}, v{vT3}, 4, v{vOA}
v_add_u32 v{vOB}, 0x20000, v{vOB}
v_lshl_add_u32 v{vOA}, v{vT4}, 4, v{vOA}
v_and_b32 v{vGOFF}, 31, v{vLANE}
v_lshlrev_b32 v{vGOFF}, 4, v{vGOFF}
""")
a(f"""v_lshrrev_b32 v{vT1}, 1, v{vG}
v_lshrrev_b32 v{vLADDR}, 5, v{vLANE}
v_lshlrev_b32 v{vLADDR}, 4, v{vLADDR}
s_lshl_b32 s{sT0}, s{sWAVE}, 10
v_add_u32 v{vLADDR}, s{sT0}, v{vLADDR}
v_lshl_add_u32 v{vHW}, v{vT1}, 4, v{vN}
v_lshlrev_b32 v{vHW}, 4, v{vHW}
v_lshl_add_u32 v{vHW}, v{vT2}, 3, v{vHW}
v_mul_u32_u24 v{vG1B}, {H_STR}, v{vN}
v_lshl_add_u32 v{vG1B}, v{vU}, 4, v{vG1B}
v_mul_u32_u24 v{vT3}, {H1_STR}, v{vN}
v_add_u32 v{vT3}, {H1_OFF}, v{vT3}
v_lshl_add_u32 v{vG2B}, v{vU}, 4, v{vT3}
s_lshl_b32 s{sT0}, s{sWAVE}, 7
v_lshl_add_u32 v{vH1W}, v{vG}, 4, v{vT3}
v_add_u32 v{vH1W}, s{sT0}, v{vH1W}
s_lshl_b32 s{sT0}, s{sWAVE}, 8
v_lshlrev_b32 v{vBIA}, 4, v{vG}
v_add_u32 v{vBIA}, s{sT0}, v{vBIA}
v_lshrrev_b32 v{vT1}, 2, v{vN}
v_and_b32 v{vT3}, 2, v{vT1}
v_lshl_add_u32 v{vT3}, v{vT2}, 2, v{vT3}
v_lshlrev_b32 v{vT4}, 10, v{vG}
v_lshl_add_u32 v{vT4}, v{vT1}, 7, v{vT4}
v_and_b32 v{vT1}, 3, v{vN}
v_lshl_add_u32 v{vT4}, v{vT1}, 3, v{vT4}
v_add_u32 v{vT4}, s{sSTG}, v{vT4}
""")
for T in range(4):
    a(f"""v_xor_b32 v{vT1}, {2*T}, v{vT3}
    v_lshl_add_u32 v{vTR+T}, v{vT1}, 4, v{vT4}""")
a(f"""v_mov_b32 v{vT3}, 0x3f80
v_and_b32 v{vT0}, 1, v{vN}
v_lshlrev_b32 v{vT0}, 4, v{vT0}
v_lshlrev_b32 v{vT3}, v{vT0}, v{vT3}
v_lshlrev_b32 v{vT1}, 2, v{vT2}
v_lshrrev_b32 v{vT0}, 1, v{vN}
v_sub_u32 v{vT0}, v{vT0}, v{vT1}
""")
for r in range(4):
    a(f"""v_cmp_eq_u32 vcc, {r}, v{vT0}
    v_mov_b32 v{vGACC+r}, 0
    s_nop 0
    v_cndmask_b32 v{vASUM+r}, 0, v{vT3}, vcc""")
a(f"""v_cmp_gt_u32 vcc, 500, v0
s_mov_b64 {sp(sPM)}, vcc
s_lshl_b32 s{sFT}, s2, 13
s_add_u32 s{sFT}, s{sFT}, {TBL_OFF}
s_cmp_ge_u32 s{sPR}, {NP}
s_cbranch_scc1 L_stream
s_lshl_b32 s{sT0}, s{sPR}, 6
s_add_u32 s{sT0}, s{sT0}, {TBL_OFF}
v_lshrrev_b32 v{vT2}, 2, v0
v_lshlrev_b32 v{vT3}, 2, v{vT2}
v_and_b32 v{vT1}, 3, v0
v_lshlrev_b32 v{vT1}, 4, v{vT1}
v_lshl_add_u32 v{vT2}, v{vT2}, 13, v{vT1}
v_mov_b32 v{vT4}, 1
s_setprio 3
s_sub_u32 s{sT2}, s{sWAVE}, 1
s_cmp_lt_u32 s{sT2}, 2
s_cbranch_scc1 L_ew1
s_waitcnt vmcnt({NEARLY})
""")
a.label("L_ew1")
a(f"s_waitcnt vmcnt({NEARLY+1})")
stamp("edges")


def mktags():
    a(f"s_add_u32 s{sEP}, s{sEP}, 1")
    for i in range(4):
        a(f"s_add_u32 s{sTAG+i}, s{sEP}, {TAGC[i]}\ns_lshl_b32 s{sTAG+i}, s{sTAG+i}, 20")


for i in range(3):
    if i == 2:
        a("s_mov_b32 exec_hi, 0")
    a(f"""v_mul_u32_u24 v{vBI+i}, 0xcccd, v{vD+i}
    v_lshrrev_b32 v{vBI+i}, 21, v{vBI+i}
    v_lshlrev_b32 v{vT1}, 2, v{vBI+i}
    ds_add_rtn_u32 v{vSL+i}, v{vT1}, v{vT4} offset:{BC_OFF}""")
a("s_mov_b64 exec, -1")
for i in range(3):
    a(f"""v_mul_u32_u24 v{vT1}, {R}, v{vBI+i}
    v_sub_u32 v{vT1}, v{vD+i}, v{vT1}
    v_lshl_or_b32 v{vS+i}, v{vT1}, 14, v{vS+i}
    v_lshlrev_b32 v{vBI+i}, 6, v{vBI+i}""")
a("s_waitcnt lgkmcnt(0)")
for i in range(3):
    if i == 2:
        a("s_mov_b32 exec_hi, 0")
    a(f"""v_min_u32 v{vT1}, {CAP-1}, v{vSL+i}
    v_lshl_add_u32 v{vT1}, v{vT1}, 2, v{vBI+i}
    ds_write_b32 v{vT1}, v{vS+i} offset:{BT_OFF}""")
a("s_mov_b64 exec, -1")
mktags()
a(f"""v_mov_b32 v{vT1}, {OVFM}
s_waitcnt lgkmcnt(0)
s_barrier""")
NT = 64 * STW
NK = 1024 // NT
WO = 64
if STW < 8:
    a(f"s_cmp_ge_u32 s{sWAVE}, {STW}\ns_cbranch_scc1 L_nostore")
for k in range(NK):
    a(f"""ds_read_b128 {vr((32 if NK <= 4 else 48)+4*k,4)}, v{vT16} offset:{BT_OFF+NT*16*k}""")
    if NK > 4 and k == 3:
        pass
for k in range(NK):
    a(f"ds_read_b32 v{(112 if NK <= 4 else 40)+k}, v{vT3} offset:{BC_OFF+NT*k}")
a("s_waitcnt lgkmcnt(0)")
for k in range(NK):
    vE = (32 if NK <= 4 else 48) + 4 * k
    vC = (112 if NK <= 4 else 40) + k
    a(f"""v_cmp_lt_u32 vcc, {CAP}, v{vC}
    v_or_b32 v{vE+1}, s{sTAG+1}, v{vE+1}
    v_or_b32 v{vE+2}, s{sTAG+2}, v{vE+2}
    v_cndmask_b32 v{vE}, v{vE}, v{vT1}, vcc
    v_or_b32 v{vE+3}, s{sTAG+3}, v{vE+3}
    v_or_b32 v{vE}, s{sTAG}, v{vE}""")
    if k == NK - 1:
        a(f"""v_cmp_gt_u32 vcc, {1000 - NT*(NK-1)}, v0
        s_mov_b64 exec, vcc""")
    a(f"""buffer_store_dwordx4 {vr(vE,4)}, v{vT2}, {srd(rWS)}, s{sT0} offen sc1
    s_add_u32 s{sT0}, s{sT0}, {(NT//4)*TBL_BLOCK}""")
a("s_nop 1")
a.label("L_nostore")
a("s_mov_b64 exec, -1\ns_setprio 0")
stamp("published")
a.label("L_stream")


ops = []


def younger(tag):
    i = len(ops) - 1 - ops[::-1].index(tag)
    return len(ops) - 1 - i


def dma_w1(ks):
    a(f"""s_add_u32 s{sKS}, s{sROT}, {ks}
    s_and_b32 s{sKS}, s{sKS}, 7
    s_lshl_b32 s{sKS}, s{sKS}, 14
    s_add_u32 s{sT3}, s{sKS}, 8192""")
    for g in range(4):
        a(f"""s_add_u32 m0, s{sSTG}, {(ks%NSL)*4096+g*1024}
        s_nop 0
        buffer_load_dwordx4 v{vOB if g&1 else vOA}, {srd(rW1)}, s{sT3 if g>>1 else sKS} offen lds""")
        ops.append(f"d{ks}")


def tr_w1(ks):
    for T in range(4):
        for jh in range(2):
            d = vW + ks * 16 + T * 4 + jh * 2
            a(f"ds_read_b64_tr_b16 {vr(d,2)}, v{vTR+T} offset:{(ks%NSL)*4096+jh*512}")


vE = vRING + 8
vE2 = vRING + 24
vLD, vSL, vAD = vRING + 12, vRING + 16, vRING + 20
masks = [sM0, sM1, sM2, sM3]


def poll_loads():
    a(f"buffer_load_dwordx4 {vr(vE,4)}, v{vT16}, {srd(rWS)}, s{sFT} offen sc1")


def poll_check_and_insert():
    a(f"""s_cmp_lt_u32 s{sPR}, {NP}
    s_cbranch_scc1 L_hastag""")
    mktags()
    a.label("L_hastag")
    a(f"""s_mov_b32 s{sPC}, 0
    s_mov_b32 s{sT2}, 0x100000
    v_mov_b32 v{vT4}, 1
    s_mov_b64 {sp(sMASK)}, 0
    s_mov_b32 s{sRS}, 0
    s_mov_b64 exec, {sp(sPM)}
    s_waitcnt vmcnt({younger('p')})""")
    a.label("L_pchk")
    for i in range(4):
        a(f"v_xor_b32 v{vE+i}, s{sTAG+i}, v{vE+i}")
    a(f"""v_or3_b32 v{vT1}, v{vE}, v{vE+1}, v{vE+2}
    v_or_b32 v{vT1}, v{vT1}, v{vE+3}
    v_cmp_le_u32 vcc, s{sT2}, v{vT1}
    s_and_b64 exec, exec, vcc
    s_cbranch_execnz L_pmiss
    """)
    a.label("L_polled")
    a(f"""s_mov_b64 exec, -1
    v_cmp_eq_u32 vcc, {OVFM}, v{vE}
    s_cbranch_vccnz L_setovf
    """)
    a.label("L_noovf")
    stamp("polled")
    a.label("L_ins")
    for i in range(4):
        a(f"""v_bfe_u32 v{vLD+i}, v{vE+i}, 14, 6
        v_cmp_gt_u32 {sp(masks[i])}, {R}, v{vLD+i}
        v_lshlrev_b32 v{vAD+i}, 2, v{vLD+i}""")
    for i in range(4):
        a(f"""s_mov_b64 exec, {sp(masks[i])}
        ds_add_rtn_u32 v{vSL+i}, v{vAD+i}, v{vT4} offset:{CNT_OFF}""")
    a("s_mov_b64 exec, -1")
    for i in range(4):
        a(f"""v_and_b32 v{vE+i}, 0x3fff, v{vE+i}
        v_lshlrev_b32 v{vE+i}, 9, v{vE+i}
        v_lshlrev_b32 v{vAD+i}, 8, v{vLD+i}""")
    a("s_waitcnt lgkmcnt(0)")
    for i in range(4):
        a(f"""v_min_u32 v{vSL+i}, 63, v{vSL+i}
        v_lshl_add_u32 v{vAD+i}, v{vSL+i}, 2, v{vAD+i}""")
    for i in range(4):
        a(f"""s_mov_b64 exec, {sp(masks[i])}
        ds_write_b32 v{vAD+i}, v{vE+i} offset:{BK_OFF}""")
    a(f"""s_mov_b64 exec, -1
    s_cmp_lg_u64 {sp(sMASK)}, 0
    s_cbranch_scc1 L_rescan
    """)


def is_helper(lab):
    a(f"""s_mov_b32 s{sT0}, s{sF}
    s_cmp_eq_u32 s{sHLP}, 0
    s_cbranch_scc1 {lab}""")


a("s_setprio 2")
for ks in range(NSL):
    dma_w1(ks)
    if OWNPOS >= 3 and ks == OWNPOS - 3:
        own_loads()
        ops.extend(["o"] * 3)
for i in range(4):
    a(f"v_mov_b32 v{vE+i}, {EMPTY}")
for ks in range(KE - NSL):
    a(f"s_waitcnt vmcnt({younger(f'd{ks}')})")
    tr_w1(ks)
    if ks == 0:
        if OWNPOS < 3:
            own_store()
        a(f"""s_sub_u32 s{sT2}, s{sWAVE}, 1
        s_cmp_ge_u32 s{sT2}, 2
        s_cbranch_scc1 L_nbias
        v_lshlrev_b32 v{vT1}, 5, v{vLANE}
        s_cmp_eq_u32 s{sT2}, 1
        s_cbranch_scc1 L_bias2
        """)
        for i in range(4):
            a(f"""v_lshlrev_b32 v{64+2*i}, 16, v{vBL+i}
            v_and_b32 v{64+2*i+1}, 0xffff0000, v{vBL+i}""")
        a(f"""ds_write_b128 v{vT1}, {vr(64,4)} offset:{B1F_OFF}
        ds_write_b128 v{vT1}, {vr(68,4)} offset:{B1F_OFF+16}
        s_branch L_nbias
        """)
        a.label("L_bias2")
        for i in range(4):
            a(f"""v_lshlrev_b32 v{64+i}, 16, v{vBL+i}
            v_and_b32 v{68+i}, 0xffff0000, v{vBL+i}""")
        a(f"""s_mov_b32 exec_hi, 0
        ds_write_b128 v{vT1}, {vr(64,4)} offset:{B2F_OFF}
        ds_write_b128 v{vT1}, {vr(68,4)} offset:{B2F_OFF+16}
        s_mov_b64 exec, -1
        """)
        a.label("L_nbias")
    if ks in (1, 3):
        a(f"s_setprio {1 - ks//2}")
    a("s_waitcnt lgkmcnt(0)")
    dma_w1(ks + NSL)
    if ks == 0:
        is_helper("L_nohelp")
        frag_finish(63)
        a.label("L_nohelp")
        if KE < 8:
            a(f"""s_sub_u32 s{sT0}, s2, 136
            s_and_b32 s{sT1}, s{sT0}, 0xffffffc7
            s_cbranch_scc1 L_nodump
            s_and_b32 s{sT0}, s{sROT}, 7
            s_lshl_b32 s{sT0}, s{sT0}, 12
            s_lshl_b32 s{sT1}, s{sWAVE}, 15
            s_add_u32 s{sT0}, s{sT0}, s{sT1}
            s_add_u32 s{sT0}, s{sT0}, {W2T_OFF + 262144}""")
            for f in range(4):
                a(f"buffer_store_dwordx4 {vr(vW+4*f,4)}, v{vL16}, {srd(rWS)}, s{sT0} offen offset:{f*1024} sc1")
            a.label("L_nodump")
    if ks + 1 == POLLK:
        a(f"s_mov_b64 exec, {sp(sPM)}")
        poll_loads()
        a("s_mov_b64 exec, -1")
        ops.extend(["p"])
        stamp("pollissued")
    if ks + 1 == CHKK:
        poll_check_and_insert()
        if OWNPOS >= 3:
            own_store()
        a(f"""s_sub_u32 s{sT0}, s2, 136
        s_and_b32 s{sT1}, s{sT0}, 0xffffffc7
        s_cbranch_scc1 L_nodf
        s_and_b32 s{sT0}, s{sROT}, 7
        s_lshl_b32 s{sT0}, s{sT0}, 3
        s_add_u32 s{sT0}, s{sT0}, s{sWAVE}
        s_add_u32 s{sT0}, s{sT0}, 128
        s_branch L_doflag""")
        a.label("L_nodf")
        is_helper("L_noflag")
        a.label("L_doflag")
        a(f"""s_mul_i32 s{sT1}, s{sEP}, {FLGM[0]}
        v_mov_b32 v{vT2}, s{sT1}
        s_lshl_b32 s{sT0}, s{sT0}, 2
        s_add_u32 s{sT0}, s{sT0}, {FLG_OFF}
        v_mov_b32 v{vT1}, 0
        s_mov_b64 exec, 1
        buffer_store_dword v{vT2}, v{vT1}, {srd(rWS)}, s{sT0} offen sc1
        s_mov_b64 exec, -1
        """)
        a.label("L_noflag")
if not W1TAIL:
    for ks in range(KE - NSL, KE):
        a(f"s_waitcnt vmcnt({younger(f'd{ks}')})")
        tr_w1(ks)
stamp("w1done")

a(f"""s_lshl_b32 s{sEPSF}, s{sEPSF}, 16
v_add_f32 v{vT0}, s{sEPSF}, 1.0
v_cvt_pk_bf16_f32 v{vT0}, v{vT0}, v{vT0}
v_lshlrev_b32 v{vT0}, 16, v{vT0}
v_add_u32 v{vT3}, s{sBASE}, v{vN}
v_readfirstlane_b32 s{sEPSF}, v{vT0}
v_lshlrev_b32 v{vT3}, 9, v{vT3}
v_lshl_add_u32 v{vT3}, v{vG}, 4, v{vT3}
s_lshl_b32 s{sT0}, s{sWAVE}, 6
v_add_u32 v{vOUTA}, s{sT0}, v{vT3}
v_lshlrev_b32 v{vT0}, 2, v{vLANE}
v_mov_b32 v{vT2}, 0
s_mov_b32 s{sFT}, {FLG_OFF}
s_mov_b32 s{sI}, 0
s_lshl_b32 s{sT0}, s{sWAVE}, 2
s_lshl_b32 s{sT1}, s{sWAVE}, 1
s_add_u32 s{sT1}, s{sT1}, 32
s_add_u32 s{sT2}, s{sT0}, 2
s_cmp_lt_u32 s{sWAVE}, 4
s_cselect_b32 s{sNODE}, 6, 4
s_cselect_b32 s{sRW}, s{sT1}, s{sT0}
s_cselect_b32 s{sRW+2}, s{sT0}, s{sT2}
s_cselect_b32 s{sRW+4}, s{sT2}, 46
s_cselect_b32 s{sPH}, 0, {1 if YPH else 0}
s_add_u32 s{sRW+1}, s{sRW}, 1
s_add_u32 s{sRW+3}, s{sRW+2}, 1
s_add_u32 s{sRW+5}, s{sRW+4}, 1
s_mov_b64 {sp(sROWT)}, 0
""")
for k in range(5, -1, -1):
    a(f"""s_lshl_b64 {sp(sROWT)}, {sp(sROWT)}, 8
    s_or_b32 s{sROWT}, s{sROWT}, s{sRW+k}""")
a(f"""s_mul_i32 s{sT0}, s{sRW}, {H_STR}
v_add_u32 v{vT4}, s{sT0}, v{vHW}
s_mov_b64 {sp(sMASK)}, 0
s_mov_b64 {sp(sMASK2)}, 0
s_lshl_b32 s{sT0}, s{sWAVE}, 15
s_add_u32 s{sW2T}, s{sW2T}, s{sT0}
s_mov_b32 s{sG0}, 0
s_cmp_lt_u32 s{sWAVE}, 4
s_cselect_b32 s{sCTR}, 0, 4
s_setprio {3 if YPH else 1}
s_cbranch_scc0 L_prD
s_setprio 2
""")
a.label("L_prD")
vPE = 96


def issue_group(ent, r):
    for j in range(4):
        a(f"v_add_u32 v{ent+j}, v{ent+j}, v{vGOFF}")
    for j in range(4):
        a(f"buffer_load_dwordx4 {vr(vRING+r*16+j*4,4)}, v{ent+j}, {srd(rX)}, 0 offen")


a(f"""v_lshrrev_b32 v{vENT}, 5, v{vLANE}
v_lshlrev_b32 v{vENT}, 4, v{vENT}
s_lshl_b32 s{sT0}, s{sRW}, 8
v_add_u32 v{vENT}, s{sT0}, v{vENT}
v_cmp_gt_u32 {sp(sM1)}, {R}, v{vLANE}
s_waitcnt lgkmcnt(0)
s_barrier
""")
stamp("buckets")
a.label("L_gsetup")
for s_ in range(FS):
    a(f"ds_read_b128 {vr(vPE+4*s_,4)}, v{vENT} offset:{BK_OFF+32*s_}")
a(f"""ds_read_b32 v{vT1}, v{vT0} offset:{CNT_OFF}
ds_read_b32 v{vT3}, v{vT2} offset:{FLAG_OFF}
ds_read_b64 {vr(vOWN,2)}, v{vT4} offset:{H_OFF}
""")
for s_ in range(FS):
    a(f"s_waitcnt lgkmcnt({3+FS-1-s_})")
    issue_group(vPE + 4 * s_, s_)
a(f"""s_waitcnt lgkmcnt(0)
v_cmp_lt_u32 vcc, 64, v{vT1}
v_add_u32 v{vT1}, 1, v{vT1}
v_lshrrev_b32 v{vT1}, 1, v{vT1}
v_max_u32 v{vT1}, 1, v{vT1}
v_cndmask_b32 v{vT1}, 0, v{vT1}, {sp(sM1)}
v_readfirstlane_b32 s{sTMO}, v{vT3}
""")
for k in range(6):
    a(f"v_readlane_b32 s{sE+k}, v{vT1}, s{sRW+k}")
a(f"""s_cmp_lg_u64 vcc, 0
s_cbranch_scc1 L_slow
s_cmp_lg_u32 s{sTMO}, 0
s_cbranch_scc1 L_slow
""")
if FS:
    a(f"s_max_u32 s{sE}, s{sE}, {4*FS}")
for k in range(1, 6):
    a(f"s_add_u32 s{sE+k}, s{sE+k}, s{sE+k-1}")
a(f"""s_cmp_gt_u32 s{sE+5}, 64
s_cbranch_scc1 L_big
v_mov_b32 v{vT0}, v{vLANE}
""")


def build_list():
    a(f"v_mov_b32 v{vT2}, s{sSB}")
    for k in range(1, 6):
        a(f"""v_cmp_le_u32 vcc, s{sE+k-1}, v{vT0}
        v_mov_b32 v{vT3}, s{sSB+k}
        s_nop 0
        v_cndmask_b32 v{vT2}, v{vT2}, v{vT3}, vcc""")
    a(f"""v_lshl_add_u32 v{vT2}, v{vT0}, 3, v{vT2}
    v_mov_b32 v{vENT}, {OOB}
    v_mov_b32 v{vENT+1}, {OOB}
    v_cmp_gt_u32 vcc, s{sE+5}, v{vT0}
    s_mov_b64 exec, vcc
    ds_read_b64 {vr(vENT,2)}, v{vT2} offset:{BK_OFF}
    s_mov_b64 exec, -1
    v_lshrrev_b32 v{vT3}, 2, v{vT0}
    v_lshlrev_b32 v{vT3}, 5, v{vT3}
    v_and_b32 v{vT1}, 3, v{vT0}
    v_lshl_add_u32 v{vT3}, v{vT1}, 2, v{vT3}
    s_lshl_b32 s{sKS}, s{sWAVE}, 10
    v_add_u32 v{vT3}, s{sKS}, v{vT3}
    v_add_u32 v{vT3}, {LIST_OFF}, v{vT3}
    """)


def bases():
    a(f"s_lshl_b32 s{sSB}, s{sRW}, 8")
    for k in range(1, 6):
        a(f"""s_lshl_b32 s{sSB+k}, s{sRW+k}, 5
        s_sub_u32 s{sSB+k}, s{sSB+k}, s{sE+k-1}
        s_lshl_b32 s{sSB+k}, s{sSB+k}, 3""")


bases()
build_list()
for k in range(6):
    a(f"s_sub_u32 s{sKS}, s{sE+k}, 1\ns_bitset1_b64 {sp(sMASK)}, s{sKS}")
a(f"""s_waitcnt lgkmcnt(0)
ds_write2_b32 v{vT3}, v{vENT}, v{vENT+1} offset0:0 offset1:4
""")
a.label("L_listdone")
a(f"""s_add_u32 s{sNGT}, s{sE+5}, 3
s_lshr_b32 s{sNGT}, s{sNGT}, 2
s_max_u32 s{sREM}, s{sNGT}, {RD}
""")
a.label("L_prol")
for s in range(FS, RD):
    a(f"ds_read_b128 {vr(vPE+4*s,4)}, v{vLADDR} offset:{LIST_OFF+32*s}")
a(f"ds_read_b128 {vr(vENT,4)}, v{vLADDR} offset:{LIST_OFF+32*RD}")


def w1_tail(cnt):
    if W1TAIL:
        a(f"s_waitcnt vmcnt({cnt})")
        for ks in range(KE - NSL, KE):
            tr_w1(ks)


for s in range(FS, RD):
    a(f"s_waitcnt lgkmcnt({RD-s})" if s == FS else "s_waitcnt lgkmcnt(0)")
    issue_group(vPE + 4 * s, s)
    if s == FS:
        w1_tail(4 * (FS + 1))
stamp("gstart")


def mfma_sum(b):
    a(f"v_mfma_f32_16x16x32_bf16 {vr(vGACC,4)}, {vr(vASUM,4)}, {vr(b,4)}, {vr(vGACC,4)}")


stubs = []
drains = []
a.label("L_gloop")
for s in range(RD):
    lgo, ldr, lni = a.newlabel("L_go"), a.newlabel("L_dr"), a.newlabel("L_ni")
    drains.append((ldr, lgo))
    b = vRING + s * 16
    a(f"""s_cmp_lt_u32 s{sREM}, {RD}
    s_cbranch_scc1 {ldr}
    s_waitcnt vmcnt({4*(RD-1)})""")
    a.label(lgo)
    for j in range(4):
        ls, lb = a.newlabel("L_st"), a.newlabel("L_bk")
        stubs.append((ls, lb))
        mfma_sum(b + 4 * j)
        a(f"""s_bitcmp1_b32 s{sMASK}, {4*s+j}
        s_cbranch_scc1 {ls}""")
        a.label(lb)
    a(f"""s_cmp_lt_u32 s{sREM}, {RD+1}
    s_cbranch_scc1 {lni}
    s_waitcnt lgkmcnt(0)""")
    issue_group(vENT, s)
    a(f"ds_read_b128 {vr(vENT,4)}, v{vLADDR} offset:{LIST_OFF+32*(RD+1+s)}")
    a.label(lni)
    a(f"s_sub_u32 s{sREM}, s{sREM}, 1")
a(f"""v_add_u32 v{vLADDR}, 128, v{vLADDR}
s_lshr_b64 {sp(sMASK)}, {sp(sMASK)}, 16
s_add_u32 s{sI}, s{sI}, 1
s_cmp_eq_u32 s{sI}, 4
s_cselect_b64 {sp(sMASK)}, {sp(sMASK2)}, {sp(sMASK)}
s_cmp_lt_u32 s{sI}, 8
s_cbranch_scc1 L_gloop
s_endpgm
""")
for ls, lb in stubs:
    a.label(ls)
    a(f"s_call_b64 {sp(sRET)}, L_fin\ns_branch {lb}")
for ldr, lgo in drains:
    a.label(ldr)
    for k in range(RD - 1, 1, -1):
        ln = a.newlabel("L_dr")
        a(f"""s_cmp_lt_u32 s{sREM}, {k}
        s_cbranch_scc1 {ln}
        s_waitcnt vmcnt({4*(k-1)})
        s_branch {lgo}""")
        a.label(ln)
    a(f"s_waitcnt vmcnt(0)\ns_branch {lgo}")

a.label("L_fin")
a(f"""s_and_b32 s{sT1}, s{sROWT}, 0xff
s_lshr_b64 {sp(sROWT)}, {sp(sROWT)}, 8
s_and_b32 s{sT2}, s{sROWT}, 0xff
s_mul_i32 s{sT1}, s{sT1}, {H_STR}
s_mul_i32 s{sT2}, s{sT2}, {H_STR}
s_waitcnt lgkmcnt(0)
v_lshlrev_b32 v{vT0}, 16, v{vOWN}
v_and_b32 v{vT1}, 0xffff0000, v{vOWN}
v_lshlrev_b32 v{vT2}, 16, v{vOWN+1}
v_and_b32 v{vT3}, 0xffff0000, v{vOWN+1}
v_add_u32 v{vT4}, s{sT2}, v{vHW}
ds_read_b64 {vr(vOWN,2)}, v{vT4} offset:{H_OFF}
v_fma_f32 v{vT0}, v{vT0}, s{sEPSF}, v{vGACC}
v_fma_f32 v{vT1}, v{vT1}, s{sEPSF}, v{vGACC+1}
v_fma_f32 v{vT2}, v{vT2}, s{sEPSF}, v{vGACC+2}
v_fma_f32 v{vT3}, v{vT3}, s{sEPSF}, v{vGACC+3}
v_add_u32 v{vT4}, s{sT1}, v{vHW}
v_cvt_pk_bf16_f32 v{vT0}, v{vT0}, v{vT1}
v_cvt_pk_bf16_f32 v{vT1}, v{vT2}, v{vT3}
v_mov_b32 v{vGACC}, 0
v_mov_b32 v{vGACC+1}, 0
ds_write_b64 v{vT4}, {vr(vT0,2)} offset:{H_OFF}
v_mov_b32 v{vGACC+2}, 0
v_mov_b32 v{vGACC+3}, 0
s_sub_u32 s{sNODE}, s{sNODE}, 1
s_cmp_eq_u32 s{sNODE}, 2
s_cbranch_scc1 L_finflag
s_cmp_eq_u32 s{sNODE}, 0
s_cbranch_scc1 L_gdone
s_setpc_b64 {sp(sRET)}
""")
a.label("L_finflag")
a(f"""buffer_load_dwordx4 {vr(vFLG,4)}, v{vL16}, {srd(rWS)}, s{sFT} offen sc1
s_setpc_b64 {sp(sRET)}
""")

vACC1 = 32
vBB = 64
vW2E = 88
NE = 10


def acc1(t, T):
    return vACC1 + (t * 4 + T) * 4


w2n = [0]
tops = []


def tyounger(tag):
    i = len(tops) - 1 - tops[::-1].index(tag)
    return len(tops) - 1 - i


def w2reg(q):
    if q < NE:
        return vW2E + 4 * q
    return vW + 4 * (q - NE)


def ldw2(n):
    for _ in range(n):
        q = w2n[0]
        if q >= 32:
            return
        if (q & 1) == 0:
            a(f"""s_add_u32 s{sW2K}, s{sROT}, {q>>1}
            s_and_b32 s{sW2K}, s{sW2K}, 7
            s_lshl_b32 s{sW2K}, s{sW2K}, 11
            s_add_u32 s{sW2K}, s{sW2K}, s{sW2T}""")
        a(f"buffer_load_dwordx4 {vr(w2reg(q),4)}, v{vL16}, {srd(rWS)}, s{sW2K} offen offset:{(q&1)*1024} sc1")
        w2n[0] += 1
        tops.append("b")
        if q == 15:
            a(f"s_add_u32 s{sW2T}, s{sW2T}, 16384")


def g1(tiles, last):
    nt = len(tiles)

    def buf(ks, i):
        return vBB + ((ks % 3) * 2 + i) * 4

    def rd(ks):
        a(f"""s_add_u32 s{sKS}, s{sROT}, {ks}
        s_and_b32 s{sKS}, s{sKS}, 7
        s_lshl_b32 s{sKS}, s{sKS}, 5
        v_add_u32 v{vT0+(ks%3)}, s{sKS}, v{vG1B}""")
        for i, t in enumerate(tiles):
            a(f"ds_read_b128 {vr(buf(ks,i),4)}, v{vT0+(ks%3)} offset:{H_OFF+t*16*H_STR}")
    for ks in range(3):
        rd(ks)
    for ks in range(8):
        vm = f"vmcnt({tyounger(f'a{ks}')}) " if (not last and ks >= KE) else ""
        a(f"s_waitcnt {vm}lgkmcnt({nt*min(2, 7-ks)})")
        for i in range(nt):
            for T in range(4):
                fr = vW + ks * 16 + T * 4
                c = acc1(nt - 1, T) if ks == 0 else acc1(i, T)
                a(f"v_mfma_f32_16x16x32_bf16 {vr(acc1(i,T),4)}, {vr(fr,4)}, {vr(buf(ks,i),4)}, {vr(c,4)}")
            if not last and w1q:
                if i == nt - 1:
                    ldw1(w1q.pop(0))
            elif not last and w2n[0] < E1:
                ldw2(1)
        if ks + 3 < 8:
            rd(ks + 3)
        if last:
            ldw2(max(0, min(G1LD, NE + 4 * (ks + 1) - w2n[0])))
    a("s_nop 6")
    for i, t in enumerate(tiles):
        if t == 2:
            a("s_mov_b32 exec_lo, 0x00ff00ff\ns_mov_b32 exec_hi, 0x00ff00ff")
        for aa in range(2):
            o = vBB + (i * 2 + aa) * 4
            for hT in range(2):
                for hh in range(2):
                    s0 = acc1(i, 2 * aa + hT) + 2 * hh
                    a(f"""v_cvt_pk_bf16_f32 v{o+2*hT+hh}, v{s0}, v{s0+1}
                    v_pk_max_i16 v{o+2*hT+hh}, v{o+2*hT+hh}, 0""")
            a(f"ds_write_b128 v{vH1W}, {vr(o,4)} offset:{H1T[t]+aa*64}")
        if t == 2:
            a("s_mov_b64 exec, -1")


def arrive(off):
    a(f"""v_mov_b32 v{vT3}, s{sCTR}
    v_mov_b32 v{vT4}, 1
    s_mov_b64 exec, 1
    ds_add_u32 v{vT3}, v{vT4} offset:{off}
    s_mov_b64 exec, -1""")


def wait_ctr(off, lab):
    a(f"s_mov_b32 s{sT3}, 0\nv_mov_b32 v{vT4}, 0\ns_branch {lab}_in")
    a.label(lab)
    a("s_sleep 1")
    a.label(lab + "_in")
    a(f"""ds_read_b32 v{vT3}, v{vT4} offset:{off}
    s_add_u32 s{sT3}, s{sT3}, 1
    s_waitcnt lgkmcnt(0)
    v_readfirstlane_b32 s{sT1}, v{vT3}
    s_cmp_lt_u32 s{sT3}, 0x4000000
    s_cselect_b32 s{sT2}, 4, 0
    s_cmp_lt_u32 s{sT1}, s{sT2}
    s_cbranch_scc1 {lab}
    """)


a.label("L_gdone")
stamp("gdone")
arrive(DONE_OFF)
a(f"""s_cmp_ge_u32 s{sWAVE}, 4
s_cbranch_scc1 L_noarr
s_setprio 0
""")
a.label("L_noarr")
a(f"""s_mov_b32 s{sT3}, 0
s_mul_i32 s{sT0}, s{sEP}, {FLGM[0]}
s_mul_i32 s{sT1}, s{sEP}, {FLGM[1]}
""")
a.label("L_chk2")
a(f"""s_waitcnt vmcnt(0)
v_xor_b32 v{vFLG}, s{sT0}, v{vFLG}
v_xor_b32 v{vFLG+1}, s{sT0}, v{vFLG+1}
v_xor_b32 v{vFLG+2}, s{sT0}, v{vFLG+2}
v_xor_b32 v{vFLG+3}, s{sT0}, v{vFLG+3}
v_or3_b32 v{vT1}, v{vFLG}, v{vFLG+1}, v{vFLG+2}
v_or_b32 v{vT1}, v{vT1}, v{vFLG+3}
s_mov_b32 exec_hi, 0xffff
v_cmp_ne_u32 vcc, 0, v{vT1}
s_mov_b64 exec, -1
s_cbranch_vccnz L_w2miss
""")
a.label("L_w2ok")
tops.clear()


def ldw1(ks):
    a(f"""s_add_u32 s{sW2K}, s{sROT}, {ks}
    s_and_b32 s{sW2K}, s{sW2K}, 7
    s_lshl_b32 s{sW2K}, s{sW2K}, 12
    s_add_u32 s{sW2K}, s{sW2K}, s{sW2T}
    s_add_u32 s{sW2K}, s{sW2K}, 262144""")
    for f in range(4):
        a(f"buffer_load_dwordx4 {vr(vW+ks*16+f*4,4)}, v{vL16}, {srd(rWS)}, s{sW2K} offen offset:{f*1024} sc1")
        tops.append(f"a{ks}")


w1q = list(range(KE, 8))
if not W1IN:
    while w1q:
        ldw1(w1q.pop(0))
for T in range(4):
    a(f"ds_read_b128 {vr(acc1(1,T),4)}, v{vBIA} offset:{B1F_OFF+64*T}")
wait_ctr(DONE_OFF, "L_spA")
stamp("g02start")
g1([0, 2], False)
for T in range(4):
    a(f"ds_read_b128 {vr(acc1(0,T),4)}, v{vBIA} offset:{B1F_OFF+64*T}")
stamp("g02end")
wait_ctr(DONE_OFF + 4, "L_spB")
stamp("g1start")
g1([1], True)
arrive(DONE_OFF + 8)

vACC2 = 32
vB2B = 56


def acc2(t, T):
    return vACC2 + (t * 2 + T) * 4


a(f"""s_lshl_b32 s{sT0}, s{sWAVE}, 8
v_subrev_u32 v{vT0}, s{sT0}, v{vBIA}
v_lshlrev_b32 v{vT0}, 1, v{vT0}
s_lshl_b32 s{sT0}, s{sWAVE}, 7
v_add_u32 v{vT0}, s{sT0}, v{vT0}
ds_read_b128 {vr(acc2(2,0),4)}, v{vT0} offset:{B2F_OFF}
ds_read_b128 {vr(acc2(2,1),4)}, v{vT0} offset:{B2F_OFF+16}
""")
ldw2(2)
stamp("g1end")


def rd2(ks):
    a(f"""s_add_u32 s{sKS}, s{sROT}, {ks}
    s_and_b32 s{sKS}, s{sKS}, 7
    s_lshl_b32 s{sKS}, s{sKS}, 5
    v_add_u32 v{vT1+(ks&1)}, s{sKS}, v{vG2B}""")
    for t in range(3):
        a(f"ds_read_b128 {vr(vB2B+(ks&1)*12+t*4,4)}, v{vT1+(ks&1)} offset:{H1T[t]+(ks>>3)*512}")


for half in range(2):
    wait_ctr(DONE_OFF + 8 + 4 * half, f"L_spG{half}")
    stamp(f"g2h{half}")
    if half == 1 and TPRIO:
        a("s_setprio 0")
    rd2(8 * half)
    rd2(8 * half + 1)
    for ks in range(8 * half, 8 * half + 8):
        assert w2n[0] >= 2 * ks + 2
        a(f"s_waitcnt vmcnt({w2n[0]-2*ks-2}) lgkmcnt({3 if (ks & 7) < 7 else 0})")
        for t in range(3):
            for T in range(2):
                fr = w2reg(2 * ks + T)
                c = acc2(2, T) if ks == 0 else acc2(t, T)
                a(f"v_mfma_f32_16x16x32_bf16 {vr(acc2(t,T),4)}, {vr(fr,4)}, {vr(vB2B+(ks&1)*12+t*4,4)}, {vr(c,4)}")
            if t < 2:
                ldw2(1)
        if (ks & 7) + 2 < 8:
            rd2(ks + 2)
a(f"s_mov_b32 s{sT2}, 8192\ns_mov_b32 s{sT3}, 16384")
a("s_nop 3")
vO = 88
for t in range(3):
    for r in range(4):
        a(f"v_cvt_pk_bf16_f32 v{vO+t*4+r}, v{acc2(t,0)+r}, v{acc2(t,1)+r}")
    if t == 2:
        a("s_mov_b32 exec_lo, 0x00ff00ff\ns_mov_b32 exec_hi, 0x00ff00ff")
    so = ["0", f"s{sT2}", f"s{sT3}"][t]
    a(f"buffer_store_dwordx4 {vr(vO+t*4,4)}, v{vOUTA}, {srd(rOUT)}, {so} offen {['', 'nt', 'sc1', 'sc0 sc1', 'sc1 nt'][OPOL]}")
a(f"""s_mov_b64 exec, 1
v_mov_b32 v{vT1}, s{sEP}
v_mov_b32 v{vT2}, {EPOCH_OFF}
s_lshr_b32 s{sT0}, s{sTMO}, 1
s_or_b32 s{sT0}, s{sT0}, s{sWAVE}
s_cmp_lg_u32 s{sT0}, 0
s_cbranch_scc1 L_noep
buffer_store_dword v{vT1}, v{vT2}, {srd(rWS)}, 0 offen
""")
a.label("L_noep")
if STAMPS:
    a("s_mov_b64 exec, -1")
    stamp("end")
    a(f"""s_lshl_b32 s{sT0}, s2, 10
    s_lshl_b32 s{sT1}, s{sWAVE}, 7
    s_add_u32 s{sT0}, s{sT0}, s{sT1}
    s_add_u32 s{sT0}, s{sT0}, 0x800000
    v_lshlrev_b32 v{vT1}, 2, v{vLANE}
    s_mov_b32 exec_hi, 0
    buffer_store_dword v{vSTV}, v{vT1}, {srd(rWS)}, s{sT0} offen""")
a.label("L_end")
a("s_endpgm")

a.label("L_pmiss")
a(f"""s_add_u32 s{sPC}, s{sPC}, 1
s_cmp_ge_u32 s{sPC}, {SPIN_MAX}
s_cbranch_scc1 L_ptimeout
s_sleep {PSLEEP}
""")
poll_loads()
a("s_waitcnt vmcnt(0)\ns_branch L_pchk")
a.label("L_ptimeout")
a(f"""s_mov_b64 exec, -1
v_mov_b32 v{vT1}, 0
v_mov_b32 v{vT2}, 3
ds_or_b32 v{vT1}, v{vT2} offset:{FLAG_OFF}
""")
for i in range(4):
    a(f"v_mov_b32 v{vE+i}, {EMPTY}\nv_mov_b32 v{vE2+i}, {EMPTY}")
a("s_branch L_polled")
a.label("L_setovf")
a(f"""s_and_b32 s{sMASK}, vcc_lo, 0x11111111
s_and_b32 s{sMASK+1}, vcc_hi, 0x11111111
s_mov_b64 exec, vcc""")
for i in range(4):
    a(f"v_mov_b32 v{vE+i}, {EMPTY}")
a("s_mov_b64 exec, -1\ns_branch L_noovf")
a.label("L_rescan")
a(f"""s_ff1_i32_b64 s{sT0}, {sp(sMASK)}
s_lshr_b32 s{sT1}, s{sT0}, 2
s_lshl_b32 s{sT3}, s{sWAVE}, 4
s_add_u32 s{sT1}, s{sT1}, s{sT3}
s_mul_i32 s{sT1}, s{sT1}, {EPP*4}
s_lshl_b32 s{sT3}, s{sRS}, 10
s_add_u32 s{sT1}, s{sT1}, s{sT3}
buffer_load_dwordx4 {vr(vE2,4)}, v{vL16}, {srd(rDST)}, s{sT1} offen
buffer_load_dwordx4 {vr(vE,4)}, v{vL16}, {srd(rSRC)}, s{sT1} offen
s_add_u32 s{sRS}, s{sRS}, 1
s_cmp_lt_u32 s{sRS}, 5
s_cbranch_scc1 L_rs1
s_mov_b32 s{sRS}, 0
s_bitset0_b64 {sp(sMASK)}, s{sT0}
""")
a.label("L_rs1")
a("s_waitcnt vmcnt(0)")
for i in range(4):
    a(f"""v_subrev_u32 v{vE2+i}, s{sBASE}, v{vE2+i}
    v_min_u32 v{vE2+i}, 63, v{vE2+i}
    v_lshl_or_b32 v{vE+i}, v{vE2+i}, 14, v{vE+i}""")
a("s_branch L_ins")
a.label("L_big")
a(f"""s_cmp_gt_u32 s{sE+5}, 104
s_cbranch_scc1 L_slow
""")
bases()
for rnd in range(2):
    a(f"v_add_u32 v{vT0}, {64*rnd}, v{vLANE}")
    build_list()
    a(f"""s_waitcnt lgkmcnt(0)
    ds_write2_b32 v{vT3}, v{vENT}, v{vENT+1} offset0:0 offset1:4""")
for k in range(6):
    l0, l1 = a.newlabel("L_bm"), a.newlabel("L_bm")
    a(f"""s_sub_u32 s{sKS}, s{sE+k}, 1
    s_cmp_ge_u32 s{sKS}, 64
    s_cbranch_scc1 {l0}
    s_bitset1_b64 {sp(sMASK)}, s{sKS}
    s_branch {l1}""")
    a.label(l0)
    a(f"s_bitset1_b64 {sp(sMASK2)}, s{sKS}")
    a.label(l1)
a("s_branch L_listdone")
a.label("L_w2miss")
a(f"""s_add_u32 s{sT3}, s{sT3}, 1
s_cmp_ge_u32 s{sT3}, {SPIN_MAX}
s_cbranch_scc1 L_w2self
s_sleep 2
buffer_load_dwordx4 {vr(vFLG,4)}, v{vL16}, {srd(rWS)}, s{sFT} offen sc1
s_branch L_chk2
""")
a.label("L_w2self")
a(f"""s_or_b32 s{sTMO}, s{sTMO}, 2
s_lshl_b32 s{sW2T}, s2, 19
s_add_u32 s{sW2T}, s{sW2T}, {PRIV_OFF}
s_lshl_b32 s{sF}, s{sWAVE}, 4
""")
a.label("L_selfw2")
frag_issue()
frag_finish(0)
a(f"""s_add_u32 s{sF}, s{sF}, 1
s_and_b32 s{sT0}, s{sF}, 15
s_cmp_lg_u32 s{sT0}, 0
s_cbranch_scc1 L_selfw2
s_lshl_b32 s{sT0}, s{sWAVE}, 15
s_add_u32 s{sW2T}, s{sW2T}, s{sT0}
s_mov_b32 s{sF}, 0
v_lshrrev_b32 v{vT2}, 5, v{vLANE}
v_bfe_u32 v{vT3}, v{vLANE}, 4, 1
v_lshl_add_u32 v{vT1}, v{vT3}, 4, v{vT2}
v_and_b32 v{vT3}, 15, v{vLANE}
v_lshlrev_b32 v{vT3}, 1, v{vT3}
v_lshl_add_u32 v{vT2}, v{vT1}, 13, v{vT3}
""")
a.label("L_selfw1")
a(f"""s_lshr_b32 s{sT0}, s{sF}, 2
s_lshl_b32 s{sT0}, s{sT0}, 14
s_and_b32 s{sT1}, s{sF}, 3
s_lshl_b32 s{sT1}, s{sT1}, 5
s_add_u32 s{sT0}, s{sT0}, s{sT1}
s_lshl_b32 s{sT1}, s{sWAVE}, 7
s_add_u32 s{sT0}, s{sT0}, s{sT1}
s_add_u32 s{sT1}, s{sT0}, 4096""")
for e in range(8):
    a(f"buffer_load_ushort v{vQ+e}, v{vT2}, {srd(rW1)}, s{sT0 if e<4 else sT1} offen offset:{(e&3)*1024}")
a(f"""s_lshl_b32 s{sT0}, s{sF}, 10
s_add_u32 s{sT0}, s{sT0}, s{sW2T}
s_add_u32 s{sT0}, s{sT0}, 262144
s_waitcnt vmcnt(0)""")
for e in range(4):
    a(f"v_lshl_or_b32 v{vQ+8+e}, v{vQ+2*e+1}, 16, v{vQ+2*e}")
a(f"""buffer_store_dwordx4 {vr(vQ+8,4)}, v{vL16}, {srd(rWS)}, s{sT0} offen sc1
s_add_u32 s{sF}, s{sF}, 1
s_cmp_lt_u32 s{sF}, 32
s_cbranch_scc1 L_selfw1
s_waitcnt vmcnt(0)
s_branch L_w2ok
""")

a.label("L_slow")
w1_tail(0)
vSA = vRING
vSD, vSS, vSB = vRING + 24, vRING + 25, vRING + 28
vHOFF, vLO = vRING + 26, vRING + 27
a(f"""v_mov_b32 v{vT0}, {OOB}
v_cmp_gt_u32 vcc, 32, v{vLANE}
s_mov_b32 s{sI}, 0
v_lshlrev_b32 v{vLO}, 2, v{vLANE}
v_cndmask_b32 v{vHOFF}, v{vT0}, v{vGOFF}, vcc
""")
for k in range(6):
    a(f"s_add_u32 s{sE+k}, s{sRW+k}, s{sBASE}")
a(f"""s_cmp_lt_u32 s{sWAVE}, 4
s_cselect_b32 s{sE+4}, s{sE+4}, -1
s_cselect_b32 s{sE+5}, s{sE+5}, -1""")
for r in range(24):
    a(f"v_mov_b32 v{vSA+r}, 0")
a.label("L_sloop")
a(f"""buffer_load_dword v{vSD}, v{vLO}, {srd(rDST)}, s{sI} offen
buffer_load_dword v{vSS}, v{vLO}, {srd(rSRC)}, s{sI} offen
s_waitcnt vmcnt(0)
v_lshlrev_b32 v{vSS}, 9, v{vSS}
""")
for n in range(6):
    l0, l1 = a.newlabel("L_s"), a.newlabel("L_s")
    a(f"v_cmp_eq_u32 {sp(sM0)}, s{sE+n}, v{vSD}")
    a.label(l0)
    a(f"""s_nop 3
    s_cmp_eq_u64 {sp(sM0)}, 0
    s_cbranch_scc1 {l1}
    s_ff1_i32_b64 s{sT1}, {sp(sM0)}
    s_bitset0_b64 {sp(sM0)}, s{sT1}
    v_readlane_b32 s{sT2}, v{vSS}, s{sT1}
    s_nop 4
    buffer_load_dwordx4 {vr(vSB,4)}, v{vHOFF}, {srd(rX)}, s{sT2} offen
    s_waitcnt vmcnt(0)
    v_mfma_f32_16x16x32_bf16 {vr(vSA+4*n,4)}, {vr(vASUM,4)}, {vr(vSB,4)}, {vr(vSA+4*n,4)}
    s_nop 7
    s_branch {l0}""")
    a.label(l1)
a(f"""s_add_u32 s{sI}, s{sI}, 256
s_cmp_lt_u32 s{sI}, 640000
s_cbranch_scc1 L_sloop
s_nop 7
""")
for n in range(6):
    for r in range(4):
        a(f"v_mov_b32 v{vGACC+r}, v{vSA+4*n+r}")
    a(f"s_call_b64 {sp(sRET)}, L_fin")
a("s_endpgm")

hdr = open("cdna_kernels/%s.s.ref" % NAME).read().split("; Override launch")[0]
out = hdr + f"""; @launch grid=({NB},1,1) block=(512,1,1) lds={LDS_BYTES}
.amdgcn_target "amdgcn-amd-amdhsa--gfx950"
.text
.globl {NAME}_kernel
.p2align 8
.type {NAME}_kernel,@function
{NAME}_kernel:
""" + "\n".join(a.lines) + f"""
.section .rodata,"a"
.p2align 6
.amdhsa_kernel {NAME}_kernel
  .amdhsa_next_free_vgpr {NVGPR}
  .amdhsa_next_free_sgpr 102
  .amdhsa_accum_offset {NVGPR}
  .amdhsa_group_segment_fixed_size 0
  .amdhsa_kernarg_size 88
  .amdhsa_user_sgpr_count 2
  .amdhsa_user_sgpr_kernarg_segment_ptr 1
  .amdhsa_system_sgpr_workgroup_id_x 1
.end_amdhsa_kernel
"""
dst = [x for x in sys.argv[1:] if not x.startswith("--")]
open(dst[0] if dst else f"cdna_kernels/{NAME}.s", "w").write(out)
print("stamps:", stamp_idx[0], " ".join(f"{i}:{n}" for i, n in enumerate(stamp_names)))
```

```python
import sys

NAME = "gather_scatter__isomorphism_gin_2__graph"
NB = 250
R = 40
EPP = 1280
NP = 125
CAP = 16
TBL_BLOCK = 8192
NH = 128
HWV = 3
HB = 8
EPOCH_OFF = 0
W2T_OFF = 0x10000
FLG_OFF = 0x1000
TBL_OFF = 0x100000
PRIV_OFF = 0x1000000
WS_BYTES = PRIV_OFF + NB * 524288
TAGC = [0x000, 0x555, 0xAAA, 0x3C3]
FLGM = [0x9E3779B1, 0x85EBCA77]
EMPTY = 0xfc000
OVFM = 0xf8000

CNT_OFF = 0
FLAG_OFF = 256
DONE_OFF = 264
B1F_OFF = 512
B2F_OFF = 2560
BK_OFF = 3584
H_OFF = BK_OFF + 10240
H_STR = 528
LIST_OFF = H_OFF + 40 * H_STR
H1_OFF = LIST_OFF + 8192
H1_STR = 1040
BT_OFF = H1_OFF
BC_OFF = BT_OFF + 16384
NSL = 3
H1T = {0: 0, 2: 16 * H1_STR, 1: 24 * H1_STR}
ST_OFF = BC_OFF + 1024
LDS_BYTES = ST_OFF + 8 * NSL * 4096
assert H1_OFF + 48 * H1_STR <= LDS_BYTES <= 163840 and ST_OFF % 128 == 0

OOB = 0x7F000000
STAMPS = "--stamps" in sys.argv
SPIN_MAX = 100000
RD = 4


def opt(name, default):
    for x in sys.argv:
        if x.startswith("--" + name + "="):
            return int(x.split("=")[1])
    return default


PSLEEP = opt("psleep", 4)
OWNPOS = opt("ownpos", 4)
POLLK = opt("pollk", 2)
CHKK = opt("chkk", 3)
W1T = opt("w1t", 1)
E1 = opt("e1", 10)
G1LD = opt("g1ld", 1)
HINT = opt("hint", 1)
YPH = 0
PREY = opt("prey", 4)
TPRIO = opt("tprio", 1)
CPF = opt("cpf", 1)
W1TAIL = opt("w1tail", 1)
TM = opt("tm", 1)
FS = opt("fs", 1)
W1IN = opt("w1in", 1)
OPOL = opt("opol", 2)
TT = opt("tt", 0)
KE = opt("ke", 6)
STW = opt("stw", 8)
MID = opt("mid", 0)
YG0 = opt("yg0", 0)
YPRE = opt("ypre", 3)


class Asm:
    def __init__(self):
        self.lines = []
        self.n = 0

    def __call__(self, s):
        for l in s.strip().split("\n"):
            self.lines.append("    " + l.strip())

    def label(self, l):
        self.lines.append(l + ":")

    def newlabel(self, p="L"):
        self.n += 1
        return f"{p}_{self.n}"


a = Asm()

sTMO = 3
sTAG = 4
sX, sSRC, sDST, sEPS, sW1, sB1, sW2, sB2 = 8, 10, 12, 14, 16, 18, 20, 22
sOUT, sDBG, sWS = 24, 26, 28
sEP, sKS = 30, 31
rX, rSRC, rDST, rW1, rW2, rOUT, rWS = 32, 36, 40, 44, 48, 52, 56
sWAVE = 60
sROT = 61
sSTG = 62
sT0, sT1, sT2, sT3 = 63, 64, 65, 66
sW2T = 67
sM0, sM1, sM2, sM3 = 68, 70, 72, 74
sMASK, sMASK2 = 76, 78
sREM, sI, sNODE, sPC, sEPSF, sF = 80, 81, 82, 83, 86, 87
sRET = 88
sPM = 90
sEXM = 92
sSTAMP = 94
vST0 = 31
sBASE = 96
sW2K = 97
sST0 = 94
sFT = 100
sCTR = 101
sG0 = 84
sPR = 84
sHLP = 93
sRS = 92
sPH = 98
sNGT = 29
sTSEL = 28
sRET2 = 92
sSELLO, sSELHI = 85, 99
sE = 8
sSB = 14
sROWT = 20
sRW = 22


def srd(r):
    return f"s[{r}:{r+3}]"


def sp(r):
    return f"s[{r}:{r+1}]"


def vr(r, n):
    return f"v[{r}:{r+n-1}]"


vLANE, vG, vN = 1, 2, 3
vOUTA, vFLG = 0, 124
vT0, vT1, vT2, vT3 = 4, 5, 6, 7
vASUM, vGACC, vENT = 8, 12, 16
vGOFF, vLADDR, vHW, vG1B, vH1W, vG2B, vSTV, vT4, vL16, vBIA, vOWN = 20, 21, 22, 23, 24, 25, 26, 27, 28, 29, 30
vRING = 32
vW = 128
NVGPR = 256
vOA, vOB = 122, 123
vTR = 124
vT16 = 120
vU = 121
vOR = 96
vBL = 108
vQ = 80
vPA = 119

stamp_idx = [1]
stamp_names = ["entry"]


def stamp(name="s", idx=None):
    if not STAMPS:
        return None
    if idx is None:
        idx = stamp_idx[0]
        stamp_idx[0] += 1
        stamp_names.append(name)
    a(f"""{'s_memtime' if '--cyc' in sys.argv else 's_memrealtime'} {sp(sSTAMP)}
    s_waitcnt lgkmcnt(0)
    v_writelane_b32 v{vSTV}, s{sSTAMP}, {idx}""")
    return idx


def mksrd(r, p, size):
    a(f"""s_mov_b32 s{r}, s{p}
    s_and_b32 s{r+1}, s{p+1}, 0xffff
    s_mov_b32 s{r+2}, {size}
    s_mov_b32 s{r+3}, 0x00020000""")


def cpf_block():
    a(f"""s_cmp_lg_u32 s{sWAVE}, 7
    s_cbranch_scc1 L_nocpf
    s_getpc_b64 {sp(sM1)}""")
    a.label("L_cpf")
    a(f"""v_lshlrev_b32 v{vT1}, 7, v{vLANE}
    global_load_dword v{vOWN+1}, v{vT1}, {sp(sM1)}
    v_add_u32 v{vT1}, 8192, v{vT1}
    v_min_u32 v{vT1}, L_end-L_cpf, v{vT1}
    s_mov_b32 exec_hi, 0
    global_load_dword v{vOWN+1}, v{vT1}, {sp(sM1)}
    s_mov_b64 exec, -1""")
    a.label("L_nocpf")


a(f"""s_cmp_ge_u32 s2, {NB}
s_cbranch_scc1 L_end""")
if STAMPS:
    a(f"s_memrealtime {sp(sST0)}\nv_mov_b32 v{vSTV}, 0")
a(f"""s_load_dwordx16 s[8:23], s[0:1], 0
s_load_dwordx4 s[24:27], s[0:1], 64
s_load_dwordx2 s[28:29], s[0:1], 80
v_and_b32 v{vLANE}, 63, v0
v_lshrrev_b32 v{vT0}, 6, v0
v_lshrrev_b32 v{vG}, 4, v{vLANE}
v_readfirstlane_b32 s{sWAVE}, v{vT0}
v_and_b32 v{vN}, 15, v0
s_mul_i32 s{sBASE}, s2, {R}
""")
if CPF == 2:
    cpf_block()
a(f"""v_lshlrev_b32 v{vL16}, 4, v{vLANE}
v_lshlrev_b32 v{vT16}, 4, v0
v_mov_b32 v{vRING}, {EMPTY}
v_mov_b32 v{vRING+1}, {EMPTY}
v_mov_b32 v{vRING+2}, {EMPTY}
v_mov_b32 v{vRING+3}, {EMPTY}
ds_write_b128 v{vT16}, {vr(vRING,4)} offset:{BT_OFF}
ds_write_b128 v{vT16}, {vr(vRING,4)} offset:{BT_OFF+8192}
v_mov_b32 v{vENT}, {OOB}
v_mov_b32 v{vENT+1}, {OOB}
v_mov_b32 v{vENT+2}, {OOB}
v_mov_b32 v{vENT+3}, {OOB}
ds_write_b128 v{vT16}, {vr(vENT,4)} offset:{BK_OFF}
v_mov_b32 v{vT1}, 0
v_lshlrev_b32 v{vT2}, 2, v0
v_cmp_gt_u32 vcc, 256, v0
s_and_saveexec_b64 {sp(sM0)}, vcc
ds_write_b32 v{vT2}, v{vT1} offset:{BC_OFF}
v_cmp_gt_u32 vcc, 128, v0
s_and_b64 exec, exec, vcc
ds_write_b128 v{vT16}, {vr(vENT,4)} offset:{BK_OFF+8192}
ds_write_b32 v{vT2}, v{vT1} offset:{CNT_OFF}
s_mov_b64 exec, {sp(sM0)}
s_lshr_b32 s{sPR}, s2, 4
s_lshl_b32 s{sPR}, s{sPR}, 3
s_and_b32 s{sT0}, s2, 7
s_add_u32 s{sPR}, s{sPR}, s{sT0}
s_lshl_b32 s{sF}, s{sPR}, 1
s_lshr_b32 s{sT0}, s{sWAVE}, 2
s_add_u32 s{sF}, s{sF}, s{sT0}
s_and_b32 s{sT0}, s{sWAVE}, 3
s_cmp_eq_u32 s{sT0}, 3
s_cselect_b32 s{sHLP}, 1, 0
s_cmp_lt_u32 s{sF}, 128
s_cselect_b32 s{sHLP}, s{sHLP}, 0
s_bitcmp1_b32 s2, 3
s_cselect_b32 s{sHLP}, s{sHLP}, 0
s_cselect_b32 s{sPR}, 255, s{sPR}
s_mul_i32 s{sT0}, s{sPR}, {EPP*4}
s_mul_i32 s{sT1}, s{sWAVE}, 640
s_add_u32 s{sT0}, s{sT0}, s{sT1}
v_lshlrev_b32 v{vT2}, 2, v{vLANE}
s_lshr_b32 s{sROT}, s2, 3
s_mov_b32 s{rSRC+2}, 640000
s_mov_b32 s{rSRC+3}, 0x00020000
s_mov_b32 s{rDST+2}, 640000
s_mov_b32 s{rDST+3}, 0x00020000
s_waitcnt lgkmcnt(0)
s_mov_b32 s{rDST}, s{sDST}
s_and_b32 s{rDST+1}, s{sDST+1}, 0xffff
s_mov_b32 s{rSRC}, s{sSRC}
s_and_b32 s{rSRC+1}, s{sSRC+1}, 0xffff
""")
if STAMPS:
    a(f"v_writelane_b32 v{vSTV}, s{sST0}, 0")
vD, vS, vBI, vSL = 32, 36, 40, 44
a(f"""s_cmp_ge_u32 s{sPR}, {NP}
s_cbranch_scc1 L_noedge
buffer_load_dword v{vD}, v{vT2}, {srd(rDST)}, s{sT0} offen
buffer_load_dword v{vD+1}, v{vT2}, {srd(rDST)}, s{sT0} offen offset:256
buffer_load_dword v{vS}, v{vT2}, {srd(rSRC)}, s{sT0} offen
buffer_load_dword v{vS+1}, v{vT2}, {srd(rSRC)}, s{sT0} offen offset:256
s_mov_b32 exec_hi, 0
buffer_load_dword v{vD+2}, v{vT2}, {srd(rDST)}, s{sT0} offen offset:512
buffer_load_dword v{vS+2}, v{vT2}, {srd(rSRC)}, s{sT0} offen offset:512
s_mov_b64 exec, -1
""")
a.label("L_noedge")
a(f"""s_load_dword s{sEP}, {sp(sWS)}, {EPOCH_OFF}
s_load_dword s{sEPSF}, {sp(sEPS)}, 0
""")
mksrd(rW1, sW1, 262144)
mksrd(rX, sX, 5120000)
a("s_barrier")
if CPF == 1:
    cpf_block()
NEARLY = 0
if TT:
    a(f"""s_lshl_b32 s{sT0}, s2, 14
    s_lshl_b32 s{sT1}, s{sWAVE}, 11
    s_add_u32 s{sT0}, s{sT0}, s{sT1}
    s_add_u32 s{sT0}, s{sT0}, {TBL_OFF}
    v_lshlrev_b32 v{vT1}, 7, v{vLANE}
    v_add_u32 v{vT1}, s{sT0}, v{vT1}
    s_mov_b64 exec, 0xffff
    global_load_dword v{vOWN}, v{vT1}, {sp(sWS)} sc1
    s_mov_b64 exec, -1""")
    NEARLY += 1
if W1T:
    a(f"""s_lshl_b32 s{sT0}, s{sROT}, 3
    s_add_u32 s{sT0}, s{sT0}, s{sWAVE}
    s_lshl_b32 s{sT0}, s{sT0}, 10
    v_lshlrev_b32 v{vT1}, 7, v{vLANE}
    s_mov_b64 exec, 0xff
    buffer_load_dword v{vOWN}, v{vT1}, {srd(rW1)}, s{sT0} offen
    s_mov_b64 exec, -1""")
    NEARLY += 1


def own_loads():
    a(f"""s_mul_i32 s{sT0}, s{sWAVE}, 5
    s_add_u32 s{sT0}, s{sT0}, s{sBASE}
    s_lshl_b32 s{sT0}, s{sT0}, 9
    buffer_load_dwordx4 {vr(vOR,4)}, v{vL16}, {srd(rX)}, s{sT0} offen
    buffer_load_dwordx4 {vr(vOR+4,4)}, v{vL16}, {srd(rX)}, s{sT0} offen offset:1024
    s_mov_b32 exec_hi, 0
    buffer_load_dwordx4 {vr(vOR+8,4)}, v{vL16}, {srd(rX)}, s{sT0} offen offset:2048
    s_mov_b64 exec, -1
    """)


def own_store():
    a(f"""v_lshrrev_b32 v{vT1}, 5, v{vLANE}
    s_mul_i32 s{sT0}, s{sWAVE}, 5
    v_add_u32 v{vT1}, s{sT0}, v{vT1}
    v_mul_u32_u24 v{vT1}, {H_STR}, v{vT1}
    v_add_u32 v{vT1}, v{vT1}, v{vGOFF}
    ds_write_b128 v{vT1}, {vr(vOR,4)} offset:{H_OFF}
    ds_write_b128 v{vT1}, {vr(vOR+4,4)} offset:{H_OFF+2*H_STR}
    s_mov_b32 exec_hi, 0
    ds_write_b128 v{vT1}, {vr(vOR+8,4)} offset:{H_OFF+4*H_STR}
    s_mov_b64 exec, -1""")


if OWNPOS == 0:
    own_loads()
    NEARLY += 3
a(f"""s_sub_u32 s{sT2}, s{sWAVE}, 1
s_cmp_ge_u32 s{sT2}, 2
s_cbranch_scc1 L_nbl
s_cmp_eq_u32 s{sT2}, 0
s_cselect_b32 s{sM0}, s{sB1}, s{sB2}
s_cselect_b32 s{sM0+1}, s{sB1+1}, s{sB2+1}
s_cselect_b32 exec_hi, -1, 0
global_load_dwordx4 {vr(vBL,4)}, v{vL16}, {sp(sM0)}
s_mov_b64 exec, -1
""")

def frag_issue():
    a(f"""v_lshrrev_b32 v{vT2}, 5, v{vLANE}
    v_bfe_u32 v{vT3}, v{vLANE}, 4, 1
    v_lshl_add_u32 v{vT1}, v{vT3}, 4, v{vT2}
    s_and_b32 s{sT1}, s{sF}, 7
    s_lshl_b32 s{sT1}, s{sT1}, 1
    s_and_b32 s{sT0}, s{sF}, 8
    s_lshl_b32 s{sT0}, s{sT0}, 2
    s_add_u32 s{sT1}, s{sT1}, s{sT0}
    v_add_u32 v{vT1}, s{sT1}, v{vT1}
    v_lshrrev_b32 v{vT2}, 2, v{vT1}
    v_and_b32 v{vT1}, 3, v{vT1}
    v_lshlrev_b32 v{vT2}, 14, v{vT2}
    v_lshl_add_u32 v{vT2}, v{vT1}, 11, v{vT2}
    v_and_b32 v{vT1}, 15, v{vLANE}
    v_lshl_add_u32 v{vT2}, v{vT1}, 2, v{vT2}
    s_lshr_b32 s{sT0}, s{sF}, 4
    s_lshl_b32 s{sT0}, s{sT0}, 6
    s_add_u32 s{sT1}, s{sT0}, 8192
    """)
    for e in range(8):
        a(f"buffer_load_dword v{vQ+e}, v{vT2}, {srd(rW2)}, s{sT0 if e<4 else sT1} offen offset:{(e&3)*512}")


def frag_finish(cnt):
    a(f"""s_lshl_b32 s{sT0}, s{sF}, 11
    s_add_u32 s{sT0}, s{sT0}, s{sW2T}
    s_mov_b32 s{sSELLO}, 0x05040100
    s_mov_b32 s{sSELHI}, 0x07060302
    s_waitcnt vmcnt({cnt})
    """)
    for e in range(4):
        a(f"""v_perm_b32 v{vQ+8+e}, v{vQ+2*e+1}, v{vQ+2*e}, s{sSELLO}
        v_perm_b32 v{vQ+12+e}, v{vQ+2*e+1}, v{vQ+2*e}, s{sSELHI}""")
    a(f"""buffer_store_dwordx4 {vr(vQ+8,4)}, v{vL16}, {srd(rWS)}, s{sT0} offen sc1
    buffer_store_dwordx4 {vr(vQ+12,4)}, v{vL16}, {srd(rWS)}, s{sT0} offen offset:1024 sc1
    s_nop 1""")


a.label("L_nbl")
mksrd(rW2, sW2, 262144)
a(f"""s_cmp_eq_u32 s{sHLP}, 0
s_cbranch_scc1 L_nohelp0
""")
frag_issue()
a.label("L_nohelp0")
mksrd(rWS, sWS, WS_BYTES)
mksrd(rOUT, sOUT, 5120000)
a(f"""s_mov_b32 s{sW2T}, {W2T_OFF}
v_lshrrev_b32 v{vT1}, 1, v{vG}
v_and_b32 v{vT2}, 1, v{vG}
v_lshl_add_u32 v{vU}, v{vT2}, 4, v{vT1}
s_lshl_b32 s{sT0}, s{sWAVE}, 7
s_mul_i32 s{sSTG}, s{sWAVE}, {NSL*4096}
s_add_u32 s{sSTG}, s{sSTG}, {ST_OFF}
v_lshrrev_b32 v{vT1}, 3, v{vLANE}
v_and_b32 v{vT3}, 2, v{vT1}
v_and_b32 v{vT4}, 7, v{vLANE}
v_xor_b32 v{vT4}, v{vT4}, v{vT3}
v_lshlrev_b32 v{vOA}, 10, v{vT1}
v_add_u32 v{vOA}, s{sT0}, v{vOA}
v_xor_b32 v{vT3}, 4, v{vT4}
v_lshl_add_u32 v{vOB}, v{vT3}, 4, v{vOA}
v_add_u32 v{vOB}, 0x20000, v{vOB}
v_lshl_add_u32 v{vOA}, v{vT4}, 4, v{vOA}
v_and_b32 v{vGOFF}, 31, v{vLANE}
v_lshlrev_b32 v{vGOFF}, 4, v{vGOFF}
""")
a(f"""v_lshrrev_b32 v{vT1}, 1, v{vG}
v_lshrrev_b32 v{vLADDR}, 5, v{vLANE}
v_lshlrev_b32 v{vLADDR}, 4, v{vLADDR}
s_lshl_b32 s{sT0}, s{sWAVE}, 10
v_add_u32 v{vLADDR}, s{sT0}, v{vLADDR}
v_lshl_add_u32 v{vHW}, v{vT1}, 4, v{vN}
v_lshlrev_b32 v{vHW}, 4, v{vHW}
v_lshl_add_u32 v{vHW}, v{vT2}, 3, v{vHW}
v_mul_u32_u24 v{vG1B}, {H_STR}, v{vN}
v_lshl_add_u32 v{vG1B}, v{vU}, 4, v{vG1B}
v_mul_u32_u24 v{vT3}, {H1_STR}, v{vN}
v_add_u32 v{vT3}, {H1_OFF}, v{vT3}
v_lshl_add_u32 v{vG2B}, v{vU}, 4, v{vT3}
s_lshl_b32 s{sT0}, s{sWAVE}, 7
v_lshl_add_u32 v{vH1W}, v{vG}, 4, v{vT3}
v_add_u32 v{vH1W}, s{sT0}, v{vH1W}
s_lshl_b32 s{sT0}, s{sWAVE}, 8
v_lshlrev_b32 v{vBIA}, 4, v{vG}
v_add_u32 v{vBIA}, s{sT0}, v{vBIA}
v_lshrrev_b32 v{vT1}, 2, v{vN}
v_and_b32 v{vT3}, 2, v{vT1}
v_lshl_add_u32 v{vT3}, v{vT2}, 2, v{vT3}
v_lshlrev_b32 v{vT4}, 10, v{vG}
v_lshl_add_u32 v{vT4}, v{vT1}, 7, v{vT4}
v_and_b32 v{vT1}, 3, v{vN}
v_lshl_add_u32 v{vT4}, v{vT1}, 3, v{vT4}
v_add_u32 v{vT4}, s{sSTG}, v{vT4}
""")
for T in range(4):
    a(f"""v_xor_b32 v{vT1}, {2*T}, v{vT3}
    v_lshl_add_u32 v{vTR+T}, v{vT1}, 4, v{vT4}""")
a(f"""v_mov_b32 v{vT3}, 0x3f80
v_and_b32 v{vT0}, 1, v{vN}
v_lshlrev_b32 v{vT0}, 4, v{vT0}
v_lshlrev_b32 v{vT3}, v{vT0}, v{vT3}
v_lshlrev_b32 v{vT1}, 2, v{vT2}
v_lshrrev_b32 v{vT0}, 1, v{vN}
v_sub_u32 v{vT0}, v{vT0}, v{vT1}
""")
for r in range(4):
    a(f"""v_cmp_eq_u32 vcc, {r}, v{vT0}
    v_mov_b32 v{vGACC+r}, 0
    s_nop 0
    v_cndmask_b32 v{vASUM+r}, 0, v{vT3}, vcc""")
a(f"""v_cmp_gt_u32 vcc, 500, v0
s_mov_b64 {sp(sPM)}, vcc
s_lshl_b32 s{sFT}, s2, 13
s_add_u32 s{sFT}, s{sFT}, {TBL_OFF}
s_cmp_ge_u32 s{sPR}, {NP}
s_cbranch_scc1 L_stream
s_lshl_b32 s{sT0}, s{sPR}, 6
s_add_u32 s{sT0}, s{sT0}, {TBL_OFF}
v_lshrrev_b32 v{vT2}, 2, v0
v_lshlrev_b32 v{vT3}, 2, v{vT2}
v_and_b32 v{vT1}, 3, v0
v_lshlrev_b32 v{vT1}, 4, v{vT1}
v_lshl_add_u32 v{vT2}, v{vT2}, 13, v{vT1}
v_mov_b32 v{vT4}, 1
s_setprio 3
s_sub_u32 s{sT2}, s{sWAVE}, 1
s_cmp_lt_u32 s{sT2}, 2
s_cbranch_scc1 L_ew1
s_waitcnt vmcnt({NEARLY})
""")
a.label("L_ew1")
a(f"s_waitcnt vmcnt({NEARLY+1})")
stamp("edges")


def mktags():
    a(f"s_add_u32 s{sEP}, s{sEP}, 1")
    for i in range(4):
        a(f"s_add_u32 s{sTAG+i}, s{sEP}, {TAGC[i]}\ns_lshl_b32 s{sTAG+i}, s{sTAG+i}, 20")


for i in range(3):
    if i == 2:
        a("s_mov_b32 exec_hi, 0")
    a(f"""v_mul_u32_u24 v{vBI+i}, 0xcccd, v{vD+i}
    v_lshrrev_b32 v{vBI+i}, 21, v{vBI+i}
    v_lshlrev_b32 v{vT1}, 2, v{vBI+i}
    ds_add_rtn_u32 v{vSL+i}, v{vT1}, v{vT4} offset:{BC_OFF}""")
a("s_mov_b64 exec, -1")
for i in range(3):
    a(f"""v_mul_u32_u24 v{vT1}, {R}, v{vBI+i}
    v_sub_u32 v{vT1}, v{vD+i}, v{vT1}
    v_lshl_or_b32 v{vS+i}, v{vT1}, 14, v{vS+i}
    v_lshlrev_b32 v{vBI+i}, 6, v{vBI+i}""")
a("s_waitcnt lgkmcnt(0)")
for i in range(3):
    if i == 2:
        a("s_mov_b32 exec_hi, 0")
    a(f"""v_min_u32 v{vT1}, {CAP-1}, v{vSL+i}
    v_lshl_add_u32 v{vT1}, v{vT1}, 2, v{vBI+i}
    ds_write_b32 v{vT1}, v{vS+i} offset:{BT_OFF}""")
a("s_mov_b64 exec, -1")
mktags()
a(f"""v_mov_b32 v{vT1}, {OVFM}
s_waitcnt lgkmcnt(0)
s_barrier""")
NT = 64 * STW
NK = 1024 // NT
WO = 64
if STW < 8:
    a(f"s_cmp_ge_u32 s{sWAVE}, {STW}\ns_cbranch_scc1 L_nostore")
for k in range(NK):
    a(f"""ds_read_b128 {vr((32 if NK <= 4 else 48)+4*k,4)}, v{vT16} offset:{BT_OFF+NT*16*k}""")
    if NK > 4 and k == 3:
        pass
for k in range(NK):
    a(f"ds_read_b32 v{(112 if NK <= 4 else 40)+k}, v{vT3} offset:{BC_OFF+NT*k}")
a("s_waitcnt lgkmcnt(0)")
for k in range(NK):
    vE = (32 if NK <= 4 else 48) + 4 * k
    vC = (112 if NK <= 4 else 40) + k
    a(f"""v_cmp_lt_u32 vcc, {CAP}, v{vC}
    v_or_b32 v{vE+1}, s{sTAG+1}, v{vE+1}
    v_or_b32 v{vE+2}, s{sTAG+2}, v{vE+2}
    v_cndmask_b32 v{vE}, v{vE}, v{vT1}, vcc
    v_or_b32 v{vE+3}, s{sTAG+3}, v{vE+3}
    v_or_b32 v{vE}, s{sTAG}, v{vE}""")
    if k == NK - 1:
        a(f"""v_cmp_gt_u32 vcc, {1000 - NT*(NK-1)}, v0
        s_mov_b64 exec, vcc""")
    a(f"""buffer_store_dwordx4 {vr(vE,4)}, v{vT2}, {srd(rWS)}, s{sT0} offen sc1
    s_add_u32 s{sT0}, s{sT0}, {(NT//4)*TBL_BLOCK}""")
a("s_nop 1")
a.label("L_nostore")
a("s_mov_b64 exec, -1\ns_setprio 0")
stamp("published")
a.label("L_stream")


ops = []


def younger(tag):
    i = len(ops) - 1 - ops[::-1].index(tag)
    return len(ops) - 1 - i


def dma_w1(ks):
    a(f"""s_add_u32 s{sKS}, s{sROT}, {ks}
    s_and_b32 s{sKS}, s{sKS}, 7
    s_lshl_b32 s{sKS}, s{sKS}, 14
    s_add_u32 s{sT3}, s{sKS}, 8192""")
    for g in range(4):
        a(f"""s_add_u32 m0, s{sSTG}, {(ks%NSL)*4096+g*1024}
        s_nop 0
        buffer_load_dwordx4 v{vOB if g&1 else vOA}, {srd(rW1)}, s{sT3 if g>>1 else sKS} offen lds""")
        ops.append(f"d{ks}")


def tr_w1(ks):
    for T in range(4):
        for jh in range(2):
            d = vW + ks * 16 + T * 4 + jh * 2
            a(f"ds_read_b64_tr_b16 {vr(d,2)}, v{vTR+T} offset:{(ks%NSL)*4096+jh*512}")


vE = vRING + 8
vE2 = vRING + 24
vLD, vSL, vAD = vRING + 12, vRING + 16, vRING + 20
masks = [sM0, sM1, sM2, sM3]


def poll_loads():
    a(f"buffer_load_dwordx4 {vr(vE,4)}, v{vT16}, {srd(rWS)}, s{sFT} offen sc1")


def poll_check_and_insert():
    a(f"""s_cmp_lt_u32 s{sPR}, {NP}
    s_cbranch_scc1 L_hastag""")
    mktags()
    a.label("L_hastag")
    a(f"""s_mov_b32 s{sPC}, 0
    s_mov_b32 s{sT2}, 0x100000
    v_mov_b32 v{vT4}, 1
    s_mov_b64 {sp(sMASK)}, 0
    s_mov_b32 s{sRS}, 0
    s_mov_b64 exec, {sp(sPM)}
    s_waitcnt vmcnt({younger('p')})""")
    a.label("L_pchk")
    for i in range(4):
        a(f"v_xor_b32 v{vE+i}, s{sTAG+i}, v{vE+i}")
    a(f"""v_or3_b32 v{vT1}, v{vE}, v{vE+1}, v{vE+2}
    v_or_b32 v{vT1}, v{vT1}, v{vE+3}
    v_cmp_le_u32 vcc, s{sT2}, v{vT1}
    s_and_b64 exec, exec, vcc
    s_cbranch_execnz L_pmiss
    """)
    a.label("L_polled")
    a(f"""s_mov_b64 exec, -1
    v_cmp_eq_u32 vcc, {OVFM}, v{vE}
    s_cbranch_vccnz L_setovf
    """)
    a.label("L_noovf")
    stamp("polled")
    a.label("L_ins")
    for i in range(4):
        a(f"""v_bfe_u32 v{vLD+i}, v{vE+i}, 14, 6
        v_cmp_gt_u32 {sp(masks[i])}, {R}, v{vLD+i}
        v_lshlrev_b32 v{vAD+i}, 2, v{vLD+i}""")
    for i in range(4):
        a(f"""s_mov_b64 exec, {sp(masks[i])}
        ds_add_rtn_u32 v{vSL+i}, v{vAD+i}, v{vT4} offset:{CNT_OFF}""")
    a("s_mov_b64 exec, -1")
    for i in range(4):
        a(f"""v_and_b32 v{vE+i}, 0x3fff, v{vE+i}
        v_lshlrev_b32 v{vE+i}, 9, v{vE+i}
        v_lshlrev_b32 v{vAD+i}, 8, v{vLD+i}""")
    a("s_waitcnt lgkmcnt(0)")
    for i in range(4):
        a(f"""v_min_u32 v{vSL+i}, 63, v{vSL+i}
        v_lshl_add_u32 v{vAD+i}, v{vSL+i}, 2, v{vAD+i}""")
    for i in range(4):
        a(f"""s_mov_b64 exec, {sp(masks[i])}
        ds_write_b32 v{vAD+i}, v{vE+i} offset:{BK_OFF}""")
    a(f"""s_mov_b64 exec, -1
    s_cmp_lg_u64 {sp(sMASK)}, 0
    s_cbranch_scc1 L_rescan
    """)


def is_helper(lab):
    a(f"""s_mov_b32 s{sT0}, s{sF}
    s_cmp_eq_u32 s{sHLP}, 0
    s_cbranch_scc1 {lab}""")


a("s_setprio 2")
for ks in range(NSL):
    dma_w1(ks)
    if OWNPOS >= 3 and ks == OWNPOS - 3:
        own_loads()
        ops.extend(["o"] * 3)
for i in range(4):
    a(f"v_mov_b32 v{vE+i}, {EMPTY}")
for ks in range(KE - NSL):
    a(f"s_waitcnt vmcnt({younger(f'd{ks}')})")
    tr_w1(ks)
    if ks == 0:
        if OWNPOS < 3:
            own_store()
        a(f"""s_sub_u32 s{sT2}, s{sWAVE}, 1
        s_cmp_ge_u32 s{sT2}, 2
        s_cbranch_scc1 L_nbias
        v_lshlrev_b32 v{vT1}, 5, v{vLANE}
        s_cmp_eq_u32 s{sT2}, 1
        s_cbranch_scc1 L_bias2
        """)
        for i in range(4):
            a(f"""v_lshlrev_b32 v{64+2*i}, 16, v{vBL+i}
            v_and_b32 v{64+2*i+1}, 0xffff0000, v{vBL+i}""")
        a(f"""ds_write_b128 v{vT1}, {vr(64,4)} offset:{B1F_OFF}
        ds_write_b128 v{vT1}, {vr(68,4)} offset:{B1F_OFF+16}
        s_branch L_nbias
        """)
        a.label("L_bias2")
        for i in range(4):
            a(f"""v_lshlrev_b32 v{64+i}, 16, v{vBL+i}
            v_and_b32 v{68+i}, 0xffff0000, v{vBL+i}""")
        a(f"""s_mov_b32 exec_hi, 0
        ds_write_b128 v{vT1}, {vr(64,4)} offset:{B2F_OFF}
        ds_write_b128 v{vT1}, {vr(68,4)} offset:{B2F_OFF+16}
        s_mov_b64 exec, -1
        """)
        a.label("L_nbias")
    if ks in (1, 3):
        a(f"s_setprio {1 - ks//2}")
    a("s_waitcnt lgkmcnt(0)")
    dma_w1(ks + NSL)
    if ks == 0:
        is_helper("L_nohelp")
        frag_finish(63)
        a.label("L_nohelp")
        if KE < 8:
            a(f"""s_sub_u32 s{sT0}, s2, 136
            s_and_b32 s{sT1}, s{sT0}, 0xffffffc7
            s_cbranch_scc1 L_nodump
            s_and_b32 s{sT0}, s{sROT}, 7
            s_lshl_b32 s{sT0}, s{sT0}, 12
            s_lshl_b32 s{sT1}, s{sWAVE}, 15
            s_add_u32 s{sT0}, s{sT0}, s{sT1}
            s_add_u32 s{sT0}, s{sT0}, {W2T_OFF + 262144}""")
            for f in range(4):
                a(f"buffer_store_dwordx4 {vr(vW+4*f,4)}, v{vL16}, {srd(rWS)}, s{sT0} offen offset:{f*1024} sc1")
            a.label("L_nodump")
    if ks + 1 == POLLK:
        a(f"s_mov_b64 exec, {sp(sPM)}")
        poll_loads()
        a("s_mov_b64 exec, -1")
        ops.extend(["p"])
        stamp("pollissued")
    if ks + 1 == CHKK:
        poll_check_and_insert()
        if OWNPOS >= 3:
            own_store()
        a(f"""s_sub_u32 s{sT0}, s2, 136
        s_and_b32 s{sT1}, s{sT0}, 0xffffffc7
        s_cbranch_scc1 L_nodf
        s_and_b32 s{sT0}, s{sROT}, 7
        s_lshl_b32 s{sT0}, s{sT0}, 3
        s_add_u32 s{sT0}, s{sT0}, s{sWAVE}
        s_add_u32 s{sT0}, s{sT0}, 128
        s_branch L_doflag""")
        a.label("L_nodf")
        is_helper("L_noflag")
        a.label("L_doflag")
        a(f"""s_mul_i32 s{sT1}, s{sEP}, {FLGM[0]}
        v_mov_b32 v{vT2}, s{sT1}
        s_lshl_b32 s{sT0}, s{sT0}, 2
        s_add_u32 s{sT0}, s{sT0}, {FLG_OFF}
        v_mov_b32 v{vT1}, 0
        s_mov_b64 exec, 1
        buffer_store_dword v{vT2}, v{vT1}, {srd(rWS)}, s{sT0} offen sc1
        s_mov_b64 exec, -1
        """)
        a.label("L_noflag")
if not W1TAIL:
    for ks in range(KE - NSL, KE):
        a(f"s_waitcnt vmcnt({younger(f'd{ks}')})")
        tr_w1(ks)
stamp("w1done")

a(f"""s_lshl_b32 s{sEPSF}, s{sEPSF}, 16
v_add_f32 v{vT0}, s{sEPSF}, 1.0
v_cvt_pk_bf16_f32 v{vT0}, v{vT0}, v{vT0}
v_lshlrev_b32 v{vT0}, 16, v{vT0}
v_add_u32 v{vT3}, s{sBASE}, v{vN}
v_readfirstlane_b32 s{sEPSF}, v{vT0}
v_lshlrev_b32 v{vT3}, 9, v{vT3}
v_lshl_add_u32 v{vT3}, v{vG}, 4, v{vT3}
s_lshl_b32 s{sT0}, s{sWAVE}, 6
v_add_u32 v{vOUTA}, s{sT0}, v{vT3}
v_lshlrev_b32 v{vT0}, 2, v{vLANE}
v_mov_b32 v{vT2}, 0
s_mov_b32 s{sFT}, {FLG_OFF}
s_mov_b32 s{sI}, 0
s_lshl_b32 s{sT0}, s{sWAVE}, 2
s_lshl_b32 s{sT1}, s{sWAVE}, 1
s_add_u32 s{sT1}, s{sT1}, 32
s_add_u32 s{sT2}, s{sT0}, 2
s_cmp_lt_u32 s{sWAVE}, 4
s_cselect_b32 s{sNODE}, 6, 4
s_cselect_b32 s{sRW}, s{sT1}, s{sT0}
s_cselect_b32 s{sRW+2}, s{sT0}, s{sT2}
s_cselect_b32 s{sRW+4}, s{sT2}, 46
s_cselect_b32 s{sPH}, 0, {1 if YPH else 0}
s_add_u32 s{sRW+1}, s{sRW}, 1
s_add_u32 s{sRW+3}, s{sRW+2}, 1
s_add_u32 s{sRW+5}, s{sRW+4}, 1
s_mov_b64 {sp(sROWT)}, 0
""")
for k in range(5, -1, -1):
    a(f"""s_lshl_b64 {sp(sROWT)}, {sp(sROWT)}, 8
    s_or_b32 s{sROWT}, s{sROWT}, s{sRW+k}""")
a(f"""s_mul_i32 s{sT0}, s{sRW}, {H_STR}
v_add_u32 v{vT4}, s{sT0}, v{vHW}
s_mov_b64 {sp(sMASK)}, 0
s_mov_b64 {sp(sMASK2)}, 0
s_lshl_b32 s{sT0}, s{sWAVE}, 15
s_add_u32 s{sW2T}, s{sW2T}, s{sT0}
s_mov_b32 s{sG0}, 0
s_cmp_lt_u32 s{sWAVE}, 4
s_cselect_b32 s{sCTR}, 0, 4
s_setprio {3 if YPH else 1}
s_cbranch_scc0 L_prD
s_setprio 2
""")
a.label("L_prD")
vPE = 96


def issue_group(ent, r):
    for j in range(4):
        a(f"v_add_u32 v{ent+j}, v{ent+j}, v{vGOFF}")
    for j in range(4):
        a(f"buffer_load_dwordx4 {vr(vRING+r*16+j*4,4)}, v{ent+j}, {srd(rX)}, 0 offen")


a(f"""v_lshrrev_b32 v{vENT}, 5, v{vLANE}
v_lshlrev_b32 v{vENT}, 4, v{vENT}
s_lshl_b32 s{sT0}, s{sRW}, 8
v_add_u32 v{vENT}, s{sT0}, v{vENT}
v_cmp_gt_u32 {sp(sM1)}, {R}, v{vLANE}
s_waitcnt lgkmcnt(0)
s_barrier
""")
stamp("buckets")
a.label("L_gsetup")
for s_ in range(FS):
    a(f"ds_read_b128 {vr(vPE+4*s_,4)}, v{vENT} offset:{BK_OFF+32*s_}")
a(f"""ds_read_b32 v{vT1}, v{vT0} offset:{CNT_OFF}
ds_read_b32 v{vT3}, v{vT2} offset:{FLAG_OFF}
ds_read_b64 {vr(vOWN,2)}, v{vT4} offset:{H_OFF}
""")
for s_ in range(FS):
    a(f"s_waitcnt lgkmcnt({3+FS-1-s_})")
    issue_group(vPE + 4 * s_, s_)
a(f"""s_waitcnt lgkmcnt(0)
v_cmp_lt_u32 vcc, 64, v{vT1}
v_add_u32 v{vT1}, 1, v{vT1}
v_lshrrev_b32 v{vT1}, 1, v{vT1}
v_max_u32 v{vT1}, 1, v{vT1}
v_cndmask_b32 v{vT1}, 0, v{vT1}, {sp(sM1)}
v_readfirstlane_b32 s{sTMO}, v{vT3}
""")
for k in range(6):
    a(f"v_readlane_b32 s{sE+k}, v{vT1}, s{sRW+k}")
a(f"""s_cmp_lg_u64 vcc, 0
s_cbranch_scc1 L_slow
s_cmp_lg_u32 s{sTMO}, 0
s_cbranch_scc1 L_slow
""")
if FS:
    a(f"s_max_u32 s{sE}, s{sE}, {4*FS}")
for k in range(1, 6):
    a(f"s_add_u32 s{sE+k}, s{sE+k}, s{sE+k-1}")
a(f"""s_cmp_gt_u32 s{sE+5}, 64
s_cbranch_scc1 L_big
v_mov_b32 v{vT0}, v{vLANE}
""")


def build_list():
    a(f"v_mov_b32 v{vT2}, s{sSB}")
    for k in range(1, 6):
        a(f"""v_cmp_le_u32 vcc, s{sE+k-1}, v{vT0}
        v_mov_b32 v{vT3}, s{sSB+k}
        s_nop 0
        v_cndmask_b32 v{vT2}, v{vT2}, v{vT3}, vcc""")
    a(f"""v_lshl_add_u32 v{vT2}, v{vT0}, 3, v{vT2}
    v_mov_b32 v{vENT}, {OOB}
    v_mov_b32 v{vENT+1}, {OOB}
    v_cmp_gt_u32 vcc, s{sE+5}, v{vT0}
    s_mov_b64 exec, vcc
    ds_read_b64 {vr(vENT,2)}, v{vT2} offset:{BK_OFF}
    s_mov_b64 exec, -1
    v_lshrrev_b32 v{vT3}, 2, v{vT0}
    v_lshlrev_b32 v{vT3}, 5, v{vT3}
    v_and_b32 v{vT1}, 3, v{vT0}
    v_lshl_add_u32 v{vT3}, v{vT1}, 2, v{vT3}
    s_lshl_b32 s{sKS}, s{sWAVE}, 10
    v_add_u32 v{vT3}, s{sKS}, v{vT3}
    v_add_u32 v{vT3}, {LIST_OFF}, v{vT3}
    """)


def bases():
    a(f"s_lshl_b32 s{sSB}, s{sRW}, 8")
    for k in range(1, 6):
        a(f"""s_lshl_b32 s{sSB+k}, s{sRW+k}, 5
        s_sub_u32 s{sSB+k}, s{sSB+k}, s{sE+k-1}
        s_lshl_b32 s{sSB+k}, s{sSB+k}, 3""")


bases()
build_list()
for k in range(6):
    a(f"s_sub_u32 s{sKS}, s{sE+k}, 1\ns_bitset1_b64 {sp(sMASK)}, s{sKS}")
a(f"""s_waitcnt lgkmcnt(0)
ds_write2_b32 v{vT3}, v{vENT}, v{vENT+1} offset0:0 offset1:4
""")
a.label("L_listdone")
a(f"""s_add_u32 s{sNGT}, s{sE+5}, 3
s_lshr_b32 s{sNGT}, s{sNGT}, 2
s_max_u32 s{sREM}, s{sNGT}, {RD}
""")
a.label("L_prol")
for s in range(FS, RD):
    a(f"ds_read_b128 {vr(vPE+4*s,4)}, v{vLADDR} offset:{LIST_OFF+32*s}")
a(f"ds_read_b128 {vr(vENT,4)}, v{vLADDR} offset:{LIST_OFF+32*RD}")


def w1_tail(cnt):
    if W1TAIL:
        a(f"s_waitcnt vmcnt({cnt})")
        for ks in range(KE - NSL, KE):
            tr_w1(ks)


for s in range(FS, RD):
    a(f"s_waitcnt lgkmcnt({RD-s})" if s == FS else "s_waitcnt lgkmcnt(0)")
    issue_group(vPE + 4 * s, s)
    if s == FS:
        w1_tail(4 * (FS + 1))
stamp("gstart")


def mfma_sum(b):
    a(f"v_mfma_f32_16x16x32_bf16 {vr(vGACC,4)}, {vr(vASUM,4)}, {vr(b,4)}, {vr(vGACC,4)}")


stubs = []
drains = []
a.label("L_gloop")
for s in range(RD):
    lgo, ldr, lni = a.newlabel("L_go"), a.newlabel("L_dr"), a.newlabel("L_ni")
    drains.append((ldr, lgo))
    b = vRING + s * 16
    a(f"""s_cmp_lt_u32 s{sREM}, {RD}
    s_cbranch_scc1 {ldr}
    s_waitcnt vmcnt({4*(RD-1)})""")
    a.label(lgo)
    for j in range(4):
        ls, lb = a.newlabel("L_st"), a.newlabel("L_bk")
        stubs.append((ls, lb))
        mfma_sum(b + 4 * j)
        a(f"""s_bitcmp1_b32 s{sMASK}, {4*s+j}
        s_cbranch_scc1 {ls}""")
        a.label(lb)
    a(f"""s_cmp_lt_u32 s{sREM}, {RD+1}
    s_cbranch_scc1 {lni}
    s_waitcnt lgkmcnt(0)""")
    issue_group(vENT, s)
    a(f"ds_read_b128 {vr(vENT,4)}, v{vLADDR} offset:{LIST_OFF+32*(RD+1+s)}")
    a.label(lni)
    a(f"s_sub_u32 s{sREM}, s{sREM}, 1")
a(f"""v_add_u32 v{vLADDR}, 128, v{vLADDR}
s_lshr_b64 {sp(sMASK)}, {sp(sMASK)}, 16
s_add_u32 s{sI}, s{sI}, 1
s_cmp_eq_u32 s{sI}, 4
s_cselect_b64 {sp(sMASK)}, {sp(sMASK2)}, {sp(sMASK)}
s_cmp_lt_u32 s{sI}, 8
s_cbranch_scc1 L_gloop
s_endpgm
""")
for ls, lb in stubs:
    a.label(ls)
    a(f"s_call_b64 {sp(sRET)}, L_fin\ns_branch {lb}")
for ldr, lgo in drains:
    a.label(ldr)
    for k in range(RD - 1, 1, -1):
        ln = a.newlabel("L_dr")
        a(f"""s_cmp_lt_u32 s{sREM}, {k}
        s_cbranch_scc1 {ln}
        s_waitcnt vmcnt({4*(k-1)})
        s_branch {lgo}""")
        a.label(ln)
    a(f"s_waitcnt vmcnt(0)\ns_branch {lgo}")

a.label("L_fin")
a(f"""s_and_b32 s{sT1}, s{sROWT}, 0xff
s_lshr_b64 {sp(sROWT)}, {sp(sROWT)}, 8
s_and_b32 s{sT2}, s{sROWT}, 0xff
s_mul_i32 s{sT1}, s{sT1}, {H_STR}
s_mul_i32 s{sT2}, s{sT2}, {H_STR}
s_waitcnt lgkmcnt(0)
v_lshlrev_b32 v{vT0}, 16, v{vOWN}
v_and_b32 v{vT1}, 0xffff0000, v{vOWN}
v_lshlrev_b32 v{vT2}, 16, v{vOWN+1}
v_and_b32 v{vT3}, 0xffff0000, v{vOWN+1}
v_add_u32 v{vT4}, s{sT2}, v{vHW}
ds_read_b64 {vr(vOWN,2)}, v{vT4} offset:{H_OFF}
v_fma_f32 v{vT0}, v{vT0}, s{sEPSF}, v{vGACC}
v_fma_f32 v{vT1}, v{vT1}, s{sEPSF}, v{vGACC+1}
v_fma_f32 v{vT2}, v{vT2}, s{sEPSF}, v{vGACC+2}
v_fma_f32 v{vT3}, v{vT3}, s{sEPSF}, v{vGACC+3}
v_add_u32 v{vT4}, s{sT1}, v{vHW}
v_cvt_pk_bf16_f32 v{vT0}, v{vT0}, v{vT1}
v_cvt_pk_bf16_f32 v{vT1}, v{vT2}, v{vT3}
v_mov_b32 v{vGACC}, 0
v_mov_b32 v{vGACC+1}, 0
ds_write_b64 v{vT4}, {vr(vT0,2)} offset:{H_OFF}
v_mov_b32 v{vGACC+2}, 0
v_mov_b32 v{vGACC+3}, 0
s_sub_u32 s{sNODE}, s{sNODE}, 1
s_cmp_eq_u32 s{sNODE}, 2
s_cbranch_scc1 L_finflag
s_cmp_eq_u32 s{sNODE}, 0
s_cbranch_scc1 L_gdone
s_setpc_b64 {sp(sRET)}
""")
a.label("L_finflag")
a(f"""buffer_load_dwordx4 {vr(vFLG,4)}, v{vL16}, {srd(rWS)}, s{sFT} offen sc1
s_setpc_b64 {sp(sRET)}
""")

vACC1 = 32
vBB = 64
vW2E = 88
NE = 10


def acc1(t, T):
    return vACC1 + (t * 4 + T) * 4


w2n = [0]
tops = []


def tyounger(tag):
    i = len(tops) - 1 - tops[::-1].index(tag)
    return len(tops) - 1 - i


def w2reg(q):
    if q < NE:
        return vW2E + 4 * q
    return vW + 4 * (q - NE)


def ldw2(n):
    for _ in range(n):
        q = w2n[0]
        if q >= 32:
            return
        if (q & 1) == 0:
            a(f"""s_add_u32 s{sW2K}, s{sROT}, {q>>1}
            s_and_b32 s{sW2K}, s{sW2K}, 7
            s_lshl_b32 s{sW2K}, s{sW2K}, 11
            s_add_u32 s{sW2K}, s{sW2K}, s{sW2T}""")
        a(f"buffer_load_dwordx4 {vr(w2reg(q),4)}, v{vL16}, {srd(rWS)}, s{sW2K} offen offset:{(q&1)*1024} sc1")
        w2n[0] += 1
        tops.append("b")
        if q == 15:
            a(f"s_add_u32 s{sW2T}, s{sW2T}, 16384")


def g1(tiles, last):
    nt = len(tiles)

    def buf(ks, i):
        return vBB + ((ks % 3) * 2 + i) * 4

    def rd(ks):
        a(f"""s_add_u32 s{sKS}, s{sROT}, {ks}
        s_and_b32 s{sKS}, s{sKS}, 7
        s_lshl_b32 s{sKS}, s{sKS}, 5
        v_add_u32 v{vT0+(ks%3)}, s{sKS}, v{vG1B}""")
        for i, t in enumerate(tiles):
            a(f"ds_read_b128 {vr(buf(ks,i),4)}, v{vT0+(ks%3)} offset:{H_OFF+t*16*H_STR}")
    for ks in range(3):
        rd(ks)
    for ks in range(8):
        vm = f"vmcnt({tyounger(f'a{ks}')}) " if (not last and ks >= KE) else ""
        a(f"s_waitcnt {vm}lgkmcnt({nt*min(2, 7-ks)})")
        for i in range(nt):
            for T in range(4):
                fr = vW + ks * 16 + T * 4
                c = acc1(nt - 1, T) if ks == 0 else acc1(i, T)
                a(f"v_mfma_f32_16x16x32_bf16 {vr(acc1(i,T),4)}, {vr(fr,4)}, {vr(buf(ks,i),4)}, {vr(c,4)}")
            if not last and w1q:
                if i == nt - 1:
                    ldw1(w1q.pop(0))
            elif not last and w2n[0] < E1:
                ldw2(1)
        if ks + 3 < 8:
            rd(ks + 3)
        if last:
            ldw2(max(0, min(G1LD, NE + 4 * (ks + 1) - w2n[0])))
    a("s_nop 6")
    for i, t in enumerate(tiles):
        if t == 2:
            a("s_mov_b32 exec_lo, 0x00ff00ff\ns_mov_b32 exec_hi, 0x00ff00ff")
        for aa in range(2):
            o = vBB + (i * 2 + aa) * 4
            for hT in range(2):
                for hh in range(2):
                    s0 = acc1(i, 2 * aa + hT) + 2 * hh
                    a(f"""v_cvt_pk_bf16_f32 v{o+2*hT+hh}, v{s0}, v{s0+1}
                    v_pk_max_i16 v{o+2*hT+hh}, v{o+2*hT+hh}, 0""")
            a(f"ds_write_b128 v{vH1W}, {vr(o,4)} offset:{H1T[t]+aa*64}")
        if t == 2:
            a("s_mov_b64 exec, -1")


def arrive(off):
    a(f"""v_mov_b32 v{vT3}, s{sCTR}
    v_mov_b32 v{vT4}, 1
    s_mov_b64 exec, 1
    ds_add_u32 v{vT3}, v{vT4} offset:{off}
    s_mov_b64 exec, -1""")


def wait_ctr(off, lab):
    a(f"s_mov_b32 s{sT3}, 0\nv_mov_b32 v{vT4}, 0\ns_branch {lab}_in")
    a.label(lab)
    a("s_sleep 1")
    a.label(lab + "_in")
    a(f"""ds_read_b32 v{vT3}, v{vT4} offset:{off}
    s_add_u32 s{sT3}, s{sT3}, 1
    s_waitcnt lgkmcnt(0)
    v_readfirstlane_b32 s{sT1}, v{vT3}
    s_cmp_lt_u32 s{sT3}, 0x4000000
    s_cselect_b32 s{sT2}, 4, 0
    s_cmp_lt_u32 s{sT1}, s{sT2}
    s_cbranch_scc1 {lab}
    """)


a.label("L_gdone")
stamp("gdone")
arrive(DONE_OFF)
a(f"""s_cmp_ge_u32 s{sWAVE}, 4
s_cbranch_scc1 L_noarr
s_setprio 0
""")
a.label("L_noarr")
a(f"""s_mov_b32 s{sT3}, 0
s_mul_i32 s{sT0}, s{sEP}, {FLGM[0]}
s_mul_i32 s{sT1}, s{sEP}, {FLGM[1]}
""")
a.label("L_chk2")
a(f"""s_waitcnt vmcnt(0)
v_xor_b32 v{vFLG}, s{sT0}, v{vFLG}
v_xor_b32 v{vFLG+1}, s{sT0}, v{vFLG+1}
v_xor_b32 v{vFLG+2}, s{sT0}, v{vFLG+2}
v_xor_b32 v{vFLG+3}, s{sT0}, v{vFLG+3}
v_or3_b32 v{vT1}, v{vFLG}, v{vFLG+1}, v{vFLG+2}
v_or_b32 v{vT1}, v{vT1}, v{vFLG+3}
s_mov_b32 exec_hi, 0xffff
v_cmp_ne_u32 vcc, 0, v{vT1}
s_mov_b64 exec, -1
s_cbranch_vccnz L_w2miss
""")
a.label("L_w2ok")
tops.clear()


def ldw1(ks):
    a(f"""s_add_u32 s{sW2K}, s{sROT}, {ks}
    s_and_b32 s{sW2K}, s{sW2K}, 7
    s_lshl_b32 s{sW2K}, s{sW2K}, 12
    s_add_u32 s{sW2K}, s{sW2K}, s{sW2T}
    s_add_u32 s{sW2K}, s{sW2K}, 262144""")
    for f in range(4):
        a(f"buffer_load_dwordx4 {vr(vW+ks*16+f*4,4)}, v{vL16}, {srd(rWS)}, s{sW2K} offen offset:{f*1024} sc1")
        tops.append(f"a{ks}")


w1q = list(range(KE, 8))
if not W1IN:
    while w1q:
        ldw1(w1q.pop(0))
for T in range(4):
    a(f"ds_read_b128 {vr(acc1(1,T),4)}, v{vBIA} offset:{B1F_OFF+64*T}")
wait_ctr(DONE_OFF, "L_spA")
stamp("g02start")
g1([0, 2], False)
for T in range(4):
    a(f"ds_read_b128 {vr(acc1(0,T),4)}, v{vBIA} offset:{B1F_OFF+64*T}")
stamp("g02end")
wait_ctr(DONE_OFF + 4, "L_spB")
stamp("g1start")
g1([1], True)
arrive(DONE_OFF + 8)

vACC2 = 32
vB2B = 56


def acc2(t, T):
    return vACC2 + (t * 2 + T) * 4


a(f"""s_lshl_b32 s{sT0}, s{sWAVE}, 8
v_subrev_u32 v{vT0}, s{sT0}, v{vBIA}
v_lshlrev_b32 v{vT0}, 1, v{vT0}
s_lshl_b32 s{sT0}, s{sWAVE}, 7
v_add_u32 v{vT0}, s{sT0}, v{vT0}
ds_read_b128 {vr(acc2(2,0),4)}, v{vT0} offset:{B2F_OFF}
ds_read_b128 {vr(acc2(2,1),4)}, v{vT0} offset:{B2F_OFF+16}
""")
ldw2(2)
stamp("g1end")


def rd2(ks):
    a(f"""s_add_u32 s{sKS}, s{sROT}, {ks}
    s_and_b32 s{sKS}, s{sKS}, 7
    s_lshl_b32 s{sKS}, s{sKS}, 5
    v_add_u32 v{vT1+(ks&1)}, s{sKS}, v{vG2B}""")
    for t in range(3):
        a(f"ds_read_b128 {vr(vB2B+(ks&1)*12+t*4,4)}, v{vT1+(ks&1)} offset:{H1T[t]+(ks>>3)*512}")


vO = 88
vAB = 104
POL = ['', 'nt', 'sc1', 'sc0 sc1', 'sc1 nt'][OPOL]


def out_tile(t):
    for r in range(4):
        a(f"v_cvt_pk_bf16_f32 v{vO+t*4+r}, v{acc2(t,0)+r}, v{acc2(t,1)+r}")
    if t == 2:
        a("s_mov_b32 exec_lo, 0x00ff00ff\ns_mov_b32 exec_hi, 0x00ff00ff")
    so = ["0", f"s{sM0}", f"s{sM0+1}"][t]
    a(f"buffer_store_dwordx4 {vr(vO+t*4,4)}, v{vOUTA}, {srd(rOUT)}, {so} offen {POL}")


for half in range(2):
    if half == 1 and TM:
        assert w2n[0] == 32
        for k in range(8):
            a(f"""s_add_u32 s{sKS}, s{sROT}, {k}
            s_and_b32 s{sKS}, s{sKS}, 7
            s_lshl_b32 s{sKS}, s{sKS}, 5
            v_add_u32 v{vAB+k}, s{sKS}, v{vG2B}""")
    if half == 1:
        a(f"s_mov_b32 s{sM0}, 8192\ns_mov_b32 s{sM0+1}, 16384")
    wait_ctr(DONE_OFF + 8 + 4 * half, f"L_spG{half}")
    stamp(f"g2h{half}")
    if half == 1 and TPRIO:
        a("s_setprio 0")
    if half == 1 and TM:
        seq = [(t, k) for t in range(3) for k in range(8)]
        NBUF = 6

        def rdt(i):
            t, k = seq[i]
            a(f"ds_read_b128 {vr(vB2B+(i%NBUF)*4,4)}, v{vAB+k} offset:{H1T[t]+512}")
        for i in range(NBUF):
            rdt(i)
        for i, (t, k) in enumerate(seq):
            vm = f"vmcnt({14-2*k}) " if t == 0 else ""
            a(f"s_waitcnt {vm}lgkmcnt({min(NBUF-1, len(seq)-1-i)})")
            for T in range(2):
                fr = w2reg(2 * (8 + k) + T)
                a(f"v_mfma_f32_16x16x32_bf16 {vr(acc2(t,T),4)}, {vr(fr,4)}, {vr(vB2B+(i%NBUF)*4,4)}, {vr(acc2(t,T),4)}")
            if i + NBUF < len(seq):
                rdt(i + NBUF)
            if t > 0 and k == 2:
                out_tile(t - 1)
        a("s_nop 7")
        out_tile(2)
        continue
    rd2(8 * half)
    rd2(8 * half + 1)
    for ks in range(8 * half, 8 * half + 8):
        assert w2n[0] >= 2 * ks + 2
        a(f"s_waitcnt vmcnt({w2n[0]-2*ks-2}) lgkmcnt({3 if (ks & 7) < 7 else 0})")
        for t in range(3):
            for T in range(2):
                fr = w2reg(2 * ks + T)
                c = acc2(2, T) if ks == 0 else acc2(t, T)
                a(f"v_mfma_f32_16x16x32_bf16 {vr(acc2(t,T),4)}, {vr(fr,4)}, {vr(vB2B+(ks&1)*12+t*4,4)}, {vr(c,4)}")
            if t < 2:
                ldw2(1)
        if (ks & 7) + 2 < 8:
            rd2(ks + 2)
if not TM:
    a("s_nop 5")
    for t in range(3):
        out_tile(t)
a(f"""s_mov_b64 exec, 1
v_mov_b32 v{vT1}, s{sEP}
v_mov_b32 v{vT2}, {EPOCH_OFF}
s_lshr_b32 s{sT0}, s{sTMO}, 1
s_or_b32 s{sT0}, s{sT0}, s{sWAVE}
s_cmp_lg_u32 s{sT0}, 0
s_cbranch_scc1 L_noep
buffer_store_dword v{vT1}, v{vT2}, {srd(rWS)}, 0 offen
""")
a.label("L_noep")
if STAMPS:
    a("s_mov_b64 exec, -1")
    stamp("end")
    a(f"""s_lshl_b32 s{sT0}, s2, 10
    s_lshl_b32 s{sT1}, s{sWAVE}, 7
    s_add_u32 s{sT0}, s{sT0}, s{sT1}
    s_add_u32 s{sT0}, s{sT0}, 0x800000
    v_lshlrev_b32 v{vT1}, 2, v{vLANE}
    s_mov_b32 exec_hi, 0
    buffer_store_dword v{vSTV}, v{vT1}, {srd(rWS)}, s{sT0} offen""")
a.label("L_end")
a("s_endpgm")

a.label("L_pmiss")
a(f"""s_add_u32 s{sPC}, s{sPC}, 1
s_cmp_ge_u32 s{sPC}, {SPIN_MAX}
s_cbranch_scc1 L_ptimeout
s_sleep {PSLEEP}
""")
poll_loads()
a("s_waitcnt vmcnt(0)\ns_branch L_pchk")
a.label("L_ptimeout")
a(f"""s_mov_b64 exec, -1
v_mov_b32 v{vT1}, 0
v_mov_b32 v{vT2}, 3
ds_or_b32 v{vT1}, v{vT2} offset:{FLAG_OFF}
""")
for i in range(4):
    a(f"v_mov_b32 v{vE+i}, {EMPTY}\nv_mov_b32 v{vE2+i}, {EMPTY}")
a("s_branch L_polled")
a.label("L_setovf")
a(f"""s_and_b32 s{sMASK}, vcc_lo, 0x11111111
s_and_b32 s{sMASK+1}, vcc_hi, 0x11111111
s_mov_b64 exec, vcc""")
for i in range(4):
    a(f"v_mov_b32 v{vE+i}, {EMPTY}")
a("s_mov_b64 exec, -1\ns_branch L_noovf")
a.label("L_rescan")
a(f"""s_ff1_i32_b64 s{sT0}, {sp(sMASK)}
s_lshr_b32 s{sT1}, s{sT0}, 2
s_lshl_b32 s{sT3}, s{sWAVE}, 4
s_add_u32 s{sT1}, s{sT1}, s{sT3}
s_mul_i32 s{sT1}, s{sT1}, {EPP*4}
s_lshl_b32 s{sT3}, s{sRS}, 10
s_add_u32 s{sT1}, s{sT1}, s{sT3}
buffer_load_dwordx4 {vr(vE2,4)}, v{vL16}, {srd(rDST)}, s{sT1} offen
buffer_load_dwordx4 {vr(vE,4)}, v{vL16}, {srd(rSRC)}, s{sT1} offen
s_add_u32 s{sRS}, s{sRS}, 1
s_cmp_lt_u32 s{sRS}, 5
s_cbranch_scc1 L_rs1
s_mov_b32 s{sRS}, 0
s_bitset0_b64 {sp(sMASK)}, s{sT0}
""")
a.label("L_rs1")
a("s_waitcnt vmcnt(0)")
for i in range(4):
    a(f"""v_subrev_u32 v{vE2+i}, s{sBASE}, v{vE2+i}
    v_min_u32 v{vE2+i}, 63, v{vE2+i}
    v_lshl_or_b32 v{vE+i}, v{vE2+i}, 14, v{vE+i}""")
a("s_branch L_ins")
a.label("L_big")
a(f"""s_cmp_gt_u32 s{sE+5}, 104
s_cbranch_scc1 L_slow
""")
bases()
for rnd in range(2):
    a(f"v_add_u32 v{vT0}, {64*rnd}, v{vLANE}")
    build_list()
    a(f"""s_waitcnt lgkmcnt(0)
    ds_write2_b32 v{vT3}, v{vENT}, v{vENT+1} offset0:0 offset1:4""")
for k in range(6):
    l0, l1 = a.newlabel("L_bm"), a.newlabel("L_bm")
    a(f"""s_sub_u32 s{sKS}, s{sE+k}, 1
    s_cmp_ge_u32 s{sKS}, 64
    s_cbranch_scc1 {l0}
    s_bitset1_b64 {sp(sMASK)}, s{sKS}
    s_branch {l1}""")
    a.label(l0)
    a(f"s_bitset1_b64 {sp(sMASK2)}, s{sKS}")
    a.label(l1)
a("s_branch L_listdone")
a.label("L_w2miss")
a(f"""s_add_u32 s{sT3}, s{sT3}, 1
s_cmp_ge_u32 s{sT3}, {SPIN_MAX}
s_cbranch_scc1 L_w2self
s_sleep 2
buffer_load_dwordx4 {vr(vFLG,4)}, v{vL16}, {srd(rWS)}, s{sFT} offen sc1
s_branch L_chk2
""")
a.label("L_w2self")
a(f"""s_or_b32 s{sTMO}, s{sTMO}, 2
s_lshl_b32 s{sW2T}, s2, 19
s_add_u32 s{sW2T}, s{sW2T}, {PRIV_OFF}
s_lshl_b32 s{sF}, s{sWAVE}, 4
""")
a.label("L_selfw2")
frag_issue()
frag_finish(0)
a(f"""s_add_u32 s{sF}, s{sF}, 1
s_and_b32 s{sT0}, s{sF}, 15
s_cmp_lg_u32 s{sT0}, 0
s_cbranch_scc1 L_selfw2
s_lshl_b32 s{sT0}, s{sWAVE}, 15
s_add_u32 s{sW2T}, s{sW2T}, s{sT0}
s_mov_b32 s{sF}, 0
v_lshrrev_b32 v{vT2}, 5, v{vLANE}
v_bfe_u32 v{vT3}, v{vLANE}, 4, 1
v_lshl_add_u32 v{vT1}, v{vT3}, 4, v{vT2}
v_and_b32 v{vT3}, 15, v{vLANE}
v_lshlrev_b32 v{vT3}, 1, v{vT3}
v_lshl_add_u32 v{vT2}, v{vT1}, 13, v{vT3}
""")
a.label("L_selfw1")
a(f"""s_lshr_b32 s{sT0}, s{sF}, 2
s_lshl_b32 s{sT0}, s{sT0}, 14
s_and_b32 s{sT1}, s{sF}, 3
s_lshl_b32 s{sT1}, s{sT1}, 5
s_add_u32 s{sT0}, s{sT0}, s{sT1}
s_lshl_b32 s{sT1}, s{sWAVE}, 7
s_add_u32 s{sT0}, s{sT0}, s{sT1}
s_add_u32 s{sT1}, s{sT0}, 4096""")
for e in range(8):
    a(f"buffer_load_ushort v{vQ+e}, v{vT2}, {srd(rW1)}, s{sT0 if e<4 else sT1} offen offset:{(e&3)*1024}")
a(f"""s_lshl_b32 s{sT0}, s{sF}, 10
s_add_u32 s{sT0}, s{sT0}, s{sW2T}
s_add_u32 s{sT0}, s{sT0}, 262144
s_waitcnt vmcnt(0)""")
for e in range(4):
    a(f"v_lshl_or_b32 v{vQ+8+e}, v{vQ+2*e+1}, 16, v{vQ+2*e}")
a(f"""buffer_store_dwordx4 {vr(vQ+8,4)}, v{vL16}, {srd(rWS)}, s{sT0} offen sc1
s_add_u32 s{sF}, s{sF}, 1
s_cmp_lt_u32 s{sF}, 32
s_cbranch_scc1 L_selfw1
s_waitcnt vmcnt(0)
s_branch L_w2ok
""")

a.label("L_slow")
w1_tail(0)
vSA = vRING
vSD, vSS, vSB = vRING + 24, vRING + 25, vRING + 28
vHOFF, vLO = vRING + 26, vRING + 27
a(f"""v_mov_b32 v{vT0}, {OOB}
v_cmp_gt_u32 vcc, 32, v{vLANE}
s_mov_b32 s{sI}, 0
v_lshlrev_b32 v{vLO}, 2, v{vLANE}
v_cndmask_b32 v{vHOFF}, v{vT0}, v{vGOFF}, vcc
""")
for k in range(6):
    a(f"s_add_u32 s{sE+k}, s{sRW+k}, s{sBASE}")
a(f"""s_cmp_lt_u32 s{sWAVE}, 4
s_cselect_b32 s{sE+4}, s{sE+4}, -1
s_cselect_b32 s{sE+5}, s{sE+5}, -1""")
for r in range(24):
    a(f"v_mov_b32 v{vSA+r}, 0")
a.label("L_sloop")
a(f"""buffer_load_dword v{vSD}, v{vLO}, {srd(rDST)}, s{sI} offen
buffer_load_dword v{vSS}, v{vLO}, {srd(rSRC)}, s{sI} offen
s_waitcnt vmcnt(0)
v_lshlrev_b32 v{vSS}, 9, v{vSS}
""")
for n in range(6):
    l0, l1 = a.newlabel("L_s"), a.newlabel("L_s")
    a(f"v_cmp_eq_u32 {sp(sM0)}, s{sE+n}, v{vSD}")
    a.label(l0)
    a(f"""s_nop 3
    s_cmp_eq_u64 {sp(sM0)}, 0
    s_cbranch_scc1 {l1}
    s_ff1_i32_b64 s{sT1}, {sp(sM0)}
    s_bitset0_b64 {sp(sM0)}, s{sT1}
    v_readlane_b32 s{sT2}, v{vSS}, s{sT1}
    s_nop 4
    buffer_load_dwordx4 {vr(vSB,4)}, v{vHOFF}, {srd(rX)}, s{sT2} offen
    s_waitcnt vmcnt(0)
    v_mfma_f32_16x16x32_bf16 {vr(vSA+4*n,4)}, {vr(vASUM,4)}, {vr(vSB,4)}, {vr(vSA+4*n,4)}
    s_nop 7
    s_branch {l0}""")
    a.label(l1)
a(f"""s_add_u32 s{sI}, s{sI}, 256
s_cmp_lt_u32 s{sI}, 640000
s_cbranch_scc1 L_sloop
s_nop 7
""")
for n in range(6):
    for r in range(4):
        a(f"v_mov_b32 v{vGACC+r}, v{vSA+4*n+r}")
    a(f"s_call_b64 {sp(sRET)}, L_fin")
a("s_endpgm")

hdr = open("cdna_kernels/%s.s.ref" % NAME).read().split("; Override launch")[0]
out = hdr + f"""; @launch grid=({NB},1,1) block=(512,1,1) lds={LDS_BYTES}
.amdgcn_target "amdgcn-amd-amdhsa--gfx950"
.text
.globl {NAME}_kernel
.p2align 8
.type {NAME}_kernel,@function
{NAME}_kernel:
""" + "\n".join(a.lines) + f"""
.section .rodata,"a"
.p2align 6
.amdhsa_kernel {NAME}_kernel
  .amdhsa_next_free_vgpr {NVGPR}
  .amdhsa_next_free_sgpr 102
  .amdhsa_accum_offset {NVGPR}
  .amdhsa_group_segment_fixed_size 0
  .amdhsa_kernarg_size 88
  .amdhsa_user_sgpr_count 2
  .amdhsa_user_sgpr_kernarg_segment_ptr 1
  .amdhsa_system_sgpr_workgroup_id_x 1
.end_amdhsa_kernel
"""
dst = [x for x in sys.argv[1:] if not x.startswith("--")]
open(dst[0] if dst else f"cdna_kernels/{NAME}.s", "w").write(out)
print("stamps:", stamp_idx[0], " ".join(f"{i}:{n}" for i, n in enumerate(stamp_names)))
```

```python
import sys

NAME = "gather_scatter__isomorphism_gin_2__graph"
NB = 250
R = 40
EPP = 1280
NP = 125
CAP = 16
TBL_BLOCK = 8192
NH = 128
HWV = 3
HB = 8
EPOCH_OFF = 0
W2T_OFF = 0x10000
FLG_OFF = 0x1000
TBL_OFF = 0x100000
PRIV_OFF = 0x1000000
WS_BYTES = PRIV_OFF + NB * 524288
TAGC = [0x000, 0x555, 0xAAA, 0x3C3]
FLGM = [0x9E3779B1, 0x85EBCA77]
EMPTY = 0xfc000
OVFM = 0xf8000

CNT_OFF = 0
FLAG_OFF = 256
DONE_OFF = 264
B1F_OFF = 512
B2F_OFF = 2560
BK_OFF = 3584
H_OFF = BK_OFF + 10240
H_STR = 528
LIST_OFF = H_OFF + 40 * H_STR
H1_OFF = LIST_OFF + 8192
H1_STR = 1040
BT_OFF = H1_OFF
BC_OFF = BT_OFF + 16384
NSL = 3
H1T = {0: 0, 2: 16 * H1_STR, 1: 24 * H1_STR}
ST_OFF = BC_OFF + 1024
LDS_BYTES = ST_OFF + 8 * NSL * 4096
assert H1_OFF + 48 * H1_STR <= LDS_BYTES <= 163840 and ST_OFF % 128 == 0

OOB = 0x7F000000
STAMPS = "--stamps" in sys.argv
SPIN_MAX = 100000
RD = 4


def opt(name, default):
    for x in sys.argv:
        if x.startswith("--" + name + "="):
            return int(x.split("=")[1])
    return default


PSLEEP = opt("psleep", 4)
OWNPOS = opt("ownpos", 4)
POLLK = opt("pollk", 2)
CHKK = opt("chkk", 3)
W1T = opt("w1t", 1)
E1 = opt("e1", 10)
G1LD = opt("g1ld", 1)
HINT = opt("hint", 1)
YPH = 0
PREY = opt("prey", 4)
TPRIO = opt("tprio", 1)
CPF = opt("cpf", 2)
OT = opt("ot", 0)
W1TAIL = opt("w1tail", 1)
TM = opt("tm", 1)
FS = opt("fs", 1)
W1IN = opt("w1in", 1)
OPOL = opt("opol", 2)
TT = opt("tt", 0)
KE = opt("ke", 6)
STW = opt("stw", 8)
MID = opt("mid", 0)
YG0 = opt("yg0", 0)
YPRE = opt("ypre", 3)


class Asm:
    def __init__(self):
        self.lines = []
        self.n = 0

    def __call__(self, s):
        for l in s.strip().split("\n"):
            self.lines.append("    " + l.strip())

    def label(self, l):
        self.lines.append(l + ":")

    def newlabel(self, p="L"):
        self.n += 1
        return f"{p}_{self.n}"


a = Asm()

sTMO = 3
sTAG = 4
sX, sSRC, sDST, sEPS, sW1, sB1, sW2, sB2 = 8, 10, 12, 14, 16, 18, 20, 22
sOUT, sDBG, sWS = 24, 26, 28
sEP, sKS = 30, 31
rX, rSRC, rDST, rW1, rW2, rOUT, rWS = 32, 36, 40, 44, 48, 52, 56
sWAVE = 60
sROT = 61
sSTG = 62
sT0, sT1, sT2, sT3 = 63, 64, 65, 66
sW2T = 67
sM0, sM1, sM2, sM3 = 68, 70, 72, 74
sMASK, sMASK2 = 76, 78
sREM, sI, sNODE, sPC, sEPSF, sF = 80, 81, 82, 83, 86, 87
sRET = 88
sPM = 90
sEXM = 92
sSTAMP = 94
vST0 = 31
sBASE = 96
sW2K = 97
sST0 = 94
sFT = 100
sCTR = 101
sG0 = 84
sPR = 84
sHLP = 93
sRS = 92
sPH = 98
sNGT = 29
sTSEL = 28
sRET2 = 92
sSELLO, sSELHI = 85, 99
sE = 8
sSB = 14
sROWT = 20
sRW = 22


def srd(r):
    return f"s[{r}:{r+3}]"


def sp(r):
    return f"s[{r}:{r+1}]"


def vr(r, n):
    return f"v[{r}:{r+n-1}]"


vLANE, vG, vN = 1, 2, 3
vOUTA, vFLG = 0, 124
vT0, vT1, vT2, vT3 = 4, 5, 6, 7
vASUM, vGACC, vENT = 8, 12, 16
vGOFF, vLADDR, vHW, vG1B, vH1W, vG2B, vSTV, vT4, vL16, vBIA, vOWN = 20, 21, 22, 23, 24, 25, 26, 27, 28, 29, 30
vRING = 32
vW = 128
NVGPR = 256
vOA, vOB = 122, 123
vTR = 124
vT16 = 120
vU = 121
vOR = 96
vBL = 108
vQ = 80
vPA = 119

stamp_idx = [1]
stamp_names = ["entry"]


def stamp(name="s", idx=None):
    if not STAMPS:
        return None
    if idx is None:
        idx = stamp_idx[0]
        stamp_idx[0] += 1
        stamp_names.append(name)
    a(f"""{'s_memtime' if '--cyc' in sys.argv else 's_memrealtime'} {sp(sSTAMP)}
    s_waitcnt lgkmcnt(0)
    v_writelane_b32 v{vSTV}, s{sSTAMP}, {idx}""")
    return idx


def mksrd(r, p, size):
    a(f"""s_mov_b32 s{r}, s{p}
    s_and_b32 s{r+1}, s{p+1}, 0xffff
    s_mov_b32 s{r+2}, {size}
    s_mov_b32 s{r+3}, 0x00020000""")


def cpf_block():
    a(f"""s_cmp_lg_u32 s{sWAVE}, 7
    s_cbranch_scc1 L_nocpf
    s_getpc_b64 {sp(sM1)}""")
    a.label("L_cpf")
    a(f"""v_lshlrev_b32 v{vT1}, 7, v{vLANE}
    global_load_dword v{vOWN+1}, v{vT1}, {sp(sM1)}
    v_add_u32 v{vT1}, 8192, v{vT1}
    v_min_u32 v{vT1}, L_end-L_cpf, v{vT1}
    s_mov_b32 exec_hi, 0
    global_load_dword v{vOWN+1}, v{vT1}, {sp(sM1)}
    s_mov_b64 exec, -1""")
    a.label("L_nocpf")


a(f"""s_cmp_ge_u32 s2, {NB}
s_cbranch_scc1 L_end""")
if STAMPS:
    a(f"s_memrealtime {sp(sST0)}\nv_mov_b32 v{vSTV}, 0")
a(f"""s_load_dwordx16 s[8:23], s[0:1], 0
s_load_dwordx4 s[24:27], s[0:1], 64
s_load_dwordx2 s[28:29], s[0:1], 80
v_and_b32 v{vLANE}, 63, v0
v_lshrrev_b32 v{vT0}, 6, v0
v_lshrrev_b32 v{vG}, 4, v{vLANE}
v_readfirstlane_b32 s{sWAVE}, v{vT0}
v_and_b32 v{vN}, 15, v0
s_mul_i32 s{sBASE}, s2, {R}
""")
if CPF == 2:
    cpf_block()
a(f"""v_lshlrev_b32 v{vL16}, 4, v{vLANE}
v_lshlrev_b32 v{vT16}, 4, v0
v_mov_b32 v{vRING}, {EMPTY}
v_mov_b32 v{vRING+1}, {EMPTY}
v_mov_b32 v{vRING+2}, {EMPTY}
v_mov_b32 v{vRING+3}, {EMPTY}
ds_write_b128 v{vT16}, {vr(vRING,4)} offset:{BT_OFF}
ds_write_b128 v{vT16}, {vr(vRING,4)} offset:{BT_OFF+8192}
v_mov_b32 v{vENT}, {OOB}
v_mov_b32 v{vENT+1}, {OOB}
v_mov_b32 v{vENT+2}, {OOB}
v_mov_b32 v{vENT+3}, {OOB}
ds_write_b128 v{vT16}, {vr(vENT,4)} offset:{BK_OFF}
v_mov_b32 v{vT1}, 0
v_lshlrev_b32 v{vT2}, 2, v0
v_cmp_gt_u32 vcc, 256, v0
s_and_saveexec_b64 {sp(sM0)}, vcc
ds_write_b32 v{vT2}, v{vT1} offset:{BC_OFF}
v_cmp_gt_u32 vcc, 128, v0
s_and_b64 exec, exec, vcc
ds_write_b128 v{vT16}, {vr(vENT,4)} offset:{BK_OFF+8192}
ds_write_b32 v{vT2}, v{vT1} offset:{CNT_OFF}
s_mov_b64 exec, {sp(sM0)}
s_lshr_b32 s{sPR}, s2, 4
s_lshl_b32 s{sPR}, s{sPR}, 3
s_and_b32 s{sT0}, s2, 7
s_add_u32 s{sPR}, s{sPR}, s{sT0}
s_lshl_b32 s{sF}, s{sPR}, 1
s_lshr_b32 s{sT0}, s{sWAVE}, 2
s_add_u32 s{sF}, s{sF}, s{sT0}
s_and_b32 s{sT0}, s{sWAVE}, 3
s_cmp_eq_u32 s{sT0}, 3
s_cselect_b32 s{sHLP}, 1, 0
s_cmp_lt_u32 s{sF}, 128
s_cselect_b32 s{sHLP}, s{sHLP}, 0
s_bitcmp1_b32 s2, 3
s_cselect_b32 s{sHLP}, s{sHLP}, 0
s_cselect_b32 s{sPR}, 255, s{sPR}
s_mul_i32 s{sT0}, s{sPR}, {EPP*4}
s_mul_i32 s{sT1}, s{sWAVE}, 640
s_add_u32 s{sT0}, s{sT0}, s{sT1}
v_lshlrev_b32 v{vT2}, 2, v{vLANE}
s_lshr_b32 s{sROT}, s2, 3
s_mov_b32 s{rSRC+2}, 640000
s_mov_b32 s{rSRC+3}, 0x00020000
s_mov_b32 s{rDST+2}, 640000
s_mov_b32 s{rDST+3}, 0x00020000
s_waitcnt lgkmcnt(0)
s_mov_b32 s{rDST}, s{sDST}
s_and_b32 s{rDST+1}, s{sDST+1}, 0xffff
s_mov_b32 s{rSRC}, s{sSRC}
s_and_b32 s{rSRC+1}, s{sSRC+1}, 0xffff
""")
if STAMPS:
    a(f"v_writelane_b32 v{vSTV}, s{sST0}, 0")
vD, vS, vBI, vSL = 32, 36, 40, 44
a(f"""s_cmp_ge_u32 s{sPR}, {NP}
s_cbranch_scc1 L_noedge
buffer_load_dword v{vD}, v{vT2}, {srd(rDST)}, s{sT0} offen
buffer_load_dword v{vD+1}, v{vT2}, {srd(rDST)}, s{sT0} offen offset:256
buffer_load_dword v{vS}, v{vT2}, {srd(rSRC)}, s{sT0} offen
buffer_load_dword v{vS+1}, v{vT2}, {srd(rSRC)}, s{sT0} offen offset:256
s_mov_b32 exec_hi, 0
buffer_load_dword v{vD+2}, v{vT2}, {srd(rDST)}, s{sT0} offen offset:512
buffer_load_dword v{vS+2}, v{vT2}, {srd(rSRC)}, s{sT0} offen offset:512
s_mov_b64 exec, -1
""")
a.label("L_noedge")
a(f"""s_load_dword s{sEP}, {sp(sWS)}, {EPOCH_OFF}
s_load_dword s{sEPSF}, {sp(sEPS)}, 0
""")
if OT == 1:
    a(f"""s_lshl_b32 s{sT1}, s{sBASE}, 9
    s_load_dword s{sRS}, {sp(sOUT)}, s{sT1}""")
mksrd(rW1, sW1, 262144)
mksrd(rX, sX, 5120000)
a("s_barrier")
if CPF == 1:
    cpf_block()
NEARLY = 0
if TT:
    a(f"""s_lshl_b32 s{sT0}, s2, 14
    s_lshl_b32 s{sT1}, s{sWAVE}, 11
    s_add_u32 s{sT0}, s{sT0}, s{sT1}
    s_add_u32 s{sT0}, s{sT0}, {TBL_OFF}
    v_lshlrev_b32 v{vT1}, 7, v{vLANE}
    v_add_u32 v{vT1}, s{sT0}, v{vT1}
    s_mov_b64 exec, 0xffff
    global_load_dword v{vOWN}, v{vT1}, {sp(sWS)} sc1
    s_mov_b64 exec, -1""")
    NEARLY += 1
if W1T:
    a(f"""s_lshl_b32 s{sT0}, s{sROT}, 3
    s_add_u32 s{sT0}, s{sT0}, s{sWAVE}
    s_lshl_b32 s{sT0}, s{sT0}, 10
    v_lshlrev_b32 v{vT1}, 7, v{vLANE}
    s_mov_b64 exec, 0xff
    buffer_load_dword v{vOWN}, v{vT1}, {srd(rW1)}, s{sT0} offen
    s_mov_b64 exec, -1""")
    NEARLY += 1


def own_loads():
    a(f"""s_mul_i32 s{sT0}, s{sWAVE}, 5
    s_add_u32 s{sT0}, s{sT0}, s{sBASE}
    s_lshl_b32 s{sT0}, s{sT0}, 9
    buffer_load_dwordx4 {vr(vOR,4)}, v{vL16}, {srd(rX)}, s{sT0} offen
    buffer_load_dwordx4 {vr(vOR+4,4)}, v{vL16}, {srd(rX)}, s{sT0} offen offset:1024
    s_mov_b32 exec_hi, 0
    buffer_load_dwordx4 {vr(vOR+8,4)}, v{vL16}, {srd(rX)}, s{sT0} offen offset:2048
    s_mov_b64 exec, -1
    """)


def own_store():
    a(f"""v_lshrrev_b32 v{vT1}, 5, v{vLANE}
    s_mul_i32 s{sT0}, s{sWAVE}, 5
    v_add_u32 v{vT1}, s{sT0}, v{vT1}
    v_mul_u32_u24 v{vT1}, {H_STR}, v{vT1}
    v_add_u32 v{vT1}, v{vT1}, v{vGOFF}
    ds_write_b128 v{vT1}, {vr(vOR,4)} offset:{H_OFF}
    ds_write_b128 v{vT1}, {vr(vOR+4,4)} offset:{H_OFF+2*H_STR}
    s_mov_b32 exec_hi, 0
    ds_write_b128 v{vT1}, {vr(vOR+8,4)} offset:{H_OFF+4*H_STR}
    s_mov_b64 exec, -1""")


if OWNPOS == 0:
    own_loads()
    NEARLY += 3
a(f"""s_sub_u32 s{sT2}, s{sWAVE}, 1
s_cmp_ge_u32 s{sT2}, 2
s_cbranch_scc1 L_nbl
s_cmp_eq_u32 s{sT2}, 0
s_cselect_b32 s{sM0}, s{sB1}, s{sB2}
s_cselect_b32 s{sM0+1}, s{sB1+1}, s{sB2+1}
s_cselect_b32 exec_hi, -1, 0
global_load_dwordx4 {vr(vBL,4)}, v{vL16}, {sp(sM0)}
s_mov_b64 exec, -1
""")

def frag_issue():
    a(f"""v_lshrrev_b32 v{vT2}, 5, v{vLANE}
    v_bfe_u32 v{vT3}, v{vLANE}, 4, 1
    v_lshl_add_u32 v{vT1}, v{vT3}, 4, v{vT2}
    s_and_b32 s{sT1}, s{sF}, 7
    s_lshl_b32 s{sT1}, s{sT1}, 1
    s_and_b32 s{sT0}, s{sF}, 8
    s_lshl_b32 s{sT0}, s{sT0}, 2
    s_add_u32 s{sT1}, s{sT1}, s{sT0}
    v_add_u32 v{vT1}, s{sT1}, v{vT1}
    v_lshrrev_b32 v{vT2}, 2, v{vT1}
    v_and_b32 v{vT1}, 3, v{vT1}
    v_lshlrev_b32 v{vT2}, 14, v{vT2}
    v_lshl_add_u32 v{vT2}, v{vT1}, 11, v{vT2}
    v_and_b32 v{vT1}, 15, v{vLANE}
    v_lshl_add_u32 v{vT2}, v{vT1}, 2, v{vT2}
    s_lshr_b32 s{sT0}, s{sF}, 4
    s_lshl_b32 s{sT0}, s{sT0}, 6
    s_add_u32 s{sT1}, s{sT0}, 8192
    """)
    for e in range(8):
        a(f"buffer_load_dword v{vQ+e}, v{vT2}, {srd(rW2)}, s{sT0 if e<4 else sT1} offen offset:{(e&3)*512}")


def frag_finish(cnt):
    a(f"""s_lshl_b32 s{sT0}, s{sF}, 11
    s_add_u32 s{sT0}, s{sT0}, s{sW2T}
    s_mov_b32 s{sSELLO}, 0x05040100
    s_mov_b32 s{sSELHI}, 0x07060302
    s_waitcnt vmcnt({cnt})
    """)
    for e in range(4):
        a(f"""v_perm_b32 v{vQ+8+e}, v{vQ+2*e+1}, v{vQ+2*e}, s{sSELLO}
        v_perm_b32 v{vQ+12+e}, v{vQ+2*e+1}, v{vQ+2*e}, s{sSELHI}""")
    a(f"""buffer_store_dwordx4 {vr(vQ+8,4)}, v{vL16}, {srd(rWS)}, s{sT0} offen sc1
    buffer_store_dwordx4 {vr(vQ+12,4)}, v{vL16}, {srd(rWS)}, s{sT0} offen offset:1024 sc1
    s_nop 1""")


a.label("L_nbl")
mksrd(rW2, sW2, 262144)
a(f"""s_cmp_eq_u32 s{sHLP}, 0
s_cbranch_scc1 L_nohelp0
""")
frag_issue()
a.label("L_nohelp0")
mksrd(rWS, sWS, WS_BYTES)
mksrd(rOUT, sOUT, 5120000)
a(f"""s_mov_b32 s{sW2T}, {W2T_OFF}
v_lshrrev_b32 v{vT1}, 1, v{vG}
v_and_b32 v{vT2}, 1, v{vG}
v_lshl_add_u32 v{vU}, v{vT2}, 4, v{vT1}
s_lshl_b32 s{sT0}, s{sWAVE}, 7
s_mul_i32 s{sSTG}, s{sWAVE}, {NSL*4096}
s_add_u32 s{sSTG}, s{sSTG}, {ST_OFF}
v_lshrrev_b32 v{vT1}, 3, v{vLANE}
v_and_b32 v{vT3}, 2, v{vT1}
v_and_b32 v{vT4}, 7, v{vLANE}
v_xor_b32 v{vT4}, v{vT4}, v{vT3}
v_lshlrev_b32 v{vOA}, 10, v{vT1}
v_add_u32 v{vOA}, s{sT0}, v{vOA}
v_xor_b32 v{vT3}, 4, v{vT4}
v_lshl_add_u32 v{vOB}, v{vT3}, 4, v{vOA}
v_add_u32 v{vOB}, 0x20000, v{vOB}
v_lshl_add_u32 v{vOA}, v{vT4}, 4, v{vOA}
v_and_b32 v{vGOFF}, 31, v{vLANE}
v_lshlrev_b32 v{vGOFF}, 4, v{vGOFF}
""")
a(f"""v_lshrrev_b32 v{vT1}, 1, v{vG}
v_lshrrev_b32 v{vLADDR}, 5, v{vLANE}
v_lshlrev_b32 v{vLADDR}, 4, v{vLADDR}
s_lshl_b32 s{sT0}, s{sWAVE}, 10
v_add_u32 v{vLADDR}, s{sT0}, v{vLADDR}
v_lshl_add_u32 v{vHW}, v{vT1}, 4, v{vN}
v_lshlrev_b32 v{vHW}, 4, v{vHW}
v_lshl_add_u32 v{vHW}, v{vT2}, 3, v{vHW}
v_mul_u32_u24 v{vG1B}, {H_STR}, v{vN}
v_lshl_add_u32 v{vG1B}, v{vU}, 4, v{vG1B}
v_mul_u32_u24 v{vT3}, {H1_STR}, v{vN}
v_add_u32 v{vT3}, {H1_OFF}, v{vT3}
v_lshl_add_u32 v{vG2B}, v{vU}, 4, v{vT3}
s_lshl_b32 s{sT0}, s{sWAVE}, 7
v_lshl_add_u32 v{vH1W}, v{vG}, 4, v{vT3}
v_add_u32 v{vH1W}, s{sT0}, v{vH1W}
s_lshl_b32 s{sT0}, s{sWAVE}, 8
v_lshlrev_b32 v{vBIA}, 4, v{vG}
v_add_u32 v{vBIA}, s{sT0}, v{vBIA}
v_lshrrev_b32 v{vT1}, 2, v{vN}
v_and_b32 v{vT3}, 2, v{vT1}
v_lshl_add_u32 v{vT3}, v{vT2}, 2, v{vT3}
v_lshlrev_b32 v{vT4}, 10, v{vG}
v_lshl_add_u32 v{vT4}, v{vT1}, 7, v{vT4}
v_and_b32 v{vT1}, 3, v{vN}
v_lshl_add_u32 v{vT4}, v{vT1}, 3, v{vT4}
v_add_u32 v{vT4}, s{sSTG}, v{vT4}
""")
for T in range(4):
    a(f"""v_xor_b32 v{vT1}, {2*T}, v{vT3}
    v_lshl_add_u32 v{vTR+T}, v{vT1}, 4, v{vT4}""")
a(f"""v_mov_b32 v{vT3}, 0x3f80
v_and_b32 v{vT0}, 1, v{vN}
v_lshlrev_b32 v{vT0}, 4, v{vT0}
v_lshlrev_b32 v{vT3}, v{vT0}, v{vT3}
v_lshlrev_b32 v{vT1}, 2, v{vT2}
v_lshrrev_b32 v{vT0}, 1, v{vN}
v_sub_u32 v{vT0}, v{vT0}, v{vT1}
""")
for r in range(4):
    a(f"""v_cmp_eq_u32 vcc, {r}, v{vT0}
    v_mov_b32 v{vGACC+r}, 0
    s_nop 0
    v_cndmask_b32 v{vASUM+r}, 0, v{vT3}, vcc""")
a(f"""v_cmp_gt_u32 vcc, 500, v0
s_mov_b64 {sp(sPM)}, vcc
s_lshl_b32 s{sFT}, s2, 13
s_add_u32 s{sFT}, s{sFT}, {TBL_OFF}
s_cmp_ge_u32 s{sPR}, {NP}
s_cbranch_scc1 L_stream
s_lshl_b32 s{sT0}, s{sPR}, 6
s_add_u32 s{sT0}, s{sT0}, {TBL_OFF}
v_lshrrev_b32 v{vT2}, 2, v0
v_lshlrev_b32 v{vT3}, 2, v{vT2}
v_and_b32 v{vT1}, 3, v0
v_lshlrev_b32 v{vT1}, 4, v{vT1}
v_lshl_add_u32 v{vT2}, v{vT2}, 13, v{vT1}
v_mov_b32 v{vT4}, 1
s_setprio 3
s_sub_u32 s{sT2}, s{sWAVE}, 1
s_cmp_lt_u32 s{sT2}, 2
s_cbranch_scc1 L_ew1
s_waitcnt vmcnt({NEARLY})
""")
a.label("L_ew1")
a(f"s_waitcnt vmcnt({NEARLY+1})")
stamp("edges")


def mktags():
    a(f"s_add_u32 s{sEP}, s{sEP}, 1")
    for i in range(4):
        a(f"s_add_u32 s{sTAG+i}, s{sEP}, {TAGC[i]}\ns_lshl_b32 s{sTAG+i}, s{sTAG+i}, 20")


for i in range(3):
    if i == 2:
        a("s_mov_b32 exec_hi, 0")
    a(f"""v_mul_u32_u24 v{vBI+i}, 0xcccd, v{vD+i}
    v_lshrrev_b32 v{vBI+i}, 21, v{vBI+i}
    v_lshlrev_b32 v{vT1}, 2, v{vBI+i}
    ds_add_rtn_u32 v{vSL+i}, v{vT1}, v{vT4} offset:{BC_OFF}""")
a("s_mov_b64 exec, -1")
for i in range(3):
    a(f"""v_mul_u32_u24 v{vT1}, {R}, v{vBI+i}
    v_sub_u32 v{vT1}, v{vD+i}, v{vT1}
    v_lshl_or_b32 v{vS+i}, v{vT1}, 14, v{vS+i}
    v_lshlrev_b32 v{vBI+i}, 6, v{vBI+i}""")
a("s_waitcnt lgkmcnt(0)")
for i in range(3):
    if i == 2:
        a("s_mov_b32 exec_hi, 0")
    a(f"""v_min_u32 v{vT1}, {CAP-1}, v{vSL+i}
    v_lshl_add_u32 v{vT1}, v{vT1}, 2, v{vBI+i}
    ds_write_b32 v{vT1}, v{vS+i} offset:{BT_OFF}""")
a("s_mov_b64 exec, -1")
mktags()
a(f"""v_mov_b32 v{vT1}, {OVFM}
s_waitcnt lgkmcnt(0)
s_barrier""")
NT = 64 * STW
NK = 1024 // NT
WO = 64
if STW < 8:
    a(f"s_cmp_ge_u32 s{sWAVE}, {STW}\ns_cbranch_scc1 L_nostore")
for k in range(NK):
    a(f"""ds_read_b128 {vr((32 if NK <= 4 else 48)+4*k,4)}, v{vT16} offset:{BT_OFF+NT*16*k}""")
    if NK > 4 and k == 3:
        pass
for k in range(NK):
    a(f"ds_read_b32 v{(112 if NK <= 4 else 40)+k}, v{vT3} offset:{BC_OFF+NT*k}")
a("s_waitcnt lgkmcnt(0)")
for k in range(NK):
    vE = (32 if NK <= 4 else 48) + 4 * k
    vC = (112 if NK <= 4 else 40) + k
    a(f"""v_cmp_lt_u32 vcc, {CAP}, v{vC}
    v_or_b32 v{vE+1}, s{sTAG+1}, v{vE+1}
    v_or_b32 v{vE+2}, s{sTAG+2}, v{vE+2}
    v_cndmask_b32 v{vE}, v{vE}, v{vT1}, vcc
    v_or_b32 v{vE+3}, s{sTAG+3}, v{vE+3}
    v_or_b32 v{vE}, s{sTAG}, v{vE}""")
    if k == NK - 1:
        a(f"""v_cmp_gt_u32 vcc, {1000 - NT*(NK-1)}, v0
        s_mov_b64 exec, vcc""")
    a(f"""buffer_store_dwordx4 {vr(vE,4)}, v{vT2}, {srd(rWS)}, s{sT0} offen sc1
    s_add_u32 s{sT0}, s{sT0}, {(NT//4)*TBL_BLOCK}""")
a("s_nop 1")
a.label("L_nostore")
a("s_mov_b64 exec, -1\ns_setprio 0")
stamp("published")
a.label("L_stream")


ops = []


def younger(tag):
    i = len(ops) - 1 - ops[::-1].index(tag)
    return len(ops) - 1 - i


def dma_w1(ks):
    a(f"""s_add_u32 s{sKS}, s{sROT}, {ks}
    s_and_b32 s{sKS}, s{sKS}, 7
    s_lshl_b32 s{sKS}, s{sKS}, 14
    s_add_u32 s{sT3}, s{sKS}, 8192""")
    for g in range(4):
        a(f"""s_add_u32 m0, s{sSTG}, {(ks%NSL)*4096+g*1024}
        s_nop 0
        buffer_load_dwordx4 v{vOB if g&1 else vOA}, {srd(rW1)}, s{sT3 if g>>1 else sKS} offen lds""")
        ops.append(f"d{ks}")


def tr_w1(ks):
    for T in range(4):
        for jh in range(2):
            d = vW + ks * 16 + T * 4 + jh * 2
            a(f"ds_read_b64_tr_b16 {vr(d,2)}, v{vTR+T} offset:{(ks%NSL)*4096+jh*512}")


vE = vRING + 8
vE2 = vRING + 24
vLD, vSL, vAD = vRING + 12, vRING + 16, vRING + 20
masks = [sM0, sM1, sM2, sM3]


def poll_loads():
    a(f"buffer_load_dwordx4 {vr(vE,4)}, v{vT16}, {srd(rWS)}, s{sFT} offen sc1")


def poll_check_and_insert():
    a(f"""s_cmp_lt_u32 s{sPR}, {NP}
    s_cbranch_scc1 L_hastag""")
    mktags()
    a.label("L_hastag")
    a(f"""s_mov_b32 s{sPC}, 0
    s_mov_b32 s{sT2}, 0x100000
    v_mov_b32 v{vT4}, 1
    s_mov_b64 {sp(sMASK)}, 0
    s_mov_b32 s{sRS}, 0
    s_mov_b64 exec, {sp(sPM)}
    s_waitcnt vmcnt({younger('p')})""")
    a.label("L_pchk")
    for i in range(4):
        a(f"v_xor_b32 v{vE+i}, s{sTAG+i}, v{vE+i}")
    a(f"""v_or3_b32 v{vT1}, v{vE}, v{vE+1}, v{vE+2}
    v_or_b32 v{vT1}, v{vT1}, v{vE+3}
    v_cmp_le_u32 vcc, s{sT2}, v{vT1}
    s_and_b64 exec, exec, vcc
    s_cbranch_execnz L_pmiss
    """)
    a.label("L_polled")
    a(f"""s_mov_b64 exec, -1
    v_cmp_eq_u32 vcc, {OVFM}, v{vE}
    s_cbranch_vccnz L_setovf
    """)
    a.label("L_noovf")
    stamp("polled")
    a.label("L_ins")
    for i in range(4):
        a(f"""v_bfe_u32 v{vLD+i}, v{vE+i}, 14, 6
        v_cmp_gt_u32 {sp(masks[i])}, {R}, v{vLD+i}
        v_lshlrev_b32 v{vAD+i}, 2, v{vLD+i}""")
    for i in range(4):
        a(f"""s_mov_b64 exec, {sp(masks[i])}
        ds_add_rtn_u32 v{vSL+i}, v{vAD+i}, v{vT4} offset:{CNT_OFF}""")
    a("s_mov_b64 exec, -1")
    for i in range(4):
        a(f"""v_and_b32 v{vE+i}, 0x3fff, v{vE+i}
        v_lshlrev_b32 v{vE+i}, 9, v{vE+i}
        v_lshlrev_b32 v{vAD+i}, 8, v{vLD+i}""")
    a("s_waitcnt lgkmcnt(0)")
    for i in range(4):
        a(f"""v_min_u32 v{vSL+i}, 63, v{vSL+i}
        v_lshl_add_u32 v{vAD+i}, v{vSL+i}, 2, v{vAD+i}""")
    for i in range(4):
        a(f"""s_mov_b64 exec, {sp(masks[i])}
        ds_write_b32 v{vAD+i}, v{vE+i} offset:{BK_OFF}""")
    a(f"""s_mov_b64 exec, -1
    s_cmp_lg_u64 {sp(sMASK)}, 0
    s_cbranch_scc1 L_rescan
    """)


def is_helper(lab):
    a(f"""s_mov_b32 s{sT0}, s{sF}
    s_cmp_eq_u32 s{sHLP}, 0
    s_cbranch_scc1 {lab}""")


a("s_setprio 2")
for ks in range(NSL):
    dma_w1(ks)
    if OWNPOS >= 3 and ks == OWNPOS - 3:
        own_loads()
        ops.extend(["o"] * 3)
for i in range(4):
    a(f"v_mov_b32 v{vE+i}, {EMPTY}")
for ks in range(KE - NSL):
    a(f"s_waitcnt vmcnt({younger(f'd{ks}')})")
    tr_w1(ks)
    if ks == 0:
        if OWNPOS < 3:
            own_store()
        a(f"""s_sub_u32 s{sT2}, s{sWAVE}, 1
        s_cmp_ge_u32 s{sT2}, 2
        s_cbranch_scc1 L_nbias
        v_lshlrev_b32 v{vT1}, 5, v{vLANE}
        s_cmp_eq_u32 s{sT2}, 1
        s_cbranch_scc1 L_bias2
        """)
        for i in range(4):
            a(f"""v_lshlrev_b32 v{64+2*i}, 16, v{vBL+i}
            v_and_b32 v{64+2*i+1}, 0xffff0000, v{vBL+i}""")
        a(f"""ds_write_b128 v{vT1}, {vr(64,4)} offset:{B1F_OFF}
        ds_write_b128 v{vT1}, {vr(68,4)} offset:{B1F_OFF+16}
        s_branch L_nbias
        """)
        a.label("L_bias2")
        for i in range(4):
            a(f"""v_lshlrev_b32 v{64+i}, 16, v{vBL+i}
            v_and_b32 v{68+i}, 0xffff0000, v{vBL+i}""")
        a(f"""s_mov_b32 exec_hi, 0
        ds_write_b128 v{vT1}, {vr(64,4)} offset:{B2F_OFF}
        ds_write_b128 v{vT1}, {vr(68,4)} offset:{B2F_OFF+16}
        s_mov_b64 exec, -1
        """)
        a.label("L_nbias")
    if ks in (1, 3):
        a(f"s_setprio {1 - ks//2}")
    a("s_waitcnt lgkmcnt(0)")
    dma_w1(ks + NSL)
    if ks == 0:
        is_helper("L_nohelp")
        frag_finish(63)
        a.label("L_nohelp")
        if KE < 8:
            a(f"""s_sub_u32 s{sT0}, s2, 136
            s_and_b32 s{sT1}, s{sT0}, 0xffffffc7
            s_cbranch_scc1 L_nodump
            s_and_b32 s{sT0}, s{sROT}, 7
            s_lshl_b32 s{sT0}, s{sT0}, 12
            s_lshl_b32 s{sT1}, s{sWAVE}, 15
            s_add_u32 s{sT0}, s{sT0}, s{sT1}
            s_add_u32 s{sT0}, s{sT0}, {W2T_OFF + 262144}""")
            for f in range(4):
                a(f"buffer_store_dwordx4 {vr(vW+4*f,4)}, v{vL16}, {srd(rWS)}, s{sT0} offen offset:{f*1024} sc1")
            a.label("L_nodump")
    if ks + 1 == POLLK:
        a(f"s_mov_b64 exec, {sp(sPM)}")
        poll_loads()
        a("s_mov_b64 exec, -1")
        ops.extend(["p"])
        stamp("pollissued")
    if ks + 1 == CHKK:
        poll_check_and_insert()
        if OWNPOS >= 3:
            own_store()
        a(f"""s_sub_u32 s{sT0}, s2, 136
        s_and_b32 s{sT1}, s{sT0}, 0xffffffc7
        s_cbranch_scc1 L_nodf
        s_and_b32 s{sT0}, s{sROT}, 7
        s_lshl_b32 s{sT0}, s{sT0}, 3
        s_add_u32 s{sT0}, s{sT0}, s{sWAVE}
        s_add_u32 s{sT0}, s{sT0}, 128
        s_branch L_doflag""")
        a.label("L_nodf")
        is_helper("L_noflag")
        a.label("L_doflag")
        a(f"""s_mul_i32 s{sT1}, s{sEP}, {FLGM[0]}
        v_mov_b32 v{vT2}, s{sT1}
        s_lshl_b32 s{sT0}, s{sT0}, 2
        s_add_u32 s{sT0}, s{sT0}, {FLG_OFF}
        v_mov_b32 v{vT1}, 0
        s_mov_b64 exec, 1
        buffer_store_dword v{vT2}, v{vT1}, {srd(rWS)}, s{sT0} offen sc1
        s_mov_b64 exec, -1
        """)
        a.label("L_noflag")
if not W1TAIL:
    for ks in range(KE - NSL, KE):
        a(f"s_waitcnt vmcnt({younger(f'd{ks}')})")
        tr_w1(ks)
stamp("w1done")

a(f"""s_lshl_b32 s{sEPSF}, s{sEPSF}, 16
v_add_f32 v{vT0}, s{sEPSF}, 1.0
v_cvt_pk_bf16_f32 v{vT0}, v{vT0}, v{vT0}
v_lshlrev_b32 v{vT0}, 16, v{vT0}
v_add_u32 v{vT3}, s{sBASE}, v{vN}
v_readfirstlane_b32 s{sEPSF}, v{vT0}
v_lshlrev_b32 v{vT3}, 9, v{vT3}
v_lshl_add_u32 v{vT3}, v{vG}, 4, v{vT3}
s_lshl_b32 s{sT0}, s{sWAVE}, 6
v_add_u32 v{vOUTA}, s{sT0}, v{vT3}
v_lshlrev_b32 v{vT0}, 2, v{vLANE}
v_mov_b32 v{vT2}, 0
s_mov_b32 s{sFT}, {FLG_OFF}
s_mov_b32 s{sI}, 0
s_lshl_b32 s{sT0}, s{sWAVE}, 2
s_lshl_b32 s{sT1}, s{sWAVE}, 1
s_add_u32 s{sT1}, s{sT1}, 32
s_add_u32 s{sT2}, s{sT0}, 2
s_cmp_lt_u32 s{sWAVE}, 4
s_cselect_b32 s{sNODE}, 6, 4
s_cselect_b32 s{sRW}, s{sT1}, s{sT0}
s_cselect_b32 s{sRW+2}, s{sT0}, s{sT2}
s_cselect_b32 s{sRW+4}, s{sT2}, 46
s_cselect_b32 s{sPH}, 0, {1 if YPH else 0}
s_add_u32 s{sRW+1}, s{sRW}, 1
s_add_u32 s{sRW+3}, s{sRW+2}, 1
s_add_u32 s{sRW+5}, s{sRW+4}, 1
s_mov_b64 {sp(sROWT)}, 0
""")
for k in range(5, -1, -1):
    a(f"""s_lshl_b64 {sp(sROWT)}, {sp(sROWT)}, 8
    s_or_b32 s{sROWT}, s{sROWT}, s{sRW+k}""")
a(f"""s_mul_i32 s{sT0}, s{sRW}, {H_STR}
v_add_u32 v{vT4}, s{sT0}, v{vHW}
s_mov_b64 {sp(sMASK)}, 0
s_mov_b64 {sp(sMASK2)}, 0
s_lshl_b32 s{sT0}, s{sWAVE}, 15
s_add_u32 s{sW2T}, s{sW2T}, s{sT0}
s_mov_b32 s{sG0}, 0
s_cmp_lt_u32 s{sWAVE}, 4
s_cselect_b32 s{sCTR}, 0, 4
s_setprio {3 if YPH else 1}
s_cbranch_scc0 L_prD
s_setprio 2
""")
a.label("L_prD")
vPE = 96


def issue_group(ent, r):
    for j in range(4):
        a(f"v_add_u32 v{ent+j}, v{ent+j}, v{vGOFF}")
    for j in range(4):
        a(f"buffer_load_dwordx4 {vr(vRING+r*16+j*4,4)}, v{ent+j}, {srd(rX)}, 0 offen")


a(f"""v_lshrrev_b32 v{vENT}, 5, v{vLANE}
v_lshlrev_b32 v{vENT}, 4, v{vENT}
s_lshl_b32 s{sT0}, s{sRW}, 8
v_add_u32 v{vENT}, s{sT0}, v{vENT}
v_cmp_gt_u32 {sp(sM1)}, {R}, v{vLANE}
s_waitcnt lgkmcnt(0)
s_barrier
""")
stamp("buckets")
a.label("L_gsetup")
for s_ in range(FS):
    a(f"ds_read_b128 {vr(vPE+4*s_,4)}, v{vENT} offset:{BK_OFF+32*s_}")
a(f"""ds_read_b32 v{vT1}, v{vT0} offset:{CNT_OFF}
ds_read_b32 v{vT3}, v{vT2} offset:{FLAG_OFF}
ds_read_b64 {vr(vOWN,2)}, v{vT4} offset:{H_OFF}
""")
for s_ in range(FS):
    a(f"s_waitcnt lgkmcnt({3+FS-1-s_})")
    issue_group(vPE + 4 * s_, s_)
a(f"""s_waitcnt lgkmcnt(0)
v_cmp_lt_u32 vcc, 64, v{vT1}
v_add_u32 v{vT1}, 1, v{vT1}
v_lshrrev_b32 v{vT1}, 1, v{vT1}
v_max_u32 v{vT1}, 1, v{vT1}
v_cndmask_b32 v{vT1}, 0, v{vT1}, {sp(sM1)}
v_readfirstlane_b32 s{sTMO}, v{vT3}
""")
for k in range(6):
    a(f"v_readlane_b32 s{sE+k}, v{vT1}, s{sRW+k}")
a(f"""s_cmp_lg_u64 vcc, 0
s_cbranch_scc1 L_slow
s_cmp_lg_u32 s{sTMO}, 0
s_cbranch_scc1 L_slow
""")
if FS:
    a(f"s_max_u32 s{sE}, s{sE}, {4*FS}")
for k in range(1, 6):
    a(f"s_add_u32 s{sE+k}, s{sE+k}, s{sE+k-1}")
a(f"""s_cmp_gt_u32 s{sE+5}, 64
s_cbranch_scc1 L_big
v_mov_b32 v{vT0}, v{vLANE}
""")


def build_list():
    a(f"v_mov_b32 v{vT2}, s{sSB}")
    for k in range(1, 6):
        a(f"""v_cmp_le_u32 vcc, s{sE+k-1}, v{vT0}
        v_mov_b32 v{vT3}, s{sSB+k}
        s_nop 0
        v_cndmask_b32 v{vT2}, v{vT2}, v{vT3}, vcc""")
    a(f"""v_lshl_add_u32 v{vT2}, v{vT0}, 3, v{vT2}
    v_mov_b32 v{vENT}, {OOB}
    v_mov_b32 v{vENT+1}, {OOB}
    v_cmp_gt_u32 vcc, s{sE+5}, v{vT0}
    s_mov_b64 exec, vcc
    ds_read_b64 {vr(vENT,2)}, v{vT2} offset:{BK_OFF}
    s_mov_b64 exec, -1
    v_lshrrev_b32 v{vT3}, 2, v{vT0}
    v_lshlrev_b32 v{vT3}, 5, v{vT3}
    v_and_b32 v{vT1}, 3, v{vT0}
    v_lshl_add_u32 v{vT3}, v{vT1}, 2, v{vT3}
    s_lshl_b32 s{sKS}, s{sWAVE}, 10
    v_add_u32 v{vT3}, s{sKS}, v{vT3}
    v_add_u32 v{vT3}, {LIST_OFF}, v{vT3}
    """)


def bases():
    a(f"s_lshl_b32 s{sSB}, s{sRW}, 8")
    for k in range(1, 6):
        a(f"""s_lshl_b32 s{sSB+k}, s{sRW+k}, 5
        s_sub_u32 s{sSB+k}, s{sSB+k}, s{sE+k-1}
        s_lshl_b32 s{sSB+k}, s{sSB+k}, 3""")


bases()
build_list()
for k in range(6):
    a(f"s_sub_u32 s{sKS}, s{sE+k}, 1\ns_bitset1_b64 {sp(sMASK)}, s{sKS}")
a(f"""s_waitcnt lgkmcnt(0)
ds_write2_b32 v{vT3}, v{vENT}, v{vENT+1} offset0:0 offset1:4
""")
a.label("L_listdone")
a(f"""s_add_u32 s{sNGT}, s{sE+5}, 3
s_lshr_b32 s{sNGT}, s{sNGT}, 2
s_max_u32 s{sREM}, s{sNGT}, {RD}
""")
a.label("L_prol")
for s in range(FS, RD):
    a(f"ds_read_b128 {vr(vPE+4*s,4)}, v{vLADDR} offset:{LIST_OFF+32*s}")
a(f"ds_read_b128 {vr(vENT,4)}, v{vLADDR} offset:{LIST_OFF+32*RD}")


def w1_tail(cnt):
    if W1TAIL:
        a(f"s_waitcnt vmcnt({cnt})")
        for ks in range(KE - NSL, KE):
            tr_w1(ks)


for s in range(FS, RD):
    a(f"s_waitcnt lgkmcnt({RD-s})" if s == FS else "s_waitcnt lgkmcnt(0)")
    issue_group(vPE + 4 * s, s)
    if s == FS:
        w1_tail(4 * (FS + 1))
stamp("gstart")


def mfma_sum(b):
    a(f"v_mfma_f32_16x16x32_bf16 {vr(vGACC,4)}, {vr(vASUM,4)}, {vr(b,4)}, {vr(vGACC,4)}")


stubs = []
drains = []
a.label("L_gloop")
for s in range(RD):
    lgo, ldr, lni = a.newlabel("L_go"), a.newlabel("L_dr"), a.newlabel("L_ni")
    drains.append((ldr, lgo))
    b = vRING + s * 16
    a(f"""s_cmp_lt_u32 s{sREM}, {RD}
    s_cbranch_scc1 {ldr}
    s_waitcnt vmcnt({4*(RD-1)})""")
    a.label(lgo)
    for j in range(4):
        ls, lb = a.newlabel("L_st"), a.newlabel("L_bk")
        stubs.append((ls, lb))
        mfma_sum(b + 4 * j)
        a(f"""s_bitcmp1_b32 s{sMASK}, {4*s+j}
        s_cbranch_scc1 {ls}""")
        a.label(lb)
    a(f"""s_cmp_lt_u32 s{sREM}, {RD+1}
    s_cbranch_scc1 {lni}
    s_waitcnt lgkmcnt(0)""")
    issue_group(vENT, s)
    a(f"ds_read_b128 {vr(vENT,4)}, v{vLADDR} offset:{LIST_OFF+32*(RD+1+s)}")
    a.label(lni)
    a(f"s_sub_u32 s{sREM}, s{sREM}, 1")
a(f"""v_add_u32 v{vLADDR}, 128, v{vLADDR}
s_lshr_b64 {sp(sMASK)}, {sp(sMASK)}, 16
s_add_u32 s{sI}, s{sI}, 1
s_cmp_eq_u32 s{sI}, 4
s_cselect_b64 {sp(sMASK)}, {sp(sMASK2)}, {sp(sMASK)}
s_cmp_lt_u32 s{sI}, 8
s_cbranch_scc1 L_gloop
s_endpgm
""")
for ls, lb in stubs:
    a.label(ls)
    a(f"s_call_b64 {sp(sRET)}, L_fin\ns_branch {lb}")
for ldr, lgo in drains:
    a.label(ldr)
    for k in range(RD - 1, 1, -1):
        ln = a.newlabel("L_dr")
        a(f"""s_cmp_lt_u32 s{sREM}, {k}
        s_cbranch_scc1 {ln}
        s_waitcnt vmcnt({4*(k-1)})
        s_branch {lgo}""")
        a.label(ln)
    a(f"s_waitcnt vmcnt(0)\ns_branch {lgo}")

a.label("L_fin")
a(f"""s_and_b32 s{sT1}, s{sROWT}, 0xff
s_lshr_b64 {sp(sROWT)}, {sp(sROWT)}, 8
s_and_b32 s{sT2}, s{sROWT}, 0xff
s_mul_i32 s{sT1}, s{sT1}, {H_STR}
s_mul_i32 s{sT2}, s{sT2}, {H_STR}
s_waitcnt lgkmcnt(0)
v_lshlrev_b32 v{vT0}, 16, v{vOWN}
v_and_b32 v{vT1}, 0xffff0000, v{vOWN}
v_lshlrev_b32 v{vT2}, 16, v{vOWN+1}
v_and_b32 v{vT3}, 0xffff0000, v{vOWN+1}
v_add_u32 v{vT4}, s{sT2}, v{vHW}
ds_read_b64 {vr(vOWN,2)}, v{vT4} offset:{H_OFF}
v_fma_f32 v{vT0}, v{vT0}, s{sEPSF}, v{vGACC}
v_fma_f32 v{vT1}, v{vT1}, s{sEPSF}, v{vGACC+1}
v_fma_f32 v{vT2}, v{vT2}, s{sEPSF}, v{vGACC+2}
v_fma_f32 v{vT3}, v{vT3}, s{sEPSF}, v{vGACC+3}
v_add_u32 v{vT4}, s{sT1}, v{vHW}
v_cvt_pk_bf16_f32 v{vT0}, v{vT0}, v{vT1}
v_cvt_pk_bf16_f32 v{vT1}, v{vT2}, v{vT3}
v_mov_b32 v{vGACC}, 0
v_mov_b32 v{vGACC+1}, 0
ds_write_b64 v{vT4}, {vr(vT0,2)} offset:{H_OFF}
v_mov_b32 v{vGACC+2}, 0
v_mov_b32 v{vGACC+3}, 0
s_sub_u32 s{sNODE}, s{sNODE}, 1
s_cmp_eq_u32 s{sNODE}, 2
s_cbranch_scc1 L_finflag
s_cmp_eq_u32 s{sNODE}, 0
s_cbranch_scc1 L_gdone
s_setpc_b64 {sp(sRET)}
""")
a.label("L_finflag")
if OT == 2:
    a(f"""s_mov_b64 exec, 1
    buffer_load_dword v{vFLG}, v{vOUTA}, {srd(rOUT)}, 0 offen
    s_mov_b64 exec, -1""")
a(f"""buffer_load_dwordx4 {vr(vFLG,4)}, v{vL16}, {srd(rWS)}, s{sFT} offen sc1
s_setpc_b64 {sp(sRET)}
""")

vACC1 = 32
vBB = 64
vW2E = 88
NE = 10


def acc1(t, T):
    return vACC1 + (t * 4 + T) * 4


w2n = [0]
tops = []


def tyounger(tag):
    i = len(tops) - 1 - tops[::-1].index(tag)
    return len(tops) - 1 - i


def w2reg(q):
    if q < NE:
        return vW2E + 4 * q
    return vW + 4 * (q - NE)


def ldw2(n):
    for _ in range(n):
        q = w2n[0]
        if q >= 32:
            return
        if (q & 1) == 0:
            a(f"""s_add_u32 s{sW2K}, s{sROT}, {q>>1}
            s_and_b32 s{sW2K}, s{sW2K}, 7
            s_lshl_b32 s{sW2K}, s{sW2K}, 11
            s_add_u32 s{sW2K}, s{sW2K}, s{sW2T}""")
        a(f"buffer_load_dwordx4 {vr(w2reg(q),4)}, v{vL16}, {srd(rWS)}, s{sW2K} offen offset:{(q&1)*1024} sc1")
        w2n[0] += 1
        tops.append("b")
        if q == 15:
            a(f"s_add_u32 s{sW2T}, s{sW2T}, 16384")


def g1(tiles, last):
    nt = len(tiles)

    def buf(ks, i):
        return vBB + ((ks % 3) * 2 + i) * 4

    def rd(ks):
        a(f"""s_add_u32 s{sKS}, s{sROT}, {ks}
        s_and_b32 s{sKS}, s{sKS}, 7
        s_lshl_b32 s{sKS}, s{sKS}, 5
        v_add_u32 v{vT0+(ks%3)}, s{sKS}, v{vG1B}""")
        for i, t in enumerate(tiles):
            a(f"ds_read_b128 {vr(buf(ks,i),4)}, v{vT0+(ks%3)} offset:{H_OFF+t*16*H_STR}")
    for ks in range(3):
        rd(ks)
    for ks in range(8):
        vm = f"vmcnt({tyounger(f'a{ks}')}) " if (not last and ks >= KE) else ""
        a(f"s_waitcnt {vm}lgkmcnt({nt*min(2, 7-ks)})")
        for i in range(nt):
            for T in range(4):
                fr = vW + ks * 16 + T * 4
                c = acc1(nt - 1, T) if ks == 0 else acc1(i, T)
                a(f"v_mfma_f32_16x16x32_bf16 {vr(acc1(i,T),4)}, {vr(fr,4)}, {vr(buf(ks,i),4)}, {vr(c,4)}")
            if not last and w1q:
                if i == nt - 1:
                    ldw1(w1q.pop(0))
            elif not last and w2n[0] < E1:
                ldw2(1)
        if ks + 3 < 8:
            rd(ks + 3)
        if last:
            ldw2(max(0, min(G1LD, NE + 4 * (ks + 1) - w2n[0])))
    a("s_nop 6")
    for i, t in enumerate(tiles):
        if t == 2:
            a("s_mov_b32 exec_lo, 0x00ff00ff\ns_mov_b32 exec_hi, 0x00ff00ff")
        for aa in range(2):
            o = vBB + (i * 2 + aa) * 4
            for hT in range(2):
                for hh in range(2):
                    s0 = acc1(i, 2 * aa + hT) + 2 * hh
                    a(f"""v_cvt_pk_bf16_f32 v{o+2*hT+hh}, v{s0}, v{s0+1}
                    v_pk_max_i16 v{o+2*hT+hh}, v{o+2*hT+hh}, 0""")
            a(f"ds_write_b128 v{vH1W}, {vr(o,4)} offset:{H1T[t]+aa*64}")
        if t == 2:
            a("s_mov_b64 exec, -1")


def arrive(off):
    a(f"""v_mov_b32 v{vT3}, s{sCTR}
    v_mov_b32 v{vT4}, 1
    s_mov_b64 exec, 1
    ds_add_u32 v{vT3}, v{vT4} offset:{off}
    s_mov_b64 exec, -1""")


def wait_ctr(off, lab):
    a(f"s_mov_b32 s{sT3}, 0\nv_mov_b32 v{vT4}, 0\ns_branch {lab}_in")
    a.label(lab)
    a("s_sleep 1")
    a.label(lab + "_in")
    a(f"""ds_read_b32 v{vT3}, v{vT4} offset:{off}
    s_add_u32 s{sT3}, s{sT3}, 1
    s_waitcnt lgkmcnt(0)
    v_readfirstlane_b32 s{sT1}, v{vT3}
    s_cmp_lt_u32 s{sT3}, 0x4000000
    s_cselect_b32 s{sT2}, 4, 0
    s_cmp_lt_u32 s{sT1}, s{sT2}
    s_cbranch_scc1 {lab}
    """)


a.label("L_gdone")
stamp("gdone")
arrive(DONE_OFF)
a(f"""s_cmp_ge_u32 s{sWAVE}, 4
s_cbranch_scc1 L_noarr
s_setprio 0
""")
a.label("L_noarr")
a(f"""s_mov_b32 s{sT3}, 0
s_mul_i32 s{sT0}, s{sEP}, {FLGM[0]}
s_mul_i32 s{sT1}, s{sEP}, {FLGM[1]}
""")
a.label("L_chk2")
a(f"""s_waitcnt vmcnt(0)
v_xor_b32 v{vFLG}, s{sT0}, v{vFLG}
v_xor_b32 v{vFLG+1}, s{sT0}, v{vFLG+1}
v_xor_b32 v{vFLG+2}, s{sT0}, v{vFLG+2}
v_xor_b32 v{vFLG+3}, s{sT0}, v{vFLG+3}
v_or3_b32 v{vT1}, v{vFLG}, v{vFLG+1}, v{vFLG+2}
v_or_b32 v{vT1}, v{vT1}, v{vFLG+3}
s_mov_b32 exec_hi, 0xffff
v_cmp_ne_u32 vcc, 0, v{vT1}
s_mov_b64 exec, -1
s_cbranch_vccnz L_w2miss
""")
a.label("L_w2ok")
tops.clear()


def ldw1(ks):
    a(f"""s_add_u32 s{sW2K}, s{sROT}, {ks}
    s_and_b32 s{sW2K}, s{sW2K}, 7
    s_lshl_b32 s{sW2K}, s{sW2K}, 12
    s_add_u32 s{sW2K}, s{sW2K}, s{sW2T}
    s_add_u32 s{sW2K}, s{sW2K}, 262144""")
    for f in range(4):
        a(f"buffer_load_dwordx4 {vr(vW+ks*16+f*4,4)}, v{vL16}, {srd(rWS)}, s{sW2K} offen offset:{f*1024} sc1")
        tops.append(f"a{ks}")


w1q = list(range(KE, 8))
if not W1IN:
    while w1q:
        ldw1(w1q.pop(0))
for T in range(4):
    a(f"ds_read_b128 {vr(acc1(1,T),4)}, v{vBIA} offset:{B1F_OFF+64*T}")
wait_ctr(DONE_OFF, "L_spA")
stamp("g02start")
g1([0, 2], False)
for T in range(4):
    a(f"ds_read_b128 {vr(acc1(0,T),4)}, v{vBIA} offset:{B1F_OFF+64*T}")
stamp("g02end")
wait_ctr(DONE_OFF + 4, "L_spB")
stamp("g1start")
g1([1], True)
arrive(DONE_OFF + 8)

vACC2 = 32
vB2B = 56


def acc2(t, T):
    return vACC2 + (t * 2 + T) * 4


a(f"""s_lshl_b32 s{sT0}, s{sWAVE}, 8
v_subrev_u32 v{vT0}, s{sT0}, v{vBIA}
v_lshlrev_b32 v{vT0}, 1, v{vT0}
s_lshl_b32 s{sT0}, s{sWAVE}, 7
v_add_u32 v{vT0}, s{sT0}, v{vT0}
ds_read_b128 {vr(acc2(2,0),4)}, v{vT0} offset:{B2F_OFF}
ds_read_b128 {vr(acc2(2,1),4)}, v{vT0} offset:{B2F_OFF+16}
""")
ldw2(2)
stamp("g1end")


def rd2(ks):
    a(f"""s_add_u32 s{sKS}, s{sROT}, {ks}
    s_and_b32 s{sKS}, s{sKS}, 7
    s_lshl_b32 s{sKS}, s{sKS}, 5
    v_add_u32 v{vT1+(ks&1)}, s{sKS}, v{vG2B}""")
    for t in range(3):
        a(f"ds_read_b128 {vr(vB2B+(ks&1)*12+t*4,4)}, v{vT1+(ks&1)} offset:{H1T[t]+(ks>>3)*512}")


vO = 88
vAB = 104
POL = ['', 'nt', 'sc1', 'sc0 sc1', 'sc1 nt'][OPOL]


def out_tile(t):
    for r in range(4):
        a(f"v_cvt_pk_bf16_f32 v{vO+t*4+r}, v{acc2(t,0)+r}, v{acc2(t,1)+r}")
    if t == 2:
        a("s_mov_b32 exec_lo, 0x00ff00ff\ns_mov_b32 exec_hi, 0x00ff00ff")
    so = ["0", f"s{sM0}", f"s{sM0+1}"][t]
    a(f"buffer_store_dwordx4 {vr(vO+t*4,4)}, v{vOUTA}, {srd(rOUT)}, {so} offen {POL}")


for half in range(2):
    if half == 1 and TM:
        assert w2n[0] == 32
        for k in range(8):
            a(f"""s_add_u32 s{sKS}, s{sROT}, {k}
            s_and_b32 s{sKS}, s{sKS}, 7
            s_lshl_b32 s{sKS}, s{sKS}, 5
            v_add_u32 v{vAB+k}, s{sKS}, v{vG2B}""")
    if half == 1:
        a(f"s_mov_b32 s{sM0}, 8192\ns_mov_b32 s{sM0+1}, 16384")
    wait_ctr(DONE_OFF + 8 + 4 * half, f"L_spG{half}")
    stamp(f"g2h{half}")
    if half == 1 and TPRIO:
        a("s_setprio 0")
    if half == 1 and TM:
        seq = [(t, k) for t in range(3) for k in range(8)]
        NBUF = 6

        def rdt(i):
            t, k = seq[i]
            a(f"ds_read_b128 {vr(vB2B+(i%NBUF)*4,4)}, v{vAB+k} offset:{H1T[t]+512}")
        for i in range(NBUF):
            rdt(i)
        for i, (t, k) in enumerate(seq):
            vm = f"vmcnt({14-2*k}) " if t == 0 else ""
            a(f"s_waitcnt {vm}lgkmcnt({min(NBUF-1, len(seq)-1-i)})")
            for T in range(2):
                fr = w2reg(2 * (8 + k) + T)
                a(f"v_mfma_f32_16x16x32_bf16 {vr(acc2(t,T),4)}, {vr(fr,4)}, {vr(vB2B+(i%NBUF)*4,4)}, {vr(acc2(t,T),4)}")
            if i + NBUF < len(seq):
                rdt(i + NBUF)
            if t > 0 and k == 2:
                out_tile(t - 1)
        a("s_nop 7")
        out_tile(2)
        continue
    rd2(8 * half)
    rd2(8 * half + 1)
    for ks in range(8 * half, 8 * half + 8):
        assert w2n[0] >= 2 * ks + 2
        a(f"s_waitcnt vmcnt({w2n[0]-2*ks-2}) lgkmcnt({3 if (ks & 7) < 7 else 0})")
        for t in range(3):
            for T in range(2):
                fr = w2reg(2 * ks + T)
                c = acc2(2, T) if ks == 0 else acc2(t, T)
                a(f"v_mfma_f32_16x16x32_bf16 {vr(acc2(t,T),4)}, {vr(fr,4)}, {vr(vB2B+(ks&1)*12+t*4,4)}, {vr(c,4)}")
            if t < 2:
                ldw2(1)
        if (ks & 7) + 2 < 8:
            rd2(ks + 2)
if not TM:
    a("s_nop 5")
    for t in range(3):
        out_tile(t)
a(f"""s_mov_b64 exec, 1
v_mov_b32 v{vT1}, s{sEP}
v_mov_b32 v{vT2}, {EPOCH_OFF}
s_lshr_b32 s{sT0}, s{sTMO}, 1
s_or_b32 s{sT0}, s{sT0}, s{sWAVE}
s_cmp_lg_u32 s{sT0}, 0
s_cbranch_scc1 L_noep
buffer_store_dword v{vT1}, v{vT2}, {srd(rWS)}, 0 offen
""")
a.label("L_noep")
if STAMPS:
    a("s_mov_b64 exec, -1")
    stamp("end")
    a(f"""s_lshl_b32 s{sT0}, s2, 10
    s_lshl_b32 s{sT1}, s{sWAVE}, 7
    s_add_u32 s{sT0}, s{sT0}, s{sT1}
    s_add_u32 s{sT0}, s{sT0}, 0x800000
    v_lshlrev_b32 v{vT1}, 2, v{vLANE}
    s_mov_b32 exec_hi, 0
    buffer_store_dword v{vSTV}, v{vT1}, {srd(rWS)}, s{sT0} offen""")
a.label("L_end")
a("s_endpgm")

a.label("L_pmiss")
a(f"""s_add_u32 s{sPC}, s{sPC}, 1
s_cmp_ge_u32 s{sPC}, {SPIN_MAX}
s_cbranch_scc1 L_ptimeout
s_sleep {PSLEEP}
""")
poll_loads()
a("s_waitcnt vmcnt(0)\ns_branch L_pchk")
a.label("L_ptimeout")
a(f"""s_mov_b64 exec, -1
v_mov_b32 v{vT1}, 0
v_mov_b32 v{vT2}, 3
ds_or_b32 v{vT1}, v{vT2} offset:{FLAG_OFF}
""")
for i in range(4):
    a(f"v_mov_b32 v{vE+i}, {EMPTY}\nv_mov_b32 v{vE2+i}, {EMPTY}")
a("s_branch L_polled")
a.label("L_setovf")
a(f"""s_and_b32 s{sMASK}, vcc_lo, 0x11111111
s_and_b32 s{sMASK+1}, vcc_hi, 0x11111111
s_mov_b64 exec, vcc""")
for i in range(4):
    a(f"v_mov_b32 v{vE+i}, {EMPTY}")
a("s_mov_b64 exec, -1\ns_branch L_noovf")
a.label("L_rescan")
a(f"""s_ff1_i32_b64 s{sT0}, {sp(sMASK)}
s_lshr_b32 s{sT1}, s{sT0}, 2
s_lshl_b32 s{sT3}, s{sWAVE}, 4
s_add_u32 s{sT1}, s{sT1}, s{sT3}
s_mul_i32 s{sT1}, s{sT1}, {EPP*4}
s_lshl_b32 s{sT3}, s{sRS}, 10
s_add_u32 s{sT1}, s{sT1}, s{sT3}
buffer_load_dwordx4 {vr(vE2,4)}, v{vL16}, {srd(rDST)}, s{sT1} offen
buffer_load_dwordx4 {vr(vE,4)}, v{vL16}, {srd(rSRC)}, s{sT1} offen
s_add_u32 s{sRS}, s{sRS}, 1
s_cmp_lt_u32 s{sRS}, 5
s_cbranch_scc1 L_rs1
s_mov_b32 s{sRS}, 0
s_bitset0_b64 {sp(sMASK)}, s{sT0}
""")
a.label("L_rs1")
a("s_waitcnt vmcnt(0)")
for i in range(4):
    a(f"""v_subrev_u32 v{vE2+i}, s{sBASE}, v{vE2+i}
    v_min_u32 v{vE2+i}, 63, v{vE2+i}
    v_lshl_or_b32 v{vE+i}, v{vE2+i}, 14, v{vE+i}""")
a("s_branch L_ins")
a.label("L_big")
a(f"""s_cmp_gt_u32 s{sE+5}, 104
s_cbranch_scc1 L_slow
""")
bases()
for rnd in range(2):
    a(f"v_add_u32 v{vT0}, {64*rnd}, v{vLANE}")
    build_list()
    a(f"""s_waitcnt lgkmcnt(0)
    ds_write2_b32 v{vT3}, v{vENT}, v{vENT+1} offset0:0 offset1:4""")
for k in range(6):
    l0, l1 = a.newlabel("L_bm"), a.newlabel("L_bm")
    a(f"""s_sub_u32 s{sKS}, s{sE+k}, 1
    s_cmp_ge_u32 s{sKS}, 64
    s_cbranch_scc1 {l0}
    s_bitset1_b64 {sp(sMASK)}, s{sKS}
    s_branch {l1}""")
    a.label(l0)
    a(f"s_bitset1_b64 {sp(sMASK2)}, s{sKS}")
    a.label(l1)
a("s_branch L_listdone")
a.label("L_w2miss")
a(f"""s_add_u32 s{sT3}, s{sT3}, 1
s_cmp_ge_u32 s{sT3}, {SPIN_MAX}
s_cbranch_scc1 L_w2self
s_sleep 2
buffer_load_dwordx4 {vr(vFLG,4)}, v{vL16}, {srd(rWS)}, s{sFT} offen sc1
s_branch L_chk2
""")
a.label("L_w2self")
a(f"""s_or_b32 s{sTMO}, s{sTMO}, 2
s_lshl_b32 s{sW2T}, s2, 19
s_add_u32 s{sW2T}, s{sW2T}, {PRIV_OFF}
s_lshl_b32 s{sF}, s{sWAVE}, 4
""")
a.label("L_selfw2")
frag_issue()
frag_finish(0)
a(f"""s_add_u32 s{sF}, s{sF}, 1
s_and_b32 s{sT0}, s{sF}, 15
s_cmp_lg_u32 s{sT0}, 0
s_cbranch_scc1 L_selfw2
s_lshl_b32 s{sT0}, s{sWAVE}, 15
s_add_u32 s{sW2T}, s{sW2T}, s{sT0}
s_mov_b32 s{sF}, 0
v_lshrrev_b32 v{vT2}, 5, v{vLANE}
v_bfe_u32 v{vT3}, v{vLANE}, 4, 1
v_lshl_add_u32 v{vT1}, v{vT3}, 4, v{vT2}
v_and_b32 v{vT3}, 15, v{vLANE}
v_lshlrev_b32 v{vT3}, 1, v{vT3}
v_lshl_add_u32 v{vT2}, v{vT1}, 13, v{vT3}
""")
a.label("L_selfw1")
a(f"""s_lshr_b32 s{sT0}, s{sF}, 2
s_lshl_b32 s{sT0}, s{sT0}, 14
s_and_b32 s{sT1}, s{sF}, 3
s_lshl_b32 s{sT1}, s{sT1}, 5
s_add_u32 s{sT0}, s{sT0}, s{sT1}
s_lshl_b32 s{sT1}, s{sWAVE}, 7
s_add_u32 s{sT0}, s{sT0}, s{sT1}
s_add_u32 s{sT1}, s{sT0}, 4096""")
for e in range(8):
    a(f"buffer_load_ushort v{vQ+e}, v{vT2}, {srd(rW1)}, s{sT0 if e<4 else sT1} offen offset:{(e&3)*1024}")
a(f"""s_lshl_b32 s{sT0}, s{sF}, 10
s_add_u32 s{sT0}, s{sT0}, s{sW2T}
s_add_u32 s{sT0}, s{sT0}, 262144
s_waitcnt vmcnt(0)""")
for e in range(4):
    a(f"v_lshl_or_b32 v{vQ+8+e}, v{vQ+2*e+1}, 16, v{vQ+2*e}")
a(f"""buffer_store_dwordx4 {vr(vQ+8,4)}, v{vL16}, {srd(rWS)}, s{sT0} offen sc1
s_add_u32 s{sF}, s{sF}, 1
s_cmp_lt_u32 s{sF}, 32
s_cbranch_scc1 L_selfw1
s_waitcnt vmcnt(0)
s_branch L_w2ok
""")

a.label("L_slow")
w1_tail(0)
vSA = vRING
vSD, vSS, vSB = vRING + 24, vRING + 25, vRING + 28
vHOFF, vLO = vRING + 26, vRING + 27
a(f"""v_mov_b32 v{vT0}, {OOB}
v_cmp_gt_u32 vcc, 32, v{vLANE}
s_mov_b32 s{sI}, 0
v_lshlrev_b32 v{vLO}, 2, v{vLANE}
v_cndmask_b32 v{vHOFF}, v{vT0}, v{vGOFF}, vcc
""")
for k in range(6):
    a(f"s_add_u32 s{sE+k}, s{sRW+k}, s{sBASE}")
a(f"""s_cmp_lt_u32 s{sWAVE}, 4
s_cselect_b32 s{sE+4}, s{sE+4}, -1
s_cselect_b32 s{sE+5}, s{sE+5}, -1""")
for r in range(24):
    a(f"v_mov_b32 v{vSA+r}, 0")
a.label("L_sloop")
a(f"""buffer_load_dword v{vSD}, v{vLO}, {srd(rDST)}, s{sI} offen
buffer_load_dword v{vSS}, v{vLO}, {srd(rSRC)}, s{sI} offen
s_waitcnt vmcnt(0)
v_lshlrev_b32 v{vSS}, 9, v{vSS}
""")
for n in range(6):
    l0, l1 = a.newlabel("L_s"), a.newlabel("L_s")
    a(f"v_cmp_eq_u32 {sp(sM0)}, s{sE+n}, v{vSD}")
    a.label(l0)
    a(f"""s_nop 3
    s_cmp_eq_u64 {sp(sM0)}, 0
    s_cbranch_scc1 {l1}
    s_ff1_i32_b64 s{sT1}, {sp(sM0)}
    s_bitset0_b64 {sp(sM0)}, s{sT1}
    v_readlane_b32 s{sT2}, v{vSS}, s{sT1}
    s_nop 4
    buffer_load_dwordx4 {vr(vSB,4)}, v{vHOFF}, {srd(rX)}, s{sT2} offen
    s_waitcnt vmcnt(0)
    v_mfma_f32_16x16x32_bf16 {vr(vSA+4*n,4)}, {vr(vASUM,4)}, {vr(vSB,4)}, {vr(vSA+4*n,4)}
    s_nop 7
    s_branch {l0}""")
    a.label(l1)
a(f"""s_add_u32 s{sI}, s{sI}, 256
s_cmp_lt_u32 s{sI}, 640000
s_cbranch_scc1 L_sloop
s_nop 7
""")
for n in range(6):
    for r in range(4):
        a(f"v_mov_b32 v{vGACC+r}, v{vSA+4*n+r}")
    a(f"s_call_b64 {sp(sRET)}, L_fin")
a("s_endpgm")

hdr = open("cdna_kernels/%s.s.ref" % NAME).read().split("; Override launch")[0]
out = hdr + f"""; @launch grid=({NB},1,1) block=(512,1,1) lds={LDS_BYTES}
.amdgcn_target "amdgcn-amd-amdhsa--gfx950"
.text
.globl {NAME}_kernel
.p2align 8
.type {NAME}_kernel,@function
{NAME}_kernel:
""" + "\n".join(a.lines) + f"""
.section .rodata,"a"
.p2align 6
.amdhsa_kernel {NAME}_kernel
  .amdhsa_next_free_vgpr {NVGPR}
  .amdhsa_next_free_sgpr 102
  .amdhsa_accum_offset {NVGPR}
  .amdhsa_group_segment_fixed_size 0
  .amdhsa_kernarg_size 88
  .amdhsa_user_sgpr_count 2
  .amdhsa_user_sgpr_kernarg_segment_ptr 1
  .amdhsa_system_sgpr_workgroup_id_x 1
.end_amdhsa_kernel
"""
dst = [x for x in sys.argv[1:] if not x.startswith("--")]
open(dst[0] if dst else f"cdna_kernels/{NAME}.s", "w").write(out)
print("stamps:", stamp_idx[0], " ".join(f"{i}:{n}" for i, n in enumerate(stamp_names)))
```

```python
import sys

NAME = "gather_scatter__isomorphism_gin_2__graph"
NB = 250
R = 40
EPP = 1280
NP = 125
CAP = 16
TBL_BLOCK = 8192
NH = 128
HWV = 3
HB = 8
EPOCH_OFF = 0
W2T_OFF = 0x10000
FLG_OFF = 0x1000
TBL_OFF = 0x100000
PRIV_OFF = 0x1000000
WS_BYTES = PRIV_OFF + NB * 524288
TAGC = [0x000, 0x555, 0xAAA, 0x3C3]
FLGM = [0x9E3779B1, 0x85EBCA77]
EMPTY = 0xfc000
OVFM = 0xf8000

CNT_OFF = 0
FLAG_OFF = 256
DONE_OFF = 264
B1F_OFF = 512
B2F_OFF = 2560
BK_OFF = 3584
H_OFF = BK_OFF + 10240
H_STR = 528
LIST_OFF = H_OFF + 40 * H_STR
H1_OFF = LIST_OFF + 8192
H1_STR = 1040
BT_OFF = H1_OFF
BC_OFF = BT_OFF + 16384
NSL = 3
H1T = {0: 0, 2: 16 * H1_STR, 1: 24 * H1_STR}
ST_OFF = BC_OFF + 1024
LDS_BYTES = ST_OFF + 8 * NSL * 4096
assert H1_OFF + 48 * H1_STR <= LDS_BYTES <= 163840 and ST_OFF % 128 == 0

OOB = 0x7F000000
STAMPS = "--stamps" in sys.argv
SPIN_MAX = 100000
RD = 4


def opt(name, default):
    for x in sys.argv:
        if x.startswith("--" + name + "="):
            return int(x.split("=")[1])
    return default


PSLEEP = opt("psleep", 4)
OWNPOS = opt("ownpos", 4)
POLLK = opt("pollk", 2)
CHKK = opt("chkk", 3)
W1T = opt("w1t", 1)
E1 = opt("e1", 10)
G1LD = opt("g1ld", 1)
HINT = opt("hint", 1)
YPH = 0
PREY = opt("prey", 4)
TPRIO = opt("tprio", 1)
CPF = opt("cpf", 2)
OT = opt("ot", 0)
W1TAIL = opt("w1tail", 1)
NPF = opt("npf", 0)
OSE = opt("ose", 1)
EWM = opt("ewm", 0)
OPR = opt("opr", 0)
TM = opt("tm", 1)
FS = opt("fs", 1)
W1IN = opt("w1in", 1)
OPOL = opt("opol", 2)
TT = opt("tt", 0)
KE = opt("ke", 6)
STW = opt("stw", 8)
MID = opt("mid", 0)
YG0 = opt("yg0", 0)
YPRE = opt("ypre", 3)


class Asm:
    def __init__(self):
        self.lines = []
        self.n = 0

    def __call__(self, s):
        for l in s.strip().split("\n"):
            self.lines.append("    " + l.strip())

    def label(self, l):
        self.lines.append(l + ":")

    def newlabel(self, p="L"):
        self.n += 1
        return f"{p}_{self.n}"


a = Asm()

sTMO = 3
sTAG = 4
sX, sSRC, sDST, sEPS, sW1, sB1, sW2, sB2 = 8, 10, 12, 14, 16, 18, 20, 22
sOUT, sDBG, sWS = 24, 26, 28
sEP, sKS = 30, 31
rX, rSRC, rDST, rW1, rW2, rOUT, rWS = 32, 36, 40, 44, 48, 52, 56
sWAVE = 60
sROT = 61
sSTG = 62
sT0, sT1, sT2, sT3 = 63, 64, 65, 66
sW2T = 67
sM0, sM1, sM2, sM3 = 68, 70, 72, 74
sMASK, sMASK2 = 76, 78
sREM, sI, sNODE, sPC, sEPSF, sF = 80, 81, 82, 83, 86, 87
sRET = 88
sPM = 90
sRT = 68
sEXM = 92
sSTAMP = 94
vST0 = 31
sBASE = 96
sW2K = 97
sST0 = 94
sFT = 100
sCTR = 101
sG0 = 84
sPR = 84
sHLP = 93
sRS = 92
sDMP = 98
sPH = 98
sNGT = 29
sTSEL = 28
sRET2 = 92
sSELLO, sSELHI = 85, 99
sE = 8
sSB = 14
sROWT = 20
sRW = 22


def srd(r):
    return f"s[{r}:{r+3}]"


def sp(r):
    return f"s[{r}:{r+1}]"


def vr(r, n):
    return f"v[{r}:{r+n-1}]"


vLANE, vG, vN = 1, 2, 3
vOUTA, vFLG = 0, 124
vT0, vT1, vT2, vT3 = 4, 5, 6, 7
vASUM, vGACC, vENT = 8, 12, 16
vGOFF, vLADDR, vHW, vG1B, vH1W, vG2B, vSTV, vT4, vL16, vBIA, vOWN = 20, 21, 22, 23, 24, 25, 26, 27, 28, 29, 30
vH1W2 = 2
vWA = 3
vRING = 32
vW = 128
NVGPR = 256
vOA, vOB = 122, 123
vTR = 124
vT16 = 120
vU = 121
vOR = 96
vBL = 108
vQ = 80
vPA = 119

stamp_idx = [1]
stamp_names = ["entry"]


def stamp(name="s", idx=None):
    if not STAMPS:
        return None
    if idx is None:
        idx = stamp_idx[0]
        stamp_idx[0] += 1
        stamp_names.append(name)
    a(f"""{'s_memtime' if '--cyc' in sys.argv else 's_memrealtime'} {sp(sSTAMP)}
    s_waitcnt lgkmcnt(0)
    v_writelane_b32 v{vSTV}, s{sSTAMP}, {idx}""")
    return idx


def mksrd(r, p, size):
    a(f"""s_mov_b32 s{r}, s{p}
    s_and_b32 s{r+1}, s{p+1}, 0xffff
    s_mov_b32 s{r+2}, {size}
    s_mov_b32 s{r+3}, 0x00020000""")


def cpf_block():
    a(f"""s_cmp_lg_u32 s{sWAVE}, 7
    s_cbranch_scc1 L_nocpf
    s_getpc_b64 {sp(sM1)}""")
    a.label("L_cpf")
    a(f"""v_lshlrev_b32 v{vT1}, 7, v{vLANE}
    global_load_dword v{vOWN+1}, v{vT1}, {sp(sM1)}
    v_add_u32 v{vT1}, 8192, v{vT1}
    v_min_u32 v{vT1}, L_end-L_cpf, v{vT1}
    s_mov_b32 exec_hi, 0
    global_load_dword v{vOWN+1}, v{vT1}, {sp(sM1)}
    s_mov_b64 exec, -1""")
    a.label("L_nocpf")


a(f"""s_cmp_ge_u32 s2, {NB}
s_cbranch_scc1 L_end""")
if STAMPS:
    a(f"s_memrealtime {sp(sST0)}\nv_mov_b32 v{vSTV}, 0")
a(f"""s_load_dwordx16 s[8:23], s[0:1], 0
s_load_dwordx4 s[24:27], s[0:1], 64
s_load_dwordx2 s[28:29], s[0:1], 80
v_and_b32 v{vLANE}, 63, v0
v_lshrrev_b32 v{vT0}, 6, v0
v_lshrrev_b32 v{vG}, 4, v{vLANE}
v_readfirstlane_b32 s{sWAVE}, v{vT0}
v_and_b32 v{vN}, 15, v0
s_mul_i32 s{sBASE}, s2, {R}
""")
if CPF == 2:
    cpf_block()
a(f"""v_lshlrev_b32 v{vL16}, 4, v{vLANE}
v_lshlrev_b32 v{vT16}, 4, v0
v_mov_b32 v{vRING}, {EMPTY}
v_mov_b32 v{vRING+1}, {EMPTY}
v_mov_b32 v{vRING+2}, {EMPTY}
v_mov_b32 v{vRING+3}, {EMPTY}
ds_write_b128 v{vT16}, {vr(vRING,4)} offset:{BT_OFF}
ds_write_b128 v{vT16}, {vr(vRING,4)} offset:{BT_OFF+8192}
v_mov_b32 v{vENT}, {OOB}
v_mov_b32 v{vENT+1}, {OOB}
v_mov_b32 v{vENT+2}, {OOB}
v_mov_b32 v{vENT+3}, {OOB}
ds_write_b128 v{vT16}, {vr(vENT,4)} offset:{BK_OFF}
v_mov_b32 v{vT1}, 0
v_lshlrev_b32 v{vT2}, 2, v0
v_cmp_gt_u32 vcc, 256, v0
s_and_saveexec_b64 {sp(sM0)}, vcc
ds_write_b32 v{vT2}, v{vT1} offset:{BC_OFF}
v_cmp_gt_u32 vcc, 128, v0
s_and_b64 exec, exec, vcc
ds_write_b128 v{vT16}, {vr(vENT,4)} offset:{BK_OFF+8192}
ds_write_b32 v{vT2}, v{vT1} offset:{CNT_OFF}
s_mov_b64 exec, {sp(sM0)}
s_lshr_b32 s{sPR}, s2, 4
s_lshl_b32 s{sPR}, s{sPR}, 3
s_and_b32 s{sT0}, s2, 7
s_add_u32 s{sPR}, s{sPR}, s{sT0}
s_lshl_b32 s{sF}, s{sPR}, 1
s_lshr_b32 s{sT0}, s{sWAVE}, 2
s_add_u32 s{sF}, s{sF}, s{sT0}
s_and_b32 s{sT0}, s{sWAVE}, 3
s_cmp_eq_u32 s{sT0}, 3
s_cselect_b32 s{sHLP}, 1, 0
s_cmp_lt_u32 s{sF}, 128
s_cselect_b32 s{sHLP}, s{sHLP}, 0
s_bitcmp1_b32 s2, 3
s_cselect_b32 s{sHLP}, s{sHLP}, 0
s_cselect_b32 s{sPR}, 255, s{sPR}
s_mul_i32 s{sT0}, s{sPR}, {EPP*4}
s_mul_i32 s{sT1}, s{sWAVE}, 640
s_add_u32 s{sT0}, s{sT0}, s{sT1}
v_lshlrev_b32 v{vT2}, 2, v{vLANE}
s_lshr_b32 s{sROT}, s2, 4
s_bfe_u32 s{sT1}, s2, 0x10003
s_lshl_b32 s{sT1}, s{sT1}, 2
s_add_u32 s{sROT}, s{sROT}, s{sT1}
s_lshr_b32 s{sDMP}, s2, 4
s_add_u32 s{sDMP}, s{sDMP}, s2
s_and_b32 s{sDMP}, s{sDMP}, 7
s_and_b32 s{sT1}, s2, 0x88
s_or_b32 s{sDMP}, s{sDMP}, s{sT1}
s_mov_b32 s{rSRC+2}, 640000
s_mov_b32 s{rSRC+3}, 0x00020000
s_mov_b32 s{rDST+2}, 640000
s_mov_b32 s{rDST+3}, 0x00020000
s_waitcnt lgkmcnt(0)
s_mov_b32 s{rDST}, s{sDST}
s_and_b32 s{rDST+1}, s{sDST+1}, 0xffff
s_mov_b32 s{rSRC}, s{sSRC}
s_and_b32 s{rSRC+1}, s{sSRC+1}, 0xffff
""")
if STAMPS:
    a(f"v_writelane_b32 v{vSTV}, s{sST0}, 0")
vD, vS, vBI, vSL = 32, 36, 40, 44
a(f"""s_cmp_ge_u32 s{sPR}, {NP}
s_cbranch_scc1 L_noedge
buffer_load_dword v{vD}, v{vT2}, {srd(rDST)}, s{sT0} offen
buffer_load_dword v{vD+1}, v{vT2}, {srd(rDST)}, s{sT0} offen offset:256
buffer_load_dword v{vS}, v{vT2}, {srd(rSRC)}, s{sT0} offen
buffer_load_dword v{vS+1}, v{vT2}, {srd(rSRC)}, s{sT0} offen offset:256
s_mov_b32 exec_hi, 0
buffer_load_dword v{vD+2}, v{vT2}, {srd(rDST)}, s{sT0} offen offset:512
buffer_load_dword v{vS+2}, v{vT2}, {srd(rSRC)}, s{sT0} offen offset:512
s_mov_b64 exec, -1
""")
a.label("L_noedge")
a(f"""s_load_dword s{sEP}, {sp(sWS)}, {EPOCH_OFF}
s_load_dword s{sEPSF}, {sp(sEPS)}, 0
""")
if OT == 1:
    a(f"""s_lshl_b32 s{sT1}, s{sBASE}, 9
    s_load_dword s{sRS}, {sp(sOUT)}, s{sT1}""")
mksrd(rW1, sW1, 262144)
mksrd(rX, sX, 5120000)
a("s_barrier")
if CPF == 1:
    cpf_block()
NEARLY = 0
if TT:
    a(f"""s_lshl_b32 s{sT0}, s2, 14
    s_lshl_b32 s{sT1}, s{sWAVE}, 11
    s_add_u32 s{sT0}, s{sT0}, s{sT1}
    s_add_u32 s{sT0}, s{sT0}, {TBL_OFF}
    v_lshlrev_b32 v{vT1}, 7, v{vLANE}
    v_add_u32 v{vT1}, s{sT0}, v{vT1}
    s_mov_b64 exec, 0xffff
    global_load_dword v{vOWN}, v{vT1}, {sp(sWS)} sc1
    s_mov_b64 exec, -1""")
    NEARLY += 1
if W1T:
    a(f"""s_and_b32 s{sT0}, s2, 0xf8
    s_add_u32 s{sT0}, s{sT0}, s{sWAVE}
    s_lshl_b32 s{sT0}, s{sT0}, 10
    v_lshlrev_b32 v{vT1}, 7, v{vLANE}
    s_mov_b64 exec, 0xff
    buffer_load_dword v{vOWN}, v{vT1}, {srd(rW1)}, s{sT0} offen
    s_mov_b64 exec, -1""")
    NEARLY += 1


def own_loads():
    a(f"""s_mul_i32 s{sT0}, s{sWAVE}, 5
    s_add_u32 s{sT0}, s{sT0}, s{sBASE}
    s_lshl_b32 s{sT0}, s{sT0}, 9
    buffer_load_dwordx4 {vr(vOR,4)}, v{vL16}, {srd(rX)}, s{sT0} offen
    buffer_load_dwordx4 {vr(vOR+4,4)}, v{vL16}, {srd(rX)}, s{sT0} offen offset:1024
    s_mov_b32 exec_hi, 0
    buffer_load_dwordx4 {vr(vOR+8,4)}, v{vL16}, {srd(rX)}, s{sT0} offen offset:2048
    s_mov_b64 exec, -1
    """)


def own_store():
    a(f"""v_lshrrev_b32 v{vT1}, 5, v{vLANE}
    s_mul_i32 s{sT0}, s{sWAVE}, 5
    v_add_u32 v{vT1}, s{sT0}, v{vT1}
    v_mul_u32_u24 v{vT1}, {H_STR}, v{vT1}
    s_lshl_b32 s{sT0}, s{sROT}, 5
    v_subrev_u32 v{vT2}, s{sT0}, v{vGOFF}
    v_and_b32 v{vT2}, 0xf0, v{vT2}
    v_and_b32 v{vT3}, 0x100, v{vGOFF}
    v_add3_u32 v{vT1}, v{vT1}, v{vT2}, v{vT3}
    ds_write_b128 v{vT1}, {vr(vOR,4)} offset:{H_OFF}
    ds_write_b128 v{vT1}, {vr(vOR+4,4)} offset:{H_OFF+2*H_STR}
    s_mov_b32 exec_hi, 0
    ds_write_b128 v{vT1}, {vr(vOR+8,4)} offset:{H_OFF+4*H_STR}
    s_mov_b64 exec, -1""")


if OWNPOS == 0:
    own_loads()
    NEARLY += 3
a(f"""s_sub_u32 s{sT2}, s{sWAVE}, 1
s_cmp_ge_u32 s{sT2}, 2
s_cbranch_scc1 L_nbl
s_cmp_eq_u32 s{sT2}, 0
s_cselect_b32 s{sM0}, s{sB1}, s{sB2}
s_cselect_b32 s{sM0+1}, s{sB1+1}, s{sB2+1}
s_cselect_b32 exec_hi, -1, 0
global_load_dwordx4 {vr(vBL,4)}, v{vL16}, {sp(sM0)}
s_mov_b64 exec, -1
""")

def frag_issue():
    a(f"""v_lshrrev_b32 v{vT2}, 5, v{vLANE}
    v_bfe_u32 v{vT3}, v{vLANE}, 4, 1
    v_lshl_add_u32 v{vT1}, v{vT3}, 4, v{vT2}
    s_and_b32 s{sT1}, s{sF}, 7
    s_lshl_b32 s{sT1}, s{sT1}, 1
    s_and_b32 s{sT0}, s{sF}, 8
    s_lshl_b32 s{sT0}, s{sT0}, 2
    s_add_u32 s{sT1}, s{sT1}, s{sT0}
    v_add_u32 v{vT1}, s{sT1}, v{vT1}
    v_lshrrev_b32 v{vT2}, 2, v{vT1}
    v_and_b32 v{vT1}, 3, v{vT1}
    v_lshlrev_b32 v{vT2}, 14, v{vT2}
    v_lshl_add_u32 v{vT2}, v{vT1}, 11, v{vT2}
    v_and_b32 v{vT1}, 15, v{vLANE}
    v_lshl_add_u32 v{vT2}, v{vT1}, 2, v{vT2}
    s_lshr_b32 s{sT0}, s{sF}, 4
    s_lshl_b32 s{sT0}, s{sT0}, 6
    s_add_u32 s{sT1}, s{sT0}, 8192
    """)
    for e in range(8):
        a(f"buffer_load_dword v{vQ+e}, v{vT2}, {srd(rW2)}, s{sT0 if e<4 else sT1} offen offset:{(e&3)*512}")


def frag_finish(cnt):
    a(f"""s_lshl_b32 s{sT0}, s{sF}, 11
    s_add_u32 s{sT0}, s{sT0}, s{sW2T}
    s_mov_b32 s{sSELLO}, 0x05040100
    s_mov_b32 s{sSELHI}, 0x07060302
    s_waitcnt vmcnt({cnt})
    """)
    for e in range(4):
        a(f"""v_perm_b32 v{vQ+8+e}, v{vQ+2*e+1}, v{vQ+2*e}, s{sSELLO}
        v_perm_b32 v{vQ+12+e}, v{vQ+2*e+1}, v{vQ+2*e}, s{sSELHI}""")
    a(f"""buffer_store_dwordx4 {vr(vQ+8,4)}, v{vL16}, {srd(rWS)}, s{sT0} offen sc1
    buffer_store_dwordx4 {vr(vQ+12,4)}, v{vL16}, {srd(rWS)}, s{sT0} offen offset:1024 sc1
    s_nop 1""")


a.label("L_nbl")
mksrd(rW2, sW2, 262144)
a(f"""s_cmp_eq_u32 s{sHLP}, 0
s_cbranch_scc1 L_nohelp0
""")
frag_issue()
a.label("L_nohelp0")
mksrd(rWS, sWS, WS_BYTES)
mksrd(rOUT, sOUT, 5120000)
a(f"""s_mov_b32 s{sW2T}, {W2T_OFF}
v_lshrrev_b32 v{vT1}, 1, v{vG}
v_and_b32 v{vT2}, 1, v{vG}
v_lshl_add_u32 v{vU}, v{vT2}, 4, v{vT1}
s_lshl_b32 s{sT0}, s{sWAVE}, 7
s_mul_i32 s{sSTG}, s{sWAVE}, {NSL*4096}
s_add_u32 s{sSTG}, s{sSTG}, {ST_OFF}
v_lshrrev_b32 v{vT1}, 3, v{vLANE}
v_and_b32 v{vT3}, 2, v{vT1}
v_and_b32 v{vT4}, 7, v{vLANE}
v_xor_b32 v{vT4}, v{vT4}, v{vT3}
v_lshlrev_b32 v{vOA}, 10, v{vT1}
v_add_u32 v{vOA}, s{sT0}, v{vOA}
v_xor_b32 v{vT3}, 4, v{vT4}
v_lshl_add_u32 v{vOB}, v{vT3}, 4, v{vOA}
v_add_u32 v{vOB}, 0x20000, v{vOB}
v_lshl_add_u32 v{vOA}, v{vT4}, 4, v{vOA}
v_and_b32 v{vGOFF}, 31, v{vLANE}
v_lshlrev_b32 v{vGOFF}, 4, v{vGOFF}
""")
a(f"""v_lshrrev_b32 v{vT1}, 1, v{vG}
v_lshrrev_b32 v{vLADDR}, 5, v{vLANE}
v_lshlrev_b32 v{vLADDR}, 4, v{vLADDR}
s_lshl_b32 s{sT0}, s{sWAVE}, 10
v_add_u32 v{vLADDR}, s{sT0}, v{vLADDR}
s_lshl_b32 s{sT1}, s{sROT}, 1
v_subrev_u32 v{vHW}, s{sT1}, v{vN}
v_and_b32 v{vHW}, 15, v{vHW}
v_lshl_add_u32 v{vHW}, v{vT1}, 4, v{vHW}
v_lshlrev_b32 v{vHW}, 4, v{vHW}
v_lshl_add_u32 v{vHW}, v{vT2}, 3, v{vHW}
v_mul_u32_u24 v{vG1B}, {H_STR}, v{vN}
v_lshl_add_u32 v{vG1B}, v{vU}, 4, v{vG1B}
v_mul_u32_u24 v{vT3}, {H1_STR}, v{vN}
v_add_u32 v{vT3}, {H1_OFF}, v{vT3}
v_lshl_add_u32 v{vG2B}, v{vU}, 4, v{vT3}
s_lshl_b32 s{sT0}, s{sWAVE}, 7
s_and_b32 s{sT0}, s{sT0}, 0x300
v_add_u32 v{vH1W}, s{sT0}, v{vT3}
s_lshl_b32 s{sT0}, s{sWAVE}, 8
v_lshlrev_b32 v{vBIA}, 4, v{vG}
v_add_u32 v{vBIA}, s{sT0}, v{vBIA}
v_lshrrev_b32 v{vT1}, 2, v{vN}
v_and_b32 v{vT3}, 2, v{vT1}
v_lshl_add_u32 v{vT3}, v{vT2}, 2, v{vT3}
v_lshlrev_b32 v{vT4}, 10, v{vG}
v_lshl_add_u32 v{vT4}, v{vT1}, 7, v{vT4}
v_and_b32 v{vT1}, 3, v{vN}
v_lshl_add_u32 v{vT4}, v{vT1}, 3, v{vT4}
v_add_u32 v{vT4}, s{sSTG}, v{vT4}
""")
for T in range(4):
    a(f"""v_xor_b32 v{vT1}, {2*T}, v{vT3}
    v_lshl_add_u32 v{vTR+T}, v{vT1}, 4, v{vT4}""")
a(f"""v_mov_b32 v{vT3}, 0x3f80
v_and_b32 v{vT0}, 1, v{vN}
v_lshlrev_b32 v{vT0}, 4, v{vT0}
v_lshlrev_b32 v{vT3}, v{vT0}, v{vT3}
v_lshlrev_b32 v{vT1}, 2, v{vT2}
v_lshrrev_b32 v{vT0}, 1, v{vN}
v_sub_u32 v{vT0}, v{vT0}, v{vT1}
""")
for r in range(4):
    a(f"""v_cmp_eq_u32 vcc, {r}, v{vT0}
    v_mov_b32 v{vGACC+r}, 0
    s_nop 0
    v_cndmask_b32 v{vASUM+r}, 0, v{vT3}, vcc""")
a(f"""v_cmp_gt_u32 vcc, 500, v0
s_mov_b64 {sp(sPM)}, vcc
s_lshl_b32 s{sFT}, s2, 13
s_add_u32 s{sFT}, s{sFT}, {TBL_OFF}
s_cmp_ge_u32 s{sPR}, {NP}
s_cbranch_scc1 L_stream
s_lshl_b32 s{sT0}, s{sPR}, 6
s_add_u32 s{sT0}, s{sT0}, {TBL_OFF}
v_lshrrev_b32 v{vT2}, 2, v0
v_lshlrev_b32 v{vT3}, 2, v{vT2}
v_and_b32 v{vT1}, 3, v0
v_lshlrev_b32 v{vT1}, 4, v{vT1}
v_lshl_add_u32 v{vT2}, v{vT2}, 13, v{vT1}
v_mov_b32 v{vT4}, 1
s_setprio 3
s_sub_u32 s{sT2}, s{sWAVE}, 1
s_cmp_lt_u32 s{sT2}, 2
s_cbranch_scc1 L_ew1
s_waitcnt vmcnt({NEARLY})
""")
a.label("L_ew1")
a(f"s_waitcnt vmcnt({NEARLY+1})")
stamp("edges")


def mktags():
    a(f"s_add_u32 s{sEP}, s{sEP}, 1")
    for i in range(4):
        a(f"s_add_u32 s{sTAG+i}, s{sEP}, {TAGC[i]}\ns_lshl_b32 s{sTAG+i}, s{sTAG+i}, 20")


for i in range(3):
    if i == 2:
        a("s_mov_b32 exec_hi, 0")
    a(f"""v_mul_u32_u24 v{vBI+i}, 0xcccd, v{vD+i}
    v_lshrrev_b32 v{vBI+i}, 21, v{vBI+i}
    v_lshlrev_b32 v{vT1}, 2, v{vBI+i}
    ds_add_rtn_u32 v{vSL+i}, v{vT1}, v{vT4} offset:{BC_OFF}""")
a("s_mov_b64 exec, -1")
for i in range(3):
    a(f"""v_mul_u32_u24 v{vT1}, {R}, v{vBI+i}
    v_sub_u32 v{vT1}, v{vD+i}, v{vT1}
    v_lshl_or_b32 v{vS+i}, v{vT1}, 14, v{vS+i}
    v_lshlrev_b32 v{vBI+i}, 6, v{vBI+i}""")
a("s_waitcnt lgkmcnt(0)")
for i in range(3):
    if i == 2:
        a("s_mov_b32 exec_hi, 0")
    a(f"""v_min_u32 v{vT1}, {CAP-1}, v{vSL+i}
    v_lshl_add_u32 v{vT1}, v{vT1}, 2, v{vBI+i}
    ds_write_b32 v{vT1}, v{vS+i} offset:{BT_OFF}""")
a("s_mov_b64 exec, -1")
mktags()
a(f"""v_mov_b32 v{vT1}, {OVFM}
s_waitcnt lgkmcnt(0)
s_barrier""")
NT = 64 * STW
NK = 1024 // NT
WO = 64
if STW < 8:
    a(f"s_cmp_ge_u32 s{sWAVE}, {STW}\ns_cbranch_scc1 L_nostore")
for k in range(NK):
    a(f"""ds_read_b128 {vr((32 if NK <= 4 else 48)+4*k,4)}, v{vT16} offset:{BT_OFF+NT*16*k}""")
    if NK > 4 and k == 3:
        pass
for k in range(NK):
    a(f"ds_read_b32 v{(112 if NK <= 4 else 40)+k}, v{vT3} offset:{BC_OFF+NT*k}")
a("s_waitcnt lgkmcnt(0)")
for k in range(NK):
    vE = (32 if NK <= 4 else 48) + 4 * k
    vC = (112 if NK <= 4 else 40) + k
    a(f"""v_cmp_lt_u32 vcc, {CAP}, v{vC}
    v_or_b32 v{vE+1}, s{sTAG+1}, v{vE+1}
    v_or_b32 v{vE+2}, s{sTAG+2}, v{vE+2}
    v_cndmask_b32 v{vE}, v{vE}, v{vT1}, vcc
    v_or_b32 v{vE+3}, s{sTAG+3}, v{vE+3}
    v_or_b32 v{vE}, s{sTAG}, v{vE}""")
    if k == NK - 1:
        a(f"""v_cmp_gt_u32 vcc, {1000 - NT*(NK-1)}, v0
        s_mov_b64 exec, vcc""")
    a(f"""buffer_store_dwordx4 {vr(vE,4)}, v{vT2}, {srd(rWS)}, s{sT0} offen sc1
    s_add_u32 s{sT0}, s{sT0}, {(NT//4)*TBL_BLOCK}""")
a("s_nop 1")
a.label("L_nostore")
a("s_mov_b64 exec, -1\ns_setprio 0")
stamp("published")
a.label("L_stream")


ops = []


def younger(tag):
    i = len(ops) - 1 - ops[::-1].index(tag)
    return len(ops) - 1 - i


def dma_w1(ks):
    a(f"""s_add_u32 s{sKS}, s{sROT}, {ks}
    s_and_b32 s{sKS}, s{sKS}, 7
    s_lshl_b32 s{sKS}, s{sKS}, 14
    s_add_u32 s{sT3}, s{sKS}, 8192""")
    for g in range(4):
        a(f"""s_add_u32 m0, s{sSTG}, {(ks%NSL)*4096+g*1024}
        s_nop 0
        buffer_load_dwordx4 v{vOB if g&1 else vOA}, {srd(rW1)}, s{sT3 if g>>1 else sKS} offen lds""")
        ops.append(f"d{ks}")


def tr_w1(ks):
    for T in range(4):
        for jh in range(2):
            d = vW + ks * 16 + T * 4 + jh * 2
            a(f"ds_read_b64_tr_b16 {vr(d,2)}, v{vTR+T} offset:{(ks%NSL)*4096+jh*512}")


vE = vRING + 8
vE2 = vRING + 24
vLD, vSL, vAD = vRING + 12, vRING + 16, vRING + 20
masks = [sM0, sM1, sM2, sM3]


def poll_loads():
    a(f"buffer_load_dwordx4 {vr(vE,4)}, v{vT16}, {srd(rWS)}, s{sFT} offen sc1")


def poll_check_and_insert():
    a(f"""s_cmp_lt_u32 s{sPR}, {NP}
    s_cbranch_scc1 L_hastag""")
    mktags()
    a.label("L_hastag")
    a(f"""s_mov_b32 s{sPC}, 0
    s_mov_b32 s{sT2}, 0x100000
    v_mov_b32 v{vT4}, 1
    s_mov_b64 {sp(sMASK)}, 0
    s_mov_b32 s{sRS}, 0
    s_mov_b64 exec, {sp(sPM)}
    s_waitcnt vmcnt({younger('p')})""")
    a.label("L_pchk")
    for i in range(4):
        a(f"v_xor_b32 v{vE+i}, s{sTAG+i}, v{vE+i}")
    a(f"""v_or3_b32 v{vT1}, v{vE}, v{vE+1}, v{vE+2}
    v_or_b32 v{vT1}, v{vT1}, v{vE+3}
    v_cmp_le_u32 vcc, s{sT2}, v{vT1}
    s_and_b64 exec, exec, vcc
    s_cbranch_execnz L_pmiss
    """)
    a.label("L_polled")
    a(f"""s_mov_b64 exec, -1
    v_cmp_eq_u32 vcc, {OVFM}, v{vE}
    s_cbranch_vccnz L_setovf
    """)
    a.label("L_noovf")
    stamp("polled")
    a.label("L_ins")
    for i in range(4):
        a(f"""v_bfe_u32 v{vLD+i}, v{vE+i}, 14, 6
        v_cmp_gt_u32 {sp(masks[i])}, {R}, v{vLD+i}
        v_lshlrev_b32 v{vAD+i}, 2, v{vLD+i}""")
    for i in range(4):
        a(f"""s_mov_b64 exec, {sp(masks[i])}
        ds_add_rtn_u32 v{vSL+i}, v{vAD+i}, v{vT4} offset:{CNT_OFF}""")
    a("s_mov_b64 exec, -1")
    for i in range(4):
        a(f"""v_and_b32 v{vE+i}, 0x3fff, v{vE+i}
        v_lshlrev_b32 v{vE+i}, 9, v{vE+i}
        v_lshlrev_b32 v{vAD+i}, 8, v{vLD+i}""")
    a("s_waitcnt lgkmcnt(0)")
    for i in range(4):
        a(f"""v_min_u32 v{vSL+i}, 63, v{vSL+i}
        v_lshl_add_u32 v{vAD+i}, v{vSL+i}, 2, v{vAD+i}""")
    for i in range(4):
        a(f"""s_mov_b64 exec, {sp(masks[i])}
        ds_write_b32 v{vAD+i}, v{vE+i} offset:{BK_OFF}""")
    a(f"""s_mov_b64 exec, -1
    s_cmp_lg_u64 {sp(sMASK)}, 0
    s_cbranch_scc1 L_rescan
    """)


def rows_setup():
    a(f"""s_lshl_b32 s{sEPSF}, s{sEPSF}, 16
    v_add_f32 v{vT0}, s{sEPSF}, 1.0
    v_cvt_pk_bf16_f32 v{vT0}, v{vT0}, v{vT0}
    v_lshlrev_b32 v{vT0}, 16, v{vT0}
    v_add_u32 v{vT3}, s{sBASE}, v{vN}
    v_readfirstlane_b32 s{sEPSF}, v{vT0}
    v_lshlrev_b32 v{vT3}, 9, v{vT3}
    v_lshl_add_u32 v{vT3}, v{vG}, 4, v{vT3}
    s_lshl_b32 s{sT0}, s{sWAVE}, 6
    v_add_u32 v{vOUTA}, s{sT0}, v{vT3}
    s_lshl_b32 s{sT0}, s{sWAVE}, 3
    s_lshl_b32 s{sT1}, s{sROT}, 1
    s_sub_u32 s{sT0}, s{sT0}, s{sT1}
    v_add_u32 v{vT3}, s{sT0}, v{vG}
    v_add_u32 v{vT1}, 4, v{vT3}
    v_and_b32 v{vT3}, 15, v{vT3}
    v_and_b32 v{vT1}, 15, v{vT1}
    v_lshl_add_u32 v{vH1W2}, v{vT1}, 4, v{vH1W}
    v_lshl_add_u32 v{vH1W}, v{vT3}, 4, v{vH1W}
    s_mov_b32 s{sI}, 0
    s_lshl_b32 s{sT0}, s{sWAVE}, 2
    s_lshl_b32 s{sT1}, s{sWAVE}, 1
    s_add_u32 s{sT1}, s{sT1}, 32
    s_add_u32 s{sT2}, s{sT0}, 2
    s_cmp_lt_u32 s{sWAVE}, 4
    s_cselect_b32 s{sNODE}, 6, 4
    s_cselect_b32 s{sRW}, s{sT1}, s{sT0}
    s_cselect_b32 s{sRW+2}, s{sT0}, s{sT2}
    s_cselect_b32 s{sRW+4}, s{sT2}, 46
    s_cselect_b32 s{sCTR}, 0, 4
    s_add_u32 s{sRW+1}, s{sRW}, 1
    s_add_u32 s{sRW+3}, s{sRW+2}, 1
    s_add_u32 s{sRW+5}, s{sRW+4}, 1
    s_mov_b64 {sp(sROWT)}, 0
    """)
    for k in range(5, -1, -1):
        a(f"""s_lshl_b64 {sp(sROWT)}, {sp(sROWT)}, 8
        s_or_b32 s{sROWT}, s{sROWT}, s{sRW+k}""")
    a(f"""s_mov_b64 {sp(sMASK2)}, 0
    s_lshl_b32 s{sT0}, s{sWAVE}, 15
    s_add_u32 s{sW2T}, s{sW2T}, s{sT0}
    v_lshrrev_b32 v{vENT}, 5, v{vLANE}
    v_lshlrev_b32 v{vENT}, 4, v{vENT}
    s_lshl_b32 s{sT0}, s{sRW}, 8
    v_add_u32 v{vENT}, s{sT0}, v{vENT}
    s_mul_i32 s{sT0}, s{sRW}, {H_STR}
    v_add_u32 v{vENT+1}, s{sT0}, v{vHW}
    v_lshlrev_b32 v{vENT+2}, 2, v{vLANE}
    v_mov_b32 v{vENT+3}, 0""")


def is_helper(lab):
    a(f"""s_mov_b32 s{sT0}, s{sF}
    s_cmp_eq_u32 s{sHLP}, 0
    s_cbranch_scc1 {lab}""")


a("s_setprio 2")
for ks in range(NSL):
    dma_w1(ks)
    if OWNPOS >= 3 and ks == OWNPOS - 3:
        own_loads()
        ops.extend(["o"] * 3)
for i in range(4):
    a(f"v_mov_b32 v{vE+i}, {EMPTY}")
for ks in range(KE - NSL):
    a(f"s_waitcnt vmcnt({younger(f'd{ks}')})")
    tr_w1(ks)
    if ks == 0:
        if OWNPOS < 3:
            own_store()
        a(f"""s_sub_u32 s{sT2}, s{sWAVE}, 1
        s_cmp_ge_u32 s{sT2}, 2
        s_cbranch_scc1 L_nbias
        v_lshlrev_b32 v{vT1}, 5, v{vLANE}
        s_cmp_eq_u32 s{sT2}, 1
        s_cbranch_scc1 L_bias2
        """)
        for i in range(4):
            a(f"""v_lshlrev_b32 v{64+2*i}, 16, v{vBL+i}
            v_and_b32 v{64+2*i+1}, 0xffff0000, v{vBL+i}""")
        a(f"""ds_write_b128 v{vT1}, {vr(64,4)} offset:{B1F_OFF}
        ds_write_b128 v{vT1}, {vr(68,4)} offset:{B1F_OFF+16}
        s_branch L_nbias
        """)
        a.label("L_bias2")
        for i in range(4):
            a(f"""v_lshlrev_b32 v{64+i}, 16, v{vBL+i}
            v_and_b32 v{68+i}, 0xffff0000, v{vBL+i}""")
        a(f"""s_mov_b32 exec_hi, 0
        ds_write_b128 v{vT1}, {vr(64,4)} offset:{B2F_OFF}
        ds_write_b128 v{vT1}, {vr(68,4)} offset:{B2F_OFF+16}
        s_mov_b64 exec, -1
        """)
        a.label("L_nbias")
    if OWNPOS >= 3 and OSE and ks == OWNPOS - 2 and ks < CHKK:
        own_store()
    if ks in (1, 3):
        a(f"s_setprio {1 - ks//2}")
    a("s_waitcnt lgkmcnt(0)")
    dma_w1(ks + NSL)
    if ks == 0:
        is_helper("L_nohelp")
        frag_finish(63)
        a.label("L_nohelp")
        if KE < 8:
            a(f"""s_cmp_lg_u32 s{sDMP}, 0x8f
            s_cbranch_scc1 L_nodump
            s_and_b32 s{sT0}, s{sROT}, 7
            s_lshl_b32 s{sT0}, s{sT0}, 12
            s_lshl_b32 s{sT1}, s{sWAVE}, 15
            s_add_u32 s{sT0}, s{sT0}, s{sT1}
            s_add_u32 s{sT0}, s{sT0}, {W2T_OFF + 262144}""")
            for f in range(4):
                a(f"buffer_store_dwordx4 {vr(vW+4*f,4)}, v{vL16}, {srd(rWS)}, s{sT0} offen offset:{f*1024} sc1")
            a.label("L_nodump")
    if ks + 1 == POLLK:
        if NPF:
            l = a.newlabel("L_npf")
            a(f"""s_cmp_lt_u32 s{sPR}, {NP}
            s_cbranch_scc1 {l}
            s_and_b32 s{sT0}, s2, 7
            s_mul_i32 s{sT0}, s{sT0}, 5000
            s_lshl_b32 s{sT1}, s{sWAVE}, 4
            s_lshr_b32 s{sT2}, s2, 4
            s_add_u32 s{sT1}, s{sT1}, s{sT2}
            s_mul_i32 s{sT1}, s{sT1}, {NPF}
            s_add_u32 s{sT0}, s{sT0}, s{sT1}
            v_add_u32 v{vT1}, s{sT0}, v{vLANE}
            v_subrev_u32 v{vT2}, 40000, v{vT1}
            v_min_u32 v{vT1}, v{vT2}, v{vT1}
            v_lshlrev_b32 v{vT1}, 7, v{vT1}
            v_cmp_gt_u32 vcc, {NPF}, v{vLANE}
            s_mov_b64 exec, vcc
            buffer_load_dword v{vOWN}, v{vT1}, {srd(rX)}, 0 offen""")
            a.label(l)
        a(f"s_mov_b64 exec, {sp(sPM)}")
        poll_loads()
        a("s_mov_b64 exec, -1")
        ops.extend(["p"])
        stamp("pollissued")
        rows_setup()
    if ks + 1 == CHKK:
        poll_check_and_insert()
        if OWNPOS >= 3 and not (OSE and OWNPOS - 2 < CHKK):
            own_store()
        a(f"""s_cmp_lg_u32 s{sDMP}, 0x8f
        s_cbranch_scc1 L_nodf
        s_and_b32 s{sT0}, s{sROT}, 7
        s_lshl_b32 s{sT0}, s{sT0}, 3
        s_add_u32 s{sT0}, s{sT0}, s{sWAVE}
        s_add_u32 s{sT0}, s{sT0}, 128
        s_branch L_doflag""")
        a.label("L_nodf")
        is_helper("L_noflag")
        a.label("L_doflag")
        a(f"""s_mul_i32 s{sT1}, s{sEP}, {FLGM[0]}
        v_mov_b32 v{vT2}, s{sT1}
        s_lshl_b32 s{sT0}, s{sT0}, 2
        s_add_u32 s{sT0}, s{sT0}, {FLG_OFF}
        v_mov_b32 v{vT1}, 0
        s_mov_b64 exec, 1
        buffer_store_dword v{vT2}, v{vT1}, {srd(rWS)}, s{sT0} offen sc1
        s_mov_b64 exec, -1
        """)
        a.label("L_noflag")
if not W1TAIL:
    for ks in range(KE - NSL, KE):
        a(f"s_waitcnt vmcnt({younger(f'd{ks}')})")
        tr_w1(ks)
stamp("w1done")

a(f"""s_mov_b32 s{sFT}, {FLG_OFF}
s_cmp_lt_u32 s{sWAVE}, 4
s_setprio 1
s_cbranch_scc0 L_prD
s_setprio 2
""")
a.label("L_prD")
vPE = 96


def issue_group(ent, r):
    for j in range(4):
        a(f"v_add_u32 v{ent+j}, v{ent+j}, v{vGOFF}")
    for j in range(4):
        a(f"buffer_load_dwordx4 {vr(vRING+r*16+j*4,4)}, v{ent+j}, {srd(rX)}, 0 offen")


a(f"""v_cmp_gt_u32 {sp(sPM)}, {R}, v{vLANE}
s_waitcnt lgkmcnt(0)
s_barrier
""")
stamp("buckets")
a.label("L_gsetup")
for s_ in range(FS):
    a(f"ds_read_b128 {vr(vPE+4*s_,4)}, v{vENT} offset:{BK_OFF+32*s_}")
a(f"""ds_read_b32 v{vT1}, v{vENT+2} offset:{CNT_OFF}
ds_read_b32 v{vT3}, v{vENT+3} offset:{FLAG_OFF}
ds_read_b64 {vr(vOWN,2)}, v{vENT+1} offset:{H_OFF}
""")
for k in range(8):
    a(f"""s_add_u32 s{sRT+k}, s{sROT}, {k}
    s_and_b32 s{sRT+k}, s{sRT+k}, 7
    s_lshl_b32 s{sRT+k}, s{sRT+k}, 11""")
for s_ in range(FS):
    a(f"s_waitcnt lgkmcnt({3+FS-1-s_})")
    issue_group(vPE + 4 * s_, s_)
a(f"""s_waitcnt lgkmcnt(0)
v_cmp_lt_u32 vcc, 64, v{vT1}
v_add_u32 v{vT1}, 1, v{vT1}
v_lshrrev_b32 v{vT1}, 1, v{vT1}
v_max_u32 v{vT1}, 1, v{vT1}
v_cndmask_b32 v{vT1}, 0, v{vT1}, {sp(sPM)}
v_readfirstlane_b32 s{sTMO}, v{vT3}
""")
for k in range(6):
    a(f"v_readlane_b32 s{sE+k}, v{vT1}, s{sRW+k}")
a(f"""s_cmp_lg_u64 vcc, 0
s_cbranch_scc1 L_slow
s_cmp_lg_u32 s{sTMO}, 0
s_cbranch_scc1 L_slow
""")
if FS:
    a(f"s_max_u32 s{sE}, s{sE}, {4*FS}")
for k in range(1, 6):
    a(f"s_add_u32 s{sE+k}, s{sE+k}, s{sE+k-1}")
a(f"""s_cmp_gt_u32 s{sE+5}, 64
s_cbranch_scc1 L_big
v_mov_b32 v{vT0}, v{vLANE}
""")


def build_list():
    a(f"v_mov_b32 v{vT2}, s{sSB}")
    for k in range(1, 6):
        a(f"""v_cmp_le_u32 vcc, s{sE+k-1}, v{vT0}
        v_mov_b32 v{vT3}, s{sSB+k}
        s_nop 0
        v_cndmask_b32 v{vT2}, v{vT2}, v{vT3}, vcc""")
    a(f"""v_lshl_add_u32 v{vT2}, v{vT0}, 3, v{vT2}
    v_mov_b32 v{vENT}, {OOB}
    v_mov_b32 v{vENT+1}, {OOB}
    v_cmp_gt_u32 vcc, s{sE+5}, v{vT0}
    s_mov_b64 exec, vcc
    ds_read_b64 {vr(vENT,2)}, v{vT2} offset:{BK_OFF}
    s_mov_b64 exec, -1
    v_lshrrev_b32 v{vT3}, 2, v{vT0}
    v_lshlrev_b32 v{vT3}, 5, v{vT3}
    v_and_b32 v{vT1}, 3, v{vT0}
    v_lshl_add_u32 v{vT3}, v{vT1}, 2, v{vT3}
    s_lshl_b32 s{sKS}, s{sWAVE}, 10
    v_add_u32 v{vT3}, s{sKS}, v{vT3}
    v_add_u32 v{vT3}, {LIST_OFF}, v{vT3}
    """)


def bases():
    a(f"s_lshl_b32 s{sSB}, s{sRW}, 8")
    for k in range(1, 6):
        a(f"""s_lshl_b32 s{sSB+k}, s{sRW+k}, 5
        s_sub_u32 s{sSB+k}, s{sSB+k}, s{sE+k-1}
        s_lshl_b32 s{sSB+k}, s{sSB+k}, 3""")


bases()
build_list()
for k in range(6):
    a(f"s_sub_u32 s{sKS}, s{sE+k}, 1\ns_bitset1_b64 {sp(sMASK)}, s{sKS}")
a(f"""s_waitcnt lgkmcnt(0)
ds_write2_b32 v{vT3}, v{vENT}, v{vENT+1} offset0:0 offset1:4
""")
a.label("L_listdone")
a(f"""s_add_u32 s{sNGT}, s{sE+5}, 3
s_lshr_b32 s{sNGT}, s{sNGT}, 2
s_max_u32 s{sREM}, s{sNGT}, {RD}
""")
a.label("L_prol")
for s in range(FS, RD):
    a(f"ds_read_b128 {vr(vPE+4*s,4)}, v{vLADDR} offset:{LIST_OFF+32*s}")
a(f"ds_read_b128 {vr(vENT,4)}, v{vLADDR} offset:{LIST_OFF+32*RD}")


def w1_tail(cnt):
    if W1TAIL:
        a(f"s_waitcnt vmcnt({cnt})")
        for ks in range(KE - NSL, KE):
            tr_w1(ks)


for s in range(FS, RD):
    a(f"s_waitcnt lgkmcnt({RD-s})" if s == FS else "s_waitcnt lgkmcnt(0)")
    issue_group(vPE + 4 * s, s)
    if s == FS:
        w1_tail(4 * (FS + 1))
stamp("gstart")


def mfma_sum(b):
    a(f"v_mfma_f32_16x16x32_bf16 {vr(vGACC,4)}, {vr(vASUM,4)}, {vr(b,4)}, {vr(vGACC,4)}")


stubs = []
drains = []
a.label("L_gloop")
for s in range(RD):
    lgo, ldr, lni = a.newlabel("L_go"), a.newlabel("L_dr"), a.newlabel("L_ni")
    drains.append((ldr, lgo))
    b = vRING + s * 16
    a(f"""s_cmp_lt_u32 s{sREM}, {RD}
    s_cbranch_scc1 {ldr}
    s_waitcnt vmcnt({4*(RD-1)})""")
    a.label(lgo)
    for j in range(4):
        ls, lb = a.newlabel("L_st"), a.newlabel("L_bk")
        stubs.append((ls, lb))
        mfma_sum(b + 4 * j)
        a(f"""s_bitcmp1_b32 s{sMASK}, {4*s+j}
        s_cbranch_scc1 {ls}""")
        a.label(lb)
    a(f"""s_cmp_lt_u32 s{sREM}, {RD+1}
    s_cbranch_scc1 {lni}
    s_waitcnt lgkmcnt(0)""")
    issue_group(vENT, s)
    a(f"ds_read_b128 {vr(vENT,4)}, v{vLADDR} offset:{LIST_OFF+32*(RD+1+s)}")
    a.label(lni)
    a(f"s_sub_u32 s{sREM}, s{sREM}, 1")
a(f"""v_add_u32 v{vLADDR}, 128, v{vLADDR}
s_lshr_b64 {sp(sMASK)}, {sp(sMASK)}, 16
s_add_u32 s{sI}, s{sI}, 1
s_cmp_eq_u32 s{sI}, 4
s_cselect_b64 {sp(sMASK)}, {sp(sMASK2)}, {sp(sMASK)}
s_cmp_lt_u32 s{sI}, 8
s_cbranch_scc1 L_gloop
s_endpgm
""")
for ls, lb in stubs:
    a.label(ls)
    a(f"s_call_b64 {sp(sRET)}, L_fin\ns_branch {lb}")
for ldr, lgo in drains:
    a.label(ldr)
    for k in range(RD - 1, 1, -1):
        ln = a.newlabel("L_dr")
        a(f"""s_cmp_lt_u32 s{sREM}, {k}
        s_cbranch_scc1 {ln}
        s_waitcnt vmcnt({4*(k-1)})
        s_branch {lgo}""")
        a.label(ln)
    a(f"s_waitcnt vmcnt(0)\ns_branch {lgo}")

a.label("L_fin")
a(f"""s_and_b32 s{sT1}, s{sROWT}, 0xff
s_lshr_b64 {sp(sROWT)}, {sp(sROWT)}, 8
s_and_b32 s{sT2}, s{sROWT}, 0xff
s_mul_i32 s{sT1}, s{sT1}, {H_STR}
s_mul_i32 s{sT2}, s{sT2}, {H_STR}
s_waitcnt lgkmcnt(0)
v_lshlrev_b32 v{vT0}, 16, v{vOWN}
v_and_b32 v{vT1}, 0xffff0000, v{vOWN}
v_lshlrev_b32 v{vT2}, 16, v{vOWN+1}
v_and_b32 v{vT3}, 0xffff0000, v{vOWN+1}
v_add_u32 v{vT4}, s{sT2}, v{vHW}
ds_read_b64 {vr(vOWN,2)}, v{vT4} offset:{H_OFF}
v_fma_f32 v{vT0}, v{vT0}, s{sEPSF}, v{vGACC}
v_fma_f32 v{vT1}, v{vT1}, s{sEPSF}, v{vGACC+1}
v_fma_f32 v{vT2}, v{vT2}, s{sEPSF}, v{vGACC+2}
v_fma_f32 v{vT3}, v{vT3}, s{sEPSF}, v{vGACC+3}
v_add_u32 v{vT4}, s{sT1}, v{vHW}
v_cvt_pk_bf16_f32 v{vT0}, v{vT0}, v{vT1}
v_cvt_pk_bf16_f32 v{vT1}, v{vT2}, v{vT3}
v_mov_b32 v{vGACC}, 0
v_mov_b32 v{vGACC+1}, 0
ds_write_b64 v{vT4}, {vr(vT0,2)} offset:{H_OFF}
v_mov_b32 v{vGACC+2}, 0
v_mov_b32 v{vGACC+3}, 0
s_sub_u32 s{sNODE}, s{sNODE}, 1
s_cmp_eq_u32 s{sNODE}, 2
s_cbranch_scc1 L_finflag
s_cmp_eq_u32 s{sNODE}, 0
s_cbranch_scc1 L_gdone
s_setpc_b64 {sp(sRET)}
""")
a.label("L_finflag")
if OT == 2:
    a(f"""s_mov_b64 exec, 1
    buffer_load_dword v{vFLG}, v{vOUTA}, {srd(rOUT)}, 0 offen
    s_mov_b64 exec, -1""")
a(f"""buffer_load_dwordx4 {vr(vFLG,4)}, v{vL16}, {srd(rWS)}, s{sFT} offen sc1
s_setpc_b64 {sp(sRET)}
""")

vACC1 = 32
vBB = 64
vW2E = 88
NE = 10


def acc1(t, T):
    return vACC1 + (t * 4 + T) * 4


w2n = [0]
tops = []


def tyounger(tag):
    i = len(tops) - 1 - tops[::-1].index(tag)
    return len(tops) - 1 - i


def w2reg(q):
    if q < NE:
        return vW2E + 4 * q
    return vW + 4 * (q - NE)


def ldw2(n):
    for _ in range(n):
        q = w2n[0]
        if q >= 32:
            return
        a(f"buffer_load_dwordx4 {vr(w2reg(q),4)}, v{vWA}, {srd(rWS)}, s{sRT+((q>>1)&7)} offen offset:{(q&1)*1024} sc1")
        w2n[0] += 1
        tops.append("b")
        if q == 15:
            a(f"v_add_u32 v{vWA}, 16384, v{vWA}")


def g1(tiles, last):
    nt = len(tiles)

    def buf(ks, i):
        return vBB + ((ks % 3) * 2 + i) * 4

    def rd(ks):
        for i, t in enumerate(tiles):
            a(f"ds_read_b128 {vr(buf(ks,i),4)}, v{vG1B} offset:{H_OFF+t*16*H_STR+ks*32}")
    for ks in range(3):
        rd(ks)
    for ks in range(8):
        vm = f"vmcnt({tyounger(f'a{ks}')}) " if (not last and ks >= KE) else ""
        a(f"s_waitcnt {vm}lgkmcnt({nt*min(2, 7-ks)})")
        for i in range(nt):
            for T in range(4):
                fr = vW + ks * 16 + T * 4
                c = acc1(nt - 1, T) if ks == 0 else acc1(i, T)
                a(f"v_mfma_f32_16x16x32_bf16 {vr(acc1(i,T),4)}, {vr(fr,4)}, {vr(buf(ks,i),4)}, {vr(c,4)}")
            if not last and w1q:
                if i == nt - 1:
                    ldw1(w1q.pop(0))
                    if not w1q and OPR:
                        l = a.newlabel("L_op")
                        a(f"s_cmp_ge_u32 s{sWAVE}, 4\ns_cbranch_scc1 {l}\ns_setprio 0")
                        a.label(l)
            elif not last and w2n[0] < E1 and EWM == 0:
                ldw2(1)
            elif not last and w2n[0] < E1 and EWM == 2:
                l = a.newlabel("L_sk")
                a(f"s_cmp_lt_u32 s{sWAVE}, 4\ns_cbranch_scc1 {l}")
                ldw2(1)
                tops.pop()
                a.label(l)
        if ks + 3 < 8:
            rd(ks + 3)
        if last:
            ldw2(max(0, min(G1LD, NE + 4 * (ks + 1) - w2n[0])))
    a("s_nop 6")
    for i, t in enumerate(tiles):
        if t == 2:
            a("s_mov_b32 exec_lo, 0x00ff00ff\ns_mov_b32 exec_hi, 0x00ff00ff")
        for aa in range(2):
            o = vBB + (i * 2 + aa) * 4
            for hT in range(2):
                for hh in range(2):
                    s0 = acc1(i, 2 * aa + hT) + 2 * hh
                    a(f"""v_cvt_pk_bf16_f32 v{o+2*hT+hh}, v{s0}, v{s0+1}
                    v_pk_max_i16 v{o+2*hT+hh}, v{o+2*hT+hh}, 0""")
            a(f"ds_write_b128 v{vH1W2 if aa else vH1W}, {vr(o,4)} offset:{H1T[t]}")
        if t == 2:
            a("s_mov_b64 exec, -1")


def arrive(off):
    a(f"""v_mov_b32 v{vT3}, s{sCTR}
    v_mov_b32 v{vT4}, 1
    s_mov_b64 exec, 1
    ds_add_u32 v{vT3}, v{vT4} offset:{off}
    s_mov_b64 exec, -1""")


def wait_ctr(off, lab):
    a(f"s_mov_b32 s{sT3}, 0\nv_mov_b32 v{vT4}, 0\ns_branch {lab}_in")
    a.label(lab)
    a("s_sleep 1")
    a.label(lab + "_in")
    a(f"""ds_read_b32 v{vT3}, v{vT4} offset:{off}
    s_add_u32 s{sT3}, s{sT3}, 1
    s_waitcnt lgkmcnt(0)
    v_readfirstlane_b32 s{sT1}, v{vT3}
    s_cmp_lt_u32 s{sT3}, 0x4000000
    s_cselect_b32 s{sT2}, 4, 0
    s_cmp_lt_u32 s{sT1}, s{sT2}
    s_cbranch_scc1 {lab}
    """)


a.label("L_gdone")
stamp("gdone")
arrive(DONE_OFF)
a(f"""s_cmp_ge_u32 s{sWAVE}, 4
s_cbranch_scc1 L_noarr
{'s_nop 0' if OPR else 's_setprio 0'}
""")
a.label("L_noarr")
a(f"""s_mov_b32 s{sT3}, 0
s_mul_i32 s{sT0}, s{sEP}, {FLGM[0]}
s_mul_i32 s{sT1}, s{sEP}, {FLGM[1]}
""")
a.label("L_chk2")
a(f"""s_waitcnt vmcnt(0)
v_xor_b32 v{vFLG}, s{sT0}, v{vFLG}
v_xor_b32 v{vFLG+1}, s{sT0}, v{vFLG+1}
v_xor_b32 v{vFLG+2}, s{sT0}, v{vFLG+2}
v_xor_b32 v{vFLG+3}, s{sT0}, v{vFLG+3}
v_or3_b32 v{vT1}, v{vFLG}, v{vFLG+1}, v{vFLG+2}
v_or_b32 v{vT1}, v{vT1}, v{vFLG+3}
s_mov_b32 exec_hi, 0xffff
v_cmp_ne_u32 vcc, 0, v{vT1}
s_mov_b64 exec, -1
s_cbranch_vccnz L_w2miss
""")
a.label("L_w2ok")
tops.clear()
a(f"v_add_u32 v{vWA}, s{sW2T}, v{vL16}")


def ldw1(ks):
    a(f"""s_lshl_b32 s{sW2K}, s{sRT+ks}, 1
    s_add_u32 s{sW2K}, s{sW2K}, 262144""")
    for f in range(4):
        a(f"buffer_load_dwordx4 {vr(vW+ks*16+f*4,4)}, v{vWA}, {srd(rWS)}, s{sW2K} offen offset:{f*1024} sc1")
        tops.append(f"a{ks}")


w1q = list(range(KE, 8))
if not W1IN:
    while w1q:
        ldw1(w1q.pop(0))
for T in range(4):
    a(f"ds_read_b128 {vr(acc1(1,T),4)}, v{vBIA} offset:{B1F_OFF+64*T}")
wait_ctr(DONE_OFF, "L_spA")
stamp("g02start")
g1([0, 2], False)
if EWM == 1:
    ldw2(E1)
if EWM == 2:
    n0 = w2n[0]
    w2n[0] = 0
    l = a.newlabel("L_sk")
    a(f"s_cmp_ge_u32 s{sWAVE}, 4\ns_cbranch_scc1 {l}")
    ldw2(n0)
    a.label(l)
for T in range(4):
    a(f"ds_read_b128 {vr(acc1(0,T),4)}, v{vBIA} offset:{B1F_OFF+64*T}")
stamp("g02end")
wait_ctr(DONE_OFF + 4, "L_spB")
stamp("g1start")
g1([1], True)
arrive(DONE_OFF + 8)

vACC2 = 32
vB2B = 56


def acc2(t, T):
    return vACC2 + (t * 2 + T) * 4


a(f"""s_lshl_b32 s{sT0}, s{sWAVE}, 8
v_subrev_u32 v{vT0}, s{sT0}, v{vBIA}
v_lshlrev_b32 v{vT0}, 1, v{vT0}
s_lshl_b32 s{sT0}, s{sWAVE}, 7
v_add_u32 v{vT0}, s{sT0}, v{vT0}
ds_read_b128 {vr(acc2(2,0),4)}, v{vT0} offset:{B2F_OFF}
ds_read_b128 {vr(acc2(2,1),4)}, v{vT0} offset:{B2F_OFF+16}
""")
ldw2(2)
stamp("g1end")


def rd2(ks):
    for t in range(3):
        a(f"ds_read_b128 {vr(vB2B+(ks&1)*12+t*4,4)}, v{vG2B} offset:{H1T[t]+(ks>>3)*512+(ks&7)*32}")


vO = 88
vAB = 104
POL = ['', 'nt', 'sc1', 'sc0 sc1', 'sc1 nt'][OPOL]


def out_tile(t):
    for r in range(4):
        a(f"v_cvt_pk_bf16_f32 v{vO+t*4+r}, v{acc2(t,0)+r}, v{acc2(t,1)+r}")
    if t == 2:
        a("s_mov_b32 exec_lo, 0x00ff00ff\ns_mov_b32 exec_hi, 0x00ff00ff")
    so = ["0", f"s{sPM}", f"s{sPM+1}"][t]
    a(f"buffer_store_dwordx4 {vr(vO+t*4,4)}, v{vOUTA}, {srd(rOUT)}, {so} offen {POL}")


for half in range(2):
    if half == 1 and TM:
        assert w2n[0] == 32
    if half == 1:
        a(f"s_mov_b32 s{sPM}, 8192\ns_mov_b32 s{sPM+1}, 16384")
    wait_ctr(DONE_OFF + 8 + 4 * half, f"L_spG{half}")
    stamp(f"g2h{half}")
    if half == 1 and TPRIO:
        a("s_setprio 0")
    if half == 1 and TM:
        seq = [(t, k) for t in range(3) for k in range(8)]
        NBUF = 6

        def rdt(i):
            t, k = seq[i]
            a(f"ds_read_b128 {vr(vB2B+(i%NBUF)*4,4)}, v{vG2B} offset:{H1T[t]+512+k*32}")
        for i in range(NBUF):
            rdt(i)
        for i, (t, k) in enumerate(seq):
            vm = f"vmcnt({14-2*k}) " if t == 0 else ""
            a(f"s_waitcnt {vm}lgkmcnt({min(NBUF-1, len(seq)-1-i)})")
            for T in range(2):
                fr = w2reg(2 * (8 + k) + T)
                a(f"v_mfma_f32_16x16x32_bf16 {vr(acc2(t,T),4)}, {vr(fr,4)}, {vr(vB2B+(i%NBUF)*4,4)}, {vr(acc2(t,T),4)}")
            if i + NBUF < len(seq):
                rdt(i + NBUF)
            if t > 0 and k == 2:
                out_tile(t - 1)
        a("s_nop 7")
        out_tile(2)
        continue
    rd2(8 * half)
    rd2(8 * half + 1)
    for ks in range(8 * half, 8 * half + 8):
        assert w2n[0] >= 2 * ks + 2
        a(f"s_waitcnt vmcnt({w2n[0]-2*ks-2}) lgkmcnt({3 if (ks & 7) < 7 else 0})")
        for t in range(3):
            for T in range(2):
                fr = w2reg(2 * ks + T)
                c = acc2(2, T) if ks == 0 else acc2(t, T)
                a(f"v_mfma_f32_16x16x32_bf16 {vr(acc2(t,T),4)}, {vr(fr,4)}, {vr(vB2B+(ks&1)*12+t*4,4)}, {vr(c,4)}")
            if t < 2:
                ldw2(1)
        if (ks & 7) + 2 < 8:
            rd2(ks + 2)
if not TM:
    a("s_nop 5")
    for t in range(3):
        out_tile(t)
a(f"""s_mov_b64 exec, 1
v_mov_b32 v{vT1}, s{sEP}
v_mov_b32 v{vT2}, {EPOCH_OFF}
s_lshr_b32 s{sT0}, s{sTMO}, 1
s_or_b32 s{sT0}, s{sT0}, s{sWAVE}
s_cmp_lg_u32 s{sT0}, 0
s_cbranch_scc1 L_noep
buffer_store_dword v{vT1}, v{vT2}, {srd(rWS)}, 0 offen
""")
a.label("L_noep")
if STAMPS:
    a("s_mov_b64 exec, -1")
    stamp("end")
    a("s_waitcnt vmcnt(0)")
    stamp("drained")
    a(f"""s_lshl_b32 s{sT0}, s2, 10
    s_lshl_b32 s{sT1}, s{sWAVE}, 7
    s_add_u32 s{sT0}, s{sT0}, s{sT1}
    s_add_u32 s{sT0}, s{sT0}, 0x800000
    v_lshlrev_b32 v{vT1}, 2, v{vLANE}
    s_mov_b32 exec_hi, 0
    buffer_store_dword v{vSTV}, v{vT1}, {srd(rWS)}, s{sT0} offen""")
a.label("L_end")
a("s_endpgm")

a.label("L_pmiss")
a(f"""s_add_u32 s{sPC}, s{sPC}, 1
s_cmp_ge_u32 s{sPC}, {SPIN_MAX}
s_cbranch_scc1 L_ptimeout
s_sleep {PSLEEP}
""")
poll_loads()
a("s_waitcnt vmcnt(0)\ns_branch L_pchk")
a.label("L_ptimeout")
a(f"""s_mov_b64 exec, -1
v_mov_b32 v{vT1}, 0
v_mov_b32 v{vT2}, 3
ds_or_b32 v{vT1}, v{vT2} offset:{FLAG_OFF}
""")
for i in range(4):
    a(f"v_mov_b32 v{vE+i}, {EMPTY}\nv_mov_b32 v{vE2+i}, {EMPTY}")
a("s_branch L_polled")
a.label("L_setovf")
a(f"""s_and_b32 s{sMASK}, vcc_lo, 0x11111111
s_and_b32 s{sMASK+1}, vcc_hi, 0x11111111
s_mov_b64 exec, vcc""")
for i in range(4):
    a(f"v_mov_b32 v{vE+i}, {EMPTY}")
a("s_mov_b64 exec, -1\ns_branch L_noovf")
a.label("L_rescan")
a(f"""s_ff1_i32_b64 s{sT0}, {sp(sMASK)}
s_lshr_b32 s{sT1}, s{sT0}, 2
s_lshl_b32 s{sT3}, s{sWAVE}, 4
s_add_u32 s{sT1}, s{sT1}, s{sT3}
s_mul_i32 s{sT1}, s{sT1}, {EPP*4}
s_lshl_b32 s{sT3}, s{sRS}, 10
s_add_u32 s{sT1}, s{sT1}, s{sT3}
buffer_load_dwordx4 {vr(vE2,4)}, v{vL16}, {srd(rDST)}, s{sT1} offen
buffer_load_dwordx4 {vr(vE,4)}, v{vL16}, {srd(rSRC)}, s{sT1} offen
s_add_u32 s{sRS}, s{sRS}, 1
s_cmp_lt_u32 s{sRS}, 5
s_cbranch_scc1 L_rs1
s_mov_b32 s{sRS}, 0
s_bitset0_b64 {sp(sMASK)}, s{sT0}
""")
a.label("L_rs1")
a("s_waitcnt vmcnt(0)")
for i in range(4):
    a(f"""v_subrev_u32 v{vE2+i}, s{sBASE}, v{vE2+i}
    v_min_u32 v{vE2+i}, 63, v{vE2+i}
    v_lshl_or_b32 v{vE+i}, v{vE2+i}, 14, v{vE+i}""")
a("s_branch L_ins")
a.label("L_big")
a(f"""s_cmp_gt_u32 s{sE+5}, 104
s_cbranch_scc1 L_slow
""")
bases()
for rnd in range(2):
    a(f"v_add_u32 v{vT0}, {64*rnd}, v{vLANE}")
    build_list()
    a(f"""s_waitcnt lgkmcnt(0)
    ds_write2_b32 v{vT3}, v{vENT}, v{vENT+1} offset0:0 offset1:4""")
for k in range(6):
    l0, l1 = a.newlabel("L_bm"), a.newlabel("L_bm")
    a(f"""s_sub_u32 s{sKS}, s{sE+k}, 1
    s_cmp_ge_u32 s{sKS}, 64
    s_cbranch_scc1 {l0}
    s_bitset1_b64 {sp(sMASK)}, s{sKS}
    s_branch {l1}""")
    a.label(l0)
    a(f"s_bitset1_b64 {sp(sMASK2)}, s{sKS}")
    a.label(l1)
a("s_branch L_listdone")
a.label("L_w2miss")
a(f"""s_add_u32 s{sT3}, s{sT3}, 1
s_cmp_ge_u32 s{sT3}, {SPIN_MAX}
s_cbranch_scc1 L_w2self
s_sleep 2
buffer_load_dwordx4 {vr(vFLG,4)}, v{vL16}, {srd(rWS)}, s{sFT} offen sc1
s_branch L_chk2
""")
a.label("L_w2self")
a(f"""s_or_b32 s{sTMO}, s{sTMO}, 2
s_lshl_b32 s{sW2T}, s2, 19
s_add_u32 s{sW2T}, s{sW2T}, {PRIV_OFF}
s_lshl_b32 s{sF}, s{sWAVE}, 4
""")
a.label("L_selfw2")
frag_issue()
frag_finish(0)
a(f"""s_add_u32 s{sF}, s{sF}, 1
s_and_b32 s{sT0}, s{sF}, 15
s_cmp_lg_u32 s{sT0}, 0
s_cbranch_scc1 L_selfw2
s_lshl_b32 s{sT0}, s{sWAVE}, 15
s_add_u32 s{sW2T}, s{sW2T}, s{sT0}
s_mov_b32 s{sF}, 0
v_lshrrev_b32 v{vT2}, 5, v{vLANE}
v_bfe_u32 v{vT3}, v{vLANE}, 4, 1
v_lshl_add_u32 v{vT1}, v{vT3}, 4, v{vT2}
v_and_b32 v{vT3}, 15, v{vLANE}
v_lshlrev_b32 v{vT3}, 1, v{vT3}
v_lshl_add_u32 v{vT2}, v{vT1}, 13, v{vT3}
""")
a.label("L_selfw1")
a(f"""s_lshr_b32 s{sT0}, s{sF}, 2
s_lshl_b32 s{sT0}, s{sT0}, 14
s_and_b32 s{sT1}, s{sF}, 3
s_lshl_b32 s{sT1}, s{sT1}, 5
s_add_u32 s{sT0}, s{sT0}, s{sT1}
s_lshl_b32 s{sT1}, s{sWAVE}, 7
s_add_u32 s{sT0}, s{sT0}, s{sT1}
s_add_u32 s{sT1}, s{sT0}, 4096""")
for e in range(8):
    a(f"buffer_load_ushort v{vQ+e}, v{vT2}, {srd(rW1)}, s{sT0 if e<4 else sT1} offen offset:{(e&3)*1024}")
a(f"""s_lshl_b32 s{sT0}, s{sF}, 10
s_add_u32 s{sT0}, s{sT0}, s{sW2T}
s_add_u32 s{sT0}, s{sT0}, 262144
s_waitcnt vmcnt(0)""")
for e in range(4):
    a(f"v_lshl_or_b32 v{vQ+8+e}, v{vQ+2*e+1}, 16, v{vQ+2*e}")
a(f"""buffer_store_dwordx4 {vr(vQ+8,4)}, v{vL16}, {srd(rWS)}, s{sT0} offen sc1
s_add_u32 s{sF}, s{sF}, 1
s_cmp_lt_u32 s{sF}, 32
s_cbranch_scc1 L_selfw1
s_waitcnt vmcnt(0)
s_branch L_w2ok
""")

a.label("L_slow")
w1_tail(0)
vSA = vRING
vSD, vSS, vSB = vRING + 24, vRING + 25, vRING + 28
vHOFF, vLO = vRING + 26, vRING + 27
a(f"""v_mov_b32 v{vT0}, {OOB}
v_cmp_gt_u32 vcc, 32, v{vLANE}
s_mov_b32 s{sI}, 0
v_lshlrev_b32 v{vLO}, 2, v{vLANE}
v_cndmask_b32 v{vHOFF}, v{vT0}, v{vGOFF}, vcc
""")
for k in range(6):
    a(f"s_add_u32 s{sE+k}, s{sRW+k}, s{sBASE}")
a(f"""s_cmp_lt_u32 s{sWAVE}, 4
s_cselect_b32 s{sE+4}, s{sE+4}, -1
s_cselect_b32 s{sE+5}, s{sE+5}, -1""")
for r in range(24):
    a(f"v_mov_b32 v{vSA+r}, 0")
a.label("L_sloop")
a(f"""buffer_load_dword v{vSD}, v{vLO}, {srd(rDST)}, s{sI} offen
buffer_load_dword v{vSS}, v{vLO}, {srd(rSRC)}, s{sI} offen
s_waitcnt vmcnt(0)
v_lshlrev_b32 v{vSS}, 9, v{vSS}
""")
for n in range(6):
    l0, l1 = a.newlabel("L_s"), a.newlabel("L_s")
    a(f"v_cmp_eq_u32 {sp(sPM)}, s{sE+n}, v{vSD}")
    a.label(l0)
    a(f"""s_nop 3
    s_cmp_eq_u64 {sp(sPM)}, 0
    s_cbranch_scc1 {l1}
    s_ff1_i32_b64 s{sT1}, {sp(sPM)}
    s_bitset0_b64 {sp(sPM)}, s{sT1}
    v_readlane_b32 s{sT2}, v{vSS}, s{sT1}
    s_nop 4
    buffer_load_dwordx4 {vr(vSB,4)}, v{vHOFF}, {srd(rX)}, s{sT2} offen
    s_waitcnt vmcnt(0)
    v_mfma_f32_16x16x32_bf16 {vr(vSA+4*n,4)}, {vr(vASUM,4)}, {vr(vSB,4)}, {vr(vSA+4*n,4)}
    s_nop 7
    s_branch {l0}""")
    a.label(l1)
a(f"""s_add_u32 s{sI}, s{sI}, 256
s_cmp_lt_u32 s{sI}, 640000
s_cbranch_scc1 L_sloop
s_nop 7
""")
for n in range(6):
    for r in range(4):
        a(f"v_mov_b32 v{vGACC+r}, v{vSA+4*n+r}")
    a(f"s_call_b64 {sp(sRET)}, L_fin")
a("s_endpgm")

hdr = open("cdna_kernels/%s.s.ref" % NAME).read().split("; Override launch")[0]
out = hdr + f"""; @launch grid=({NB},1,1) block=(512,1,1) lds={LDS_BYTES}
.amdgcn_target "amdgcn-amd-amdhsa--gfx950"
.text
.globl {NAME}_kernel
.p2align 8
.type {NAME}_kernel,@function
{NAME}_kernel:
""" + "\n".join(a.lines) + f"""
.section .rodata,"a"
.p2align 6
.amdhsa_kernel {NAME}_kernel
  .amdhsa_next_free_vgpr {NVGPR}
  .amdhsa_next_free_sgpr 102
  .amdhsa_accum_offset {NVGPR}
  .amdhsa_group_segment_fixed_size 0
  .amdhsa_kernarg_size 88
  .amdhsa_user_sgpr_count 2
  .amdhsa_user_sgpr_kernarg_segment_ptr 1
  .amdhsa_system_sgpr_workgroup_id_x 1
.end_amdhsa_kernel
"""
dst = [x for x in sys.argv[1:] if not x.startswith("--")]
open(dst[0] if dst else f"cdna_kernels/{NAME}.s", "w").write(out)
print("stamps:", stamp_idx[0], " ".join(f"{i}:{n}" for i, n in enumerate(stamp_names)))
```
